```python
import torch

def _softmax(x, axis=-1):
    return torch.softmax(x, dim=axis)

def _gelu(x):
    return torch.nn.functional.gelu(x, approximate='tanh')

def _silu(x):
    return torch.nn.functional.silu(x)

def _sigmoid(x):
    return torch.sigmoid(x)

def _layernorm(x, axis=-1, eps=1e-05):
    m = x.mean(dim=axis, keepdim=True)
    v = x.var(dim=axis, keepdim=True, unbiased=False)
    return (x - m) / torch.sqrt(v + eps)

def _scatter_add(tgt, idx, src, axis=0):
    return tgt.clone().index_add_(axis, idx, src)

def _segment_sum(src, seg, n):
    out = torch.zeros((n,) + src.shape[1:], dtype=src.dtype)
    return out.index_add_(0, seg, src)

def _pad(x, pw):
    flat = tuple((v for pair in reversed(pw) for v in pair))
    return torch.nn.functional.pad(x, flat)
kernel_name = 'interleave_layers__sliding_block__memory_aug_recurrent_mem_tr__prompt'

def setup_inputs():

    _w = lambda a: (lambda t: t.to(torch.bfloat16) if t.is_floating_point() else t)(torch.as_tensor(a))

    def _A_setup():
        B, S, D = (1, 2048, 576)
        return {'x': _w((lambda *s: torch.randn(*s, dtype=torch.bfloat16) * 0.05)(B, S, D)), 'wqkv': _w((lambda *s: torch.randn(*s, dtype=torch.bfloat16) * 0.05)(D, 3 * D)), 'wo': _w((lambda *s: torch.randn(*s, dtype=torch.bfloat16) * 0.05)(D, D))}
    _A_in = _A_setup()

    def _B_setup():
        B, S, Dm = (1, 2048, 576)
        H, Dh = (32, 128)
        M, seg = (8, 32)
        seg = min(seg, S)
        S = S // seg * seg
        return {'x': _w((lambda *s: torch.randn(*s, dtype=torch.bfloat16) * 0.05)(B, S, Dm)), 'mem0': _w((lambda *s: torch.randn(*s, dtype=torch.bfloat16) * 0.8)(B, M, Dm)), 'Wq': _w((lambda *s: torch.randn(*s, dtype=torch.bfloat16) * 1.6)(Dm, H, Dh) * Dm ** (-0.5)), 'Wk': _w((lambda *s: torch.randn(*s, dtype=torch.bfloat16) * 1.6)(Dm, H, Dh) * Dm ** (-0.5)), 'Wv': _w((lambda *s: torch.randn(*s, dtype=torch.bfloat16) * 0.8)(Dm, H, Dh) * Dm ** (-0.5)), 'Wo': _w((lambda *s: torch.randn(*s, dtype=torch.bfloat16) * 0.8)(H, Dh, Dm) * (H * Dh) ** (-0.5)), 'seg_len': seg}
    _B_in = _B_setup()
    return {'A_x': _A_in['x'], 'A_wqkv': _A_in['wqkv'], 'A_wo': _A_in['wo'], 'B_x': _B_in['x'], 'B_mem0': _B_in['mem0'], 'B_Wq': _B_in['Wq'], 'B_Wk': _B_in['Wk'], 'B_Wv': _B_in['Wv'], 'B_Wo': _B_in['Wo'], 'B_seg_len': _B_in['seg_len']}

def reference(A_x, A_wqkv, A_wo, B_x, B_mem0, B_Wq, B_Wk, B_Wv, B_Wo, B_seg_len):

    def _A_ref(x, wqkv, wo):
        B, S, D = x.shape
        H = 32
        Dh = D // H
        W = 256
        qkv = (lambda x, *d: x.permute(*d))((x @ wqkv).reshape(B, S, 3, H, Dh), 2, 0, 3, 1, 4)
        q, k, v = (qkv[0], qkv[1], qkv[2])
        scores = torch.einsum('bhqd,bhkd->bhqk', q, k) * Dh ** (-0.5)
        idx = torch.arange(S)
        mask = (idx[:, None] - idx[None, :] >= 0) & (idx[:, None] - idx[None, :] < W)
        scores = torch.where(mask[None, None], scores, -1000000000.0)
        p = _softmax(scores, axis=-1)
        o = torch.einsum('bhqk,bhkd->bhqd', p, v)
        return (lambda x, *d: x.permute(*d))(o, 0, 2, 1, 3).reshape(B, S, D) @ wo

    def _B_ref(x, mem0, Wq, Wk, Wv, Wo, seg_len):
        B, S, Dm = x.shape
        H, Dh = (Wq.shape[1], Wq.shape[2])
        M = mem0.shape[1]
        scale = Dh ** (-0.5)
        n_seg = S // seg_len
        L = M + seg_len
        idx = torch.arange(L)
        mask = (idx[:, None] < M) | (idx[:, None] >= idx[None, :])
        mem = mem0
        outs = []
        for s in range(n_seg):
            xs = x[:, s * seg_len:(s + 1) * seg_len, :].clone()
            h = torch.concatenate([mem, xs], axis=1)
            q = torch.einsum('btd,dhe->bhte', h, Wq)
            k = torch.einsum('btd,dhe->bhte', h, Wk)
            v = torch.einsum('btd,dhe->bhte', h, Wv)
            scores = torch.einsum('bhqe,bhke->bhqk', q, k) * scale
            scores = torch.where(mask[None, None], scores, -1000000000.0)
            p = _softmax(scores, axis=-1)
            o = torch.einsum('bhqk,bhke->bhqe', p, v)
            o = torch.einsum('bhte,hed->btd', o, Wo)
            mem = o[:, :M, :].clone()
            outs.append(o[:, M:, :])
        return torch.concatenate(outs, axis=1)
    x = A_x
    x = x + _A_ref(_layernorm(x, axis=-1), A_wqkv, A_wo)
    x = x + _B_ref(_layernorm(x, axis=-1), B_mem0, B_Wq, B_Wk, B_Wv, B_Wo, B_seg_len)
    x = x + _A_ref(_layernorm(x, axis=-1), A_wqkv, A_wo)
    x = x + _B_ref(_layernorm(x, axis=-1), B_mem0, B_Wq, B_Wk, B_Wv, B_Wo, B_seg_len)
    return x
```

```python
import re

def v(a, n=1): return "v%d" % a if n == 1 else "v[%d:%d]" % (a, a + n - 1)
def a(x, n=1): return "a%d" % x if n == 1 else "a[%d:%d]" % (x, x + n - 1)
def s(x, n=1): return "s%d" % x if n == 1 else "s[%d:%d]" % (x, x + n - 1)

_reg = re.compile(r"^([vas])(\d+)$|^([vas])\[(\d+):(\d+)\]$")
def regs_of(tok):
    tok = tok.strip()
    if tok.startswith("-") or tok.startswith("|"):
        tok = tok.strip("-|")
    m = _reg.match(tok)
    if m:
        if m.group(1): return [(m.group(1), int(m.group(2)))]
        return [(m.group(3), i) for i in range(int(m.group(4)), int(m.group(5)) + 1)]
    if tok == "vcc": return [("s", "vcc")]
    if tok in ("vcc_lo", "vcc_hi"): return [("s", "vcc")]
    if tok == "exec": return [("s", "exec")]
    if tok == "m0": return [("s", "m0")]
    return []

TRANS = ("v_exp_f32", "v_log_f32", "v_rcp_f32", "v_rsq_f32", "v_sqrt_f32", "v_sin_f32", "v_cos_f32", "v_rcp_iflag_f32")

def mfma_passes(op):
    if "32x32" in op: return 8
    return 4

class Ins:
    __slots__ = ("text", "op", "ops", "kind", "vdef", "vuse", "sdef", "suse", "srcc", "passes", "dpp", "sdwa", "wide_store_data", "lds_dma", "full_d")
    def __init__(self, text):
        self.text = text
        t = text.split(";")[0].strip()
        parts = t.split(None, 1)
        self.op = op = parts[0]
        rest = parts[1] if len(parts) > 1 else ""
        ops = []; cur = ""; depth = 0
        for ch in rest:
            if ch in "[(": depth += 1
            if ch in "])": depth -= 1
            if ch == "," and depth == 0:
                ops.append(cur.strip()); cur = ""
            else: cur += ch
        if cur.strip(): ops.append(cur.strip())
        mods = ""
        if ops:
            last = ops[-1].split(None, 1)
            ops[-1] = last[0]
            if len(last) > 1: mods = last[1]
        self.ops = ops
        self.vdef = []; self.vuse = []; self.sdef = []; self.suse = []; self.srcc = []
        self.passes = 0; self.dpp = False; self.sdwa = False; self.wide_store_data = []; self.lds_dma = False; self.full_d = None
        R = [regs_of(o) for o in ops]
        isv = lambda r: r[0] in "va"
        def use(rs):
            for r in rs:
                (self.vuse if isv(r) else self.suse).append(r)
        def df(rs):
            for r in rs:
                (self.vdef if isv(r) else self.sdef).append(r)
        if op.startswith("v_mfma") or op.startswith("v_smfmac"):
            self.kind = "mfma"; self.passes = mfma_passes(op)
            df(R[0]); use(R[1]); use(R[2])
            self.full_d = (op, ops[0])
            if op.startswith("v_smfmac"):
                self.srcc = R[0]; use(R[3])
            else:
                self.srcc = R[3]
        elif op.startswith("v_"):
            self.kind = "valu"
            self.dpp = ("row_" in mods or "quad_perm" in mods or "_dpp" in op or "wave_" in mods)
            self.sdwa = "sdwa" in op or "op_sel" in mods
            if op.startswith("v_cmp"):
                df(R[0]); [use(r) for r in R[1:]]
            elif op.startswith("v_permlane"):
                df(R[0]); df(R[1]); use(R[0]); use(R[1])
            elif op.startswith("v_readfirstlane") or op.startswith("v_readlane"):
                df(R[0]); [use(r) for r in R[1:]]
            elif "_co_" in op:
                df(R[0]); df(R[1]); [use(r) for r in R[2:]]
            else:
                df(R[0]); [use(r) for r in R[1:]]
                if op.startswith("v_fmac") or op.startswith("v_dot2c") or self.dpp or self.sdwa or op.startswith("v_mac") or op.startswith("v_writelane"):
                    use(R[0])
                if op.startswith("v_cndmask") and len(ops) == 3:
                    use([("s", "vcc")])
                if op.startswith("v_cndmask") and len(ops) == 4 and not R[3]:
                    pass
        elif op.startswith("buffer_") or op.startswith("global_"):
            self.kind = "vmem"
            self.lds_dma = (" lds" in " " + mods) or ("lds" in op)
            isload = "load" in op
            isatomic = "atomic" in op
            if op.startswith("buffer_"):
                if self.lds_dma:
                    [use(r) for r in R]
                elif isload:
                    df(R[0]); [use(r) for r in R[1:]]
                else:
                    [use(r) for r in R]
                    if "x4" in op or "x3" in op: self.wide_store_data = R[0]
            else:
                if isload:
                    df(R[0]); [use(r) for r in R[1:]]
                else:
                    [use(r) for r in R]
                    if "x4" in op or "x3" in op: self.wide_store_data = R[1]
        elif op.startswith("ds_"):
            self.kind = "ds"
            if op.startswith("ds_read") or op.startswith("ds_bpermute") or op.startswith("ds_permute") or op.startswith("ds_swizzle"):
                df(R[0]); [use(r) for r in R[1:]]
            else:
                [use(r) for r in R]
                if "b128" in op: self.wide_store_data = R[1]
        elif op.startswith("s_"):
            self.kind = "salu"
            if op in ("s_waitcnt", "s_nop", "s_barrier", "s_endpgm", "s_branch", "s_setprio", "s_sleep") or op.startswith("s_cbranch"):
                pass
            elif op.startswith("s_cmp") or op.startswith("s_bitcmp"):
                [use(r) for r in R]
            else:
                if R: df(R[0])
                [use(r) for r in R[1:]]
        else:
            raise ValueError("unknown op " + text)

class Asm:
    def __init__(self):
        self.out = []
        self.hist = []
        self.pos = 0
        self.recent = []
        self.vm_issued = 0; self.lgkm_issued = 0
        self.nins = 0
        self.nops_added = 0
        self.uid = 0
    def raw(self, line): self.out.append(line)
    def comment(self, c): self.out.append("  ; " + c)
    def newlabel(self, base):
        self.uid += 1
        return "%s_%d" % (base, self.uid)
    def label(self, name):
        self.out.append(name + ":")
    def _need(self, c):
        need = 0
        cu = set(c.vuse); cd = set(c.vdef); csu = set(c.suse); ccc = set(c.srcc)
        for (p, pr) in self.recent:
            dist = self.pos - p - 1
            req = 0
            pd = set(pr.vdef)
            if pr.kind == "valu":
                if pd:
                    if c.kind == "mfma" and (pd & (cu | ccc)): req = max(req, 2)
                    if c.kind == "valu":
                        if pd & cu:
                            if c.dpp or c.op.startswith("v_permlane"): req = max(req, 2)
                            if c.op.startswith("v_readfirstlane") or c.op.startswith("v_readlane"): req = max(req, 1)
                            if pr.op in TRANS: req = max(req, 1)
                            if pr.sdwa: req = max(req, 1)
                        if pr.op.startswith("v_dot") and (pd & (cu | cd)):
                            if not (c.op == pr.op): req = max(req, 3)
                            else:
                                ab = set(regs_of(c.ops[1]) + regs_of(c.ops[2]))
                                if pd & ab: req = max(req, 3)
                    if pr.op.startswith("v_dot") and c.kind in ("vmem", "ds", "mfma") and (pd & (cu | ccc)): req = max(req, 3)
                    if pr.op in TRANS and c.kind in ("vmem", "ds") and (pd & cu): req = max(req, 1)
                psd = set(pr.sdef)
                if psd:
                    if c.kind == "valu" and (psd & csu): req = max(req, 2)
                    if c.kind in ("valu", "mfma") and ("s", "exec") in psd: req = max(req, 5)
                    if c.kind == "vmem" and (psd & csu): req = max(req, 5)
                    if c.kind == "salu" and (psd & csu): req = max(req, 1)
                    if c.op.startswith("s_cbranch_vcc") and ("s", "vcc") in psd: req = max(req, 1)
            elif pr.kind == "mfma":
                P = pr.passes
                rd = {4: 8, 8: 12}[P]; ov = {4: 6, 8: 10}[P]; war = {4: 3, 8: 7}[P]
                if c.kind == "mfma":
                    if pd & cu: req = max(req, rd)
                    if pd & ccc:
                        same = (regs_of(pr.ops[0]) == list(c.srcc)) and pr.passes == c.passes and (pr.op == c.op)
                        if not same: req = max(req, ov)
                    elif pd & cd:
                        req = max(req, ov)
                else:
                    if pd & (cu | cd): req = max(req, rd)
                    if c.kind == "valu" and (set(pr.srcc) & cd): req = max(req, war)
            elif pr.kind == "salu":
                if ("s", "m0") in set(pr.sdef) and c.lds_dma: req = max(req, 1)
            if pr.wide_store_data and (set(pr.wide_store_data) & cd):
                req = max(req, 2 if c.kind == "valu" else 1)
            if req - dist > need: need = req - dist
        return need
    def _nop(self, n):
        self.nops_added += n
        while n > 0:
            k = min(n, 16)
            self.out.append("  s_nop %d" % (k - 1))
            self.pos += k
            n -= k
    def flush_hazards(self):
        need = 0
        for (p, pr) in self.recent:
            dist = self.pos - p - 1
            w = 0
            if pr.kind == "mfma": w = {4: 8, 8: 12}[pr.passes]
            elif pr.kind == "valu":
                w = 2
                if pr.sdef: w = 5
                if pr.op.startswith("v_dot"): w = 3
            elif pr.kind == "salu":
                if ("s", "m0") in set(pr.sdef): w = 1
            if pr.wide_store_data: w = max(w, 2)
            need = max(need, w - dist)
        if need > 1: self._nop(need - 1)
    def I(self, text):
        c = Ins(text)
        if c.op.startswith("s_cbranch") or c.op == "s_branch":
            n0 = self._need(c)
            if n0 > 0: self._nop(n0)
            self.flush_hazards()
        else:
            n = self._need(c)
            if n > 0: self._nop(n)
        self.out.append("  " + text)
        if c.op == "s_nop":
            self.pos += int(c.ops[0]) + 1
        else:
            self.recent.append((self.pos, c))
            self.pos += 1
        self.recent = [(p, x) for (p, x) in self.recent if self.pos - p <= 21]
        self.nins += 1
        tok = None
        if c.kind == "vmem":
            self.vm_issued += 1; tok = ("vm", self.vm_issued)
        elif c.kind == "ds" or c.op.startswith("s_load") or c.op.startswith("s_buffer_load") or c.op.startswith("s_memtime") or c.op.startswith("s_memrealtime"):
            self.lgkm_issued += 1; tok = ("lgkm", self.lgkm_issued)
        return tok
    def wait_vm(self, tok=None):
        n = 0 if tok is None else self.vm_issued - tok[1]
        assert n >= 0
        self.I("s_waitcnt vmcnt(%d)" % min(n, 63))
    def wait_lgkm(self, tok=None):
        n = 0 if tok is None else self.lgkm_issued - tok[1]
        assert n >= 0
        self.I("s_waitcnt lgkmcnt(%d)" % min(n, 15))
    def text(self): return "\n".join(self.out) + "\n"
```

```python
from g_work import *

NEGINF = 0xff800000
def mf32(A, d, x, y, c): A.I("v_mfma_f32_32x32x16_bf16 %s, %s, %s, %s" % (v(d, 16), x, y, c))
def mf8(A, d, x, y, c): A.I("v_mfma_f32_32x32x8bf16_1k %s, %s, %s, %s" % (v(d, 16), x, y, c))

def xhalf(A, op, r, tmp):
    A.I("v_mov_b32 %s, %s" % (v(tmp), v(r)))
    A.I("v_permlane32_swap_b32 %s, %s" % (v(r), v(tmp)))
    A.I("%s %s, %s, %s" % (op, v(r), v(r), v(tmp)))

def max_tree(A, dst, regs):
    I = A.I
    regs = list(regs)
    if len(regs) >= 12:
        nch = 4
        parts = [regs[i::nch] for i in range(nch)]
        st = [None] * nch
        done = False
        idx = [0] * nch
        while not done:
            done = True
            for c in range(nch):
                p = parts[c]; i = idx[c]
                if i >= len(p): continue
                done = False
                if st[c] is None:
                    if len(p) - i >= 3:
                        I("v_max3_f32 %s, %s, %s, %s" % (v(dst + c), v(p[i]), v(p[i + 1]), v(p[i + 2]))); idx[c] += 3
                    else:
                        I("v_max_f32 %s, %s, %s" % (v(dst + c), v(p[i]), v(p[i + 1]))); idx[c] += 2
                    st[c] = 1
                elif len(p) - i >= 2:
                    I("v_max3_f32 %s, %s, %s, %s" % (v(dst + c), v(dst + c), v(p[i]), v(p[i + 1]))); idx[c] += 2
                else:
                    I("v_max_f32 %s, %s, %s" % (v(dst + c), v(dst + c), v(p[i]))); idx[c] += 1
        I("v_max3_f32 %s, %s, %s, %s" % (v(dst), v(dst), v(dst + 1), v(dst + 2)))
        I("v_max_f32 %s, %s, %s" % (v(dst), v(dst), v(dst + 3)))
    else:
        raise NotImplementedError

MSK = [40 + 2 * i for i in range(8)] + [64 + 2 * i for i in range(8)]
def causal_masks(A):
    I = A.I
    I("v_and_b32 v8, 31, %s" % v(LANE))
    I("v_lshrrev_b32 v9, 5, %s" % v(LANE))
    I("v_lshlrev_b32 v9, 2, v9")
    I("v_sub_u32 v8, v8, v9")
    for j in range(4):
        for r in range(4):
            I("v_cmp_le_i32_e64 %s, %d, v8" % (s(MSK[4 * j + r], 2), 8 * j + r))

BSC = 128 ** -0.5 * 1.4426950408889634
def role_qa(A):
    I = A.I
    arrive(A)
    worker_setup(A)
    bw_load(A, 40)
    causal_masks(A)
    NEG = 5; MKO = 6; MVO = 7
    I("v_mov_b32 %s, 0x%x" % (v(NEG), NEGINF))
    I("v_lshrrev_b32 v9, 5, %s" % v(LANE))
    I("v_and_b32 v8, 7, %s" % v(LANE))
    I("v_lshlrev_b32 v8, 4, v8")
    I("v_lshl_add_u32 %s, v9, 7, v8" % v(MKO))
    I("v_and_b32 v8, 31, %s" % v(LANE))
    I("v_lshlrev_b32 v8, 4, v8")
    I("v_lshl_add_u32 v8, v9, 3, v8")
    I("v_add_u32 %s, 2048, v8" % v(MVO))
    I("s_mov_b32 %s, 0x%x" % (s(sSC), fb(BSC)))
    fw = ((F_XN + 64) * FSTR, 128 * FSTR, FSTR, [])
    fs = (F_OB * FSTR, 64 * 4 * FSTR, 4 * FSTR, [(62, FSTR)])
    xb = (W_XN + XN_K, 2 * XN_K, SEGB, [])
    ob = (W_OB, 64 * OB_S, OB_S, [(S_IDX, 8192)])
    I("s_lshr_b32 s62, %s, 3" % s(S_IDX))
    task_init(A, fw, fs, xb, ob)
    sFK, sFM, sKV, sMK = 80, 81, 82, 83
    ex = ((sFK, (F_KV * FSTR, 64 * 32 * FSTR, 32 * FSTR, [(S_IDX, FSTR)])),
          (sFM, (F_MKV * FSTR, 64 * 32 * FSTR, 32 * FSTR, [(S_IDX, FSTR)])),
          (sKV, (W_KV, 64 * 32 * KV_H, 32 * KV_H, [(S_IDX, KV_H)])),
          (sMK, (W_MKV, 64 * 32 * MKV_H, 32 * MKV_H, [(S_IDX, MKV_H)])))
    for dst, (c0, cl, cs, e) in ex: lin(A, dst, c0, [(sLy, cl), (sSeg, cs)] + e)
    start_sync(A)
    A.label("L_qa_top")
    spin_flag(A, sFK, 2)
    toks = load_x(A, 36, sX)
    KA, VA, MKA, MVA = 144, 176, 208, 240
    kt = []
    for t in range(16):
        if t % 4 == 0 and t: I("s_add_u32 %s, %s, %d" % (s(sT), s(sKV), t * 1024))
        kt.append(I("buffer_load_dwordx4 %s, %s, s[4:7], %s offen offset:%d sc1" % (a(KA + 4 * t, 4), v(L16), s(sKV if t < 4 else sT), (t % 4) * 1024)))
    gemm_core(A, 36, 4, False, xtoks=toks)
    QF = 16
    for tau in range(4):
        for jj in range(2):
            for m in range(4):
                x0 = ACC + 16 * tau + 8 * jj + 2 * m
                I("v_mul_f32 %s, %s, %s" % (v(x0), s(sSC), v(x0)))
                I("v_mul_f32 %s, %s, %s" % (v(x0 + 1), s(sSC), v(x0 + 1)))
                I("v_cvt_pk_bf16_f32 %s, %s, %s" % (v(QF + 4 * (2 * tau + jj) + m), v(x0), v(x0 + 1)))
    SX, SM = 64, 80
    A.wait_vm(kt[7])
    for t in range(8): mf32(A, SX, a(KA + 4 * t, 4), v(QF + 4 * t, 4), "0" if t == 0 else v(SX, 16))
    spin_flag(A, sFM, 4)
    mt = []
    for t in range(8):
        mt.append(I("buffer_load_dwordx4 %s, %s, s[4:7], %s offen offset:%d sc1" % (a(MKA + 4 * t, 4), v(MKO), s(sMK), t * 256)))
    for tau in range(4):
        mvt = I("buffer_load_dwordx2 %s, %s, s[4:7], %s offen offset:%d sc1" % (a(MVA + 2 * tau, 2), v(MVO), s(sMK), tau * 512))
    for i in range(16): I("v_cndmask_b32_e64 %s, %s, %s, %s" % (v(SX + i), v(NEG), v(SX + i), s(MSK[i], 2)))
    for t in range(8):
        A.wait_vm(mt[t])
        mf32(A, SM, a(MKA + 4 * t, 4), v(QF + 4 * t, 4), "0" if t == 0 else v(SM, 16))
    M_ = 48
    max_tree(A, M_, list(range(SX, SX + 16)) + list(range(SM, SM + 4)))
    xhalf(A, "v_max_f32", M_, 52)
    for r in list(range(SX, SX + 16)) + list(range(SM, SM + 4)):
        I("v_sub_f32 %s, %s, %s" % (v(r), v(r), v(M_)))
        I("v_exp_f32 %s, %s" % (v(r), v(r)))
    P0, PM = 16, 24
    for jj in range(2):
        for m in range(4): I("v_cvt_pk_bf16_f32 %s, %s, %s" % (v(P0 + 4 * jj + m), v(SX + 8 * jj + 2 * m), v(SX + 8 * jj + 2 * m + 1)))
    for m in range(2): I("v_cvt_pk_bf16_f32 %s, %s, %s" % (v(PM + m), v(SM + 2 * m), v(SM + 2 * m + 1)))
    OAc = 96
    A.wait_vm(mvt)
    for tau in range(4):
        mf32(A, OAc + 16 * tau, a(VA + 4 * (2 * tau), 4), v(P0, 4), "0")
        mf32(A, OAc + 16 * tau, a(VA + 4 * (2 * tau + 1), 4), v(P0 + 4, 4), v(OAc + 16 * tau, 16))
        mf8(A, OAc + 16 * tau, a(MVA + 2 * tau, 2), v(PM, 2), v(OAc + 16 * tau, 16))
        if tau == 0:
            regs = list(range(SX, SX + 16)) + list(range(SM, SM + 4))
            for c in range(4):
                p = regs[c::4]
                I("v_add_f32 %s, %s, %s" % (v(28 + c), v(p[0]), v(p[1])))
            for k in range(2, 5):
                for c in range(4): I("v_add_f32 %s, %s, %s" % (v(28 + c), v(28 + c), v(regs[c::4][k])))
            I("v_add_f32 v28, v28, v29"); I("v_add_f32 v30, v30, v31"); I("v_add_f32 v28, v28, v30")
            xhalf(A, "v_add_f32", 28, 29)
            I("v_rcp_f32 v28, v28")
    units = [((2 * tau + jj) * 1024, [(OAc + 16 * tau + 8 * jj + i, None) for i in range(8)]) for tau in range(4) for jj in range(2)]
    for tau in range(4):
        for i in range(16): I("v_mul_f32 %s, %s, v28" % (v(OAc + 16 * tau + i), v(OAc + 16 * tau + i)))
        store_units(A, units[2 * tau:2 * tau + 2], sO, L16, tmp=32 + 8 * (tau & 1))
    I("s_waitcnt vmcnt(0)")
    signal(A, sFS, 16)
    for dst, (c0, cl, cs, e) in ex: I("s_add_u32 %s, %s, 0x%x" % (s(dst), s(dst), 2 * cs))
    task_next(A, fw, fs, xb, ob, "L_qa_top")

def role_aa(A, naa):
    I = A.I
    arrive(A)
    worker_setup(A)
    causal_masks(A)
    NW = 2 * naa
    NEG, VA0, U1, U2, XOF, TOK16 = 5, 6, 7, 8, 9, 10
    I("v_mov_b32 %s, 0x%x" % (v(NEG), NEGINF))
    I("v_and_b32 v11, 31, %s" % v(LANE))
    I("v_lshrrev_b32 v12, 5, %s" % v(LANE))
    I("v_lshlrev_b32 %s, 4, v11" % v(TOK16))
    I("s_mov_b32 s3, 0x%x" % OOB)
    I("v_mul_lo_u32 v13, v12, s3")
    I("v_add_u32 %s, v13, %s" % (v(XOF), v(TOK16)))
    I("v_and_b32 v13, 3, v11"); I("v_lshlrev_b32 v13, 11, v13")
    I("v_lshrrev_b32 v14, 2, v11"); I("v_lshl_add_u32 v14, v12, 5, v14")
    I("v_lshl_add_u32 v13, v14, 4, v13")
    I("v_add_u32 v13, 65536, v13")
    I("v_subrev_u32 v14, 16, v11"); I("v_lshlrev_b32 v14, 11, v14")
    I("v_lshl_add_u32 v14, v12, 9, v14")
    I("v_add_u32 v14, %d, v14" % (98304 + 8192))
    I("v_add_u32 v15, %d, %s" % (98304 + 8192 + 4096, v(L16)))
    I("v_cmp_gt_u32 vcc, 16, v11")
    I("v_cndmask_b32 %s, 0, 1, vcc" % v(U1)) if False else None
    I("v_cndmask_b32_e64 %s, 0, 1, vcc" % v(U1))
    I("v_cmp_gt_u32_e64 s[90:91], 18, v11")
    I("v_cndmask_b32_e64 v15, v15, v14, s[90:91]")
    I("v_cndmask_b32_e64 %s, v15, v13, vcc" % v(VA0))
    I("v_cndmask_b32_e64 %s, 0, 1, s[90:91]" % v(U2))
    I("v_sub_u32 %s, %s, %s" % (v(U2), v(U2), v(U1)))
    KA, KX, VV = 0, 36, 64
    I("v_mov_b32 v21, 0")
    for k in range(9): I("v_accvgpr_write_b32 %s, 0" % a(KX + 2 * k + 1))
    sTK, sHead, sFQ = 62, 63, 80
    SB = 81
    I("s_lshl_b32 %s, s60, 2" % s(sTK))
    I("s_add_u32 %s, %s, %s" % (s(sTK), s(sTK), s(S_WAVE)))
    I("s_and_b32 %s, %s, 1" % (s(sLy), s(sTK)))
    I("s_lshr_b32 %s, %s, 1" % (s(sTK), s(sTK)))
    start_sync(A)
    A.label("L_aa_top")
    I("s_lshr_b32 %s, %s, 5" % (s(sSeg), s(sTK)))
    I("s_and_b32 %s, %s, 31" % (s(sHead), s(sTK)))
    I("s_lshl_b32 %s, %s, 6" % (s(sT), s(sLy)))
    I("s_add_u32 %s, %s, %s" % (s(sT), s(sT), s(sSeg)))
    I("s_lshl_b32 %s, %s, 6" % (s(sFQ), s(sT)))
    I("s_add_u32 %s, %s, %d" % (s(sFS), s(sFQ), F_OA * FSTR))
    I("s_add_u32 %s, %s, %d" % (s(sFQ), s(sFQ), F_QKVA * FSTR))
    I("s_lshl_b32 %s, %s, 6" % (s(sT2), s(sLy)))
    for k in range(9):
        I("s_sub_i32 s3, %s, %d" % (s(sSeg), 8 - k))
        I("s_max_i32 s3, s3, 0")
        I("s_add_u32 s3, s3, %s" % s(sT2))
        I("s_lshl_b32 s3, s3, 17")
        I("s_add_u32 %s, s3, 0x%x" % (s(SB + k), W_QKVA))
    I("s_mul_i32 %s, %s, %d" % (s(sO), s(sT), SEGB))
    I("s_add_u32 %s, %s, 0x%x" % (s(sO), s(sO), W_OA))
    I("s_lshl_b32 s91, %s, 10" % s(sHead))
    I("v_add_u32 v22, s91, %s" % v(L16))
    I("v_add_u32 v23, 32768, v22")
    I("s_lshr_b32 s92, %s, 3" % s(sHead)); I("s_lshl_b32 s93, s92, 10")
    I("s_bfe_u32 s94, %s, 0x10002" % s(sHead)); I("s_lshl_b32 s94, s94, 9"); I("s_add_u32 s93, s93, s94")
    I("s_and_b32 s94, %s, 3" % s(sHead)); I("s_lshl_b32 s94, s94, 2"); I("s_add_u32 s93, s93, s94")
    I("s_add_u32 s94, s93, 98304")
    I("v_add_u32 v24, s94, %s" % v(XOF))
    I("v_add_u32 v25, 4096, v24")
    I("s_add_u32 s94, s93, 32768")
    I("v_add_u32 v27, s94, %s" % v(XOF))
    I("s_lshl_b32 s92, s92, 13"); I("s_and_b32 s94, %s, 7" % s(sHead)); I("s_lshl_b32 s94, s94, 6"); I("s_add_u32 s92, s92, s94")
    I("s_lshl_b32 s94, %s, 4" % s(sHead))
    I("v_mad_u32_u24 v26, %s, s92, %s" % (v(U1), v(VA0)))
    I("v_mad_u32_u24 v26, %s, s94, v26" % v(U2))
    I("s_cmp_eq_u32 %s, 0" % s(sSeg))
    I("s_cselect_b32 s3, 0, %d" % FSTR)
    I("s_sub_u32 %s, %s, s3" % (s(sFQ), s(sFQ)))
    I("v_lshrrev_b32 v14, 5, %s" % v(LANE))
    I("v_mul_u32_u24 v14, s3, v14")
    spin_flag(A, sFQ, 14, voff=14)
    qt = I("buffer_load_dwordx4 v[16:19], v22, s[4:7], %s offen sc1" % s(SB + 8))
    qt = I("buffer_load_dword v20, v24, s[4:7], %s offen sc1" % s(SB + 8))
    kt = {}
    for k in range(8, -1, -1):
        I("buffer_load_dwordx4 %s, v23, s[4:7], %s offen sc1" % (a(KA + 4 * k, 4), s(SB + k)))
        kt[k] = I("buffer_load_dword %s, v25, s[4:7], %s offen sc1" % (a(KX + 2 * k), s(SB + k)))
    vt = {}
    for k in range(8, -1, -1):
        I("buffer_load_dwordx4 %s, v26, s[4:7], %s offen sc1" % (a(VV + 8 * k, 4), s(SB + k)))
        vt[k] = I("buffer_load_dwordx4 %s, v26, s[4:7], %s offen offset:1024 sc1" % (a(VV + 8 * k + 4, 4), s(SB + k)))
    S0 = 64
    for k in range(8, -1, -1):
        A.wait_vm(kt[k])
        mf32(A, S0 + 16 * k, a(KA + 4 * k, 4), v(16, 4), "0")
        mf8(A, S0 + 16 * k, a(KX + 2 * k, 2), v(20, 2), v(S0 + 16 * k, 16))
        if k == 6:
            for i in range(16): I("v_cndmask_b32_e64 %s, %s, %s, %s" % (v(S0 + 128 + i), v(NEG), v(S0 + 128 + i), s(MSK[i], 2)))
    for i in range(16): I("v_cndmask_b32_e64 %s, %s, %s, %s" % (v(S0 + i), v(S0 + i), v(NEG), s(MSK[i], 2)))
    Lfix = A.newlabel("L_aa_fix"); Lback = A.newlabel("L_aa_back")
    I("s_cmp_lt_u32 %s, 8" % s(sSeg))
    I("s_cbranch_scc1 %s" % Lfix)
    A.label(Lback)
    M_ = 28
    max_tree(A, M_, range(S0, S0 + 144))
    xhalf(A, "v_max_f32", M_, 32)
    I("v_sub_f32 v32, 0, %s" % v(M_))
    I("v_mov_b32 v33, v32")
    OA_ = 40
    first = True
    for k in range(8, -1, -1):
        b = S0 + 16 * k
        for i in range(0, 16, 2): I("v_pk_add_f32 %s, %s, v[32:33]" % (v(b + i, 2), v(b + i, 2)))
        for i in range(16): I("v_exp_f32 %s, %s" % (v(b + i), v(b + i)))
        for jj in range(2):
            for m in range(4): I("v_cvt_pk_bf16_f32 %s, %s, %s" % (v(b + 8 * jj + m), v(b + 8 * jj + 2 * m), v(b + 8 * jj + 2 * m + 1)))
        A.wait_vm(vt[k])
        for jj in range(2):
            mf32(A, OA_, a(VV + 8 * k + 4 * jj, 4), v(b + 8 * jj, 4), "0" if first else v(OA_, 16))
            first = False
    I("v_rcp_f32 v34, %s" % v(OA_ + 10))
    for i in range(10): I("v_mul_f32 %s, %s, v34" % (v(OA_ + i), v(OA_ + i)))
    for m in range(4): I("v_cvt_pk_bf16_f32 %s, %s, %s" % (v(36 + m), v(OA_ + 2 * m), v(OA_ + 2 * m + 1)))
    I("v_cvt_pk_bf16_f32 v35, %s, %s" % (v(OA_ + 8), v(OA_ + 9)))
    I("buffer_store_dwordx4 v[36:39], v22, s[4:7], %s offen sc1" % s(sO))
    I("buffer_store_dword v35, v27, s[4:7], %s offen sc1" % s(sO))
    I("s_waitcnt vmcnt(0)")
    signal(A, sFS, 16)
    tl_mark(A)
    I("s_add_u32 %s, %s, %d" % (s(sTK), s(sTK), NW))
    I("s_cmp_lt_u32 %s, 2048" % s(sTK))
    I("s_cbranch_scc1 L_aa_top")
    I("s_branch L_END")
    A.label(Lfix)
    for k in range(8):
        Ls = A.newlabel("L_aa_fs")
        I("s_add_u32 s3, %s, %d" % (s(sSeg), k))
        I("s_cmp_ge_u32 s3, 8")
        I("s_cbranch_scc1 %s" % Ls)
        for i in range(16): I("v_mov_b32 %s, %s" % (v(S0 + 16 * k + i), v(NEG)))
        A.label(Ls)
    I("s_branch %s" % Lback)
```

```python
from g_common import *

WO = 0; STG = 147456; QX = 156672; KXM = 158720; KXL = 160768
IDX, L16S, XW, TR, KOFF, VOFF, OW, RSO, PUB, MKO = range(10)
KX = 10
VX = 30
T0 = 38
sL, sHEAD, sSTEP = 22, 23, 28
sAG, sAG2, sAG8 = 29, 30, 31
sKV, sKV2 = 32, 33
sMKV = 34
sFKV = 35
sFKVN = 36
sFMKV = 37
sRDY = 38
sRW = 39
sRR = 40
sPUB = 44
sPI = 45
sRSO = 46
sW1024 = 47
sDMAO = 48
sC, sNC = 49, 50
sMLO = 52
sSEL = 54
sODD = 62
sONE_LO, sONE_HI = 64, 65
sPF = 66
sCNT = 67
sG0 = 68
sNG = 69
sPLO, sPHI = 70, 71
sRB = 72
sTMP = 73
sT2 = 74
sPROF = 75
sMODE = 76
sRWH = 77
OOB = 0x7FFF0000

def wreg(f):
    return a(8 * f, 8) if f < 32 else v(80 + 8 * (f - 32), 8)
def wreg1(f, j):
    return (("a", 8 * f + j) if f < 32 else ("v", 80 + 8 * (f - 32) + j))
def widx(mat, tile, T): return (mat * 2 + tile) * 9 + T

def setup(A, opt):
    I = A.I
    I("s_and_b32 %s, s2, 1" % s(sL))
    I("s_mov_b32 %s, %s" % (s(sHEAD), s(S_IDX)))
    I("v_and_b32 v40, 63, v0")
    if opt.get("zero_flags", True) or opt.get("fill", False):
        for i in range(4): I("v_mov_b32 %s, -1" % v(44 + i))
        I("v_lshlrev_b32 v41, 4, v0")
        I("s_mul_i32 s3, %s, %d" % (s(sL), R_L))
        I("s_mul_i32 %s, %s, %d" % (s(sTMP), s(sHEAD), R_H))
        I("s_add_u32 s3, s3, %s" % s(sTMP))
        I("s_add_u32 s3, s3, %d" % W_R)
        for b in range(2):
            for k in range(2):
                I("s_add_u32 %s, s3, %d" % (s(sTMP), b * R_B + k * 4096))
                I("buffer_store_dwordx4 v[44:47], v41, s[4:7], %s offen sc1" % s(sTMP))
            I("s_add_u32 %s, s3, %d" % (s(sTMP), b * R_B + 8192))
            I("v_cmp_gt_u32 vcc, 64, v0")
            I("s_and_saveexec_b64 s[90:91], vcc")
            I("buffer_store_dwordx4 v[44:47], v41, s[4:7], %s offen sc1" % s(sTMP))
            I("s_mov_b64 exec, s[90:91]")
        I("s_mul_i32 s3, %s, %d" % (s(sL), M_L))
        I("s_mul_i32 %s, %s, %d" % (s(sTMP), s(sHEAD), 18432))
        I("s_add_u32 s3, s3, %s" % s(sTMP))
        I("s_add_u32 s3, s3, %d" % W_M)
        for k in range(4):
            I("s_add_u32 %s, s3, %d" % (s(sTMP), k * 4096))
            I("buffer_store_dwordx4 v[44:47], v41, s[4:7], %s offen sc1" % s(sTMP))
        I("s_add_u32 %s, s3, %d" % (s(sTMP), 4 * 4096))
        I("v_cmp_gt_u32 vcc, 128, v0")
        I("s_and_saveexec_b64 s[90:91], vcc")
        I("buffer_store_dwordx4 v[44:47], v41, s[4:7], %s offen sc1" % s(sTMP))
        I("s_mov_b64 exec, s[90:91]")
    I("s_getreg_b32 s3, hwreg(HW_REG_XCC_ID)")
    I("s_and_b32 s3, s3, 15")
    I("s_lshl_b32 s3, 1, s3")
    I("v_mov_b32 v42, s3")
    I("s_lshl_b32 %s, %s, 2" % (s(sTMP), s(sL)))
    I("s_add_u32 %s, %s, 4" % (s(sTMP), s(sTMP)))
    I("s_mov_b64 exec, 1")
    I("buffer_atomic_or v42, off, s[16:19], %s sc1" % s(sTMP))
    I("s_mov_b64 exec, -1")
    arrive(A)

def lane_consts(A):
    I = A.I
    l = 40
    I("v_and_b32 v40, 63, v0")
    t1, t2, t3 = 41, 42, 43
    I("s_lshl_b32 %s, %s, 10" % (s(sW1024), s(S_WAVE)))
    I("s_lshr_b32 s3, %s, 1" % s(S_WAVE))
    I("s_and_b32 %s, %s, 1" % (s(sTMP), s(S_WAVE)))
    I("v_lshlrev_b32 %s, 4, v40" % v(t1))
    I("v_add_u32 %s, %d, %s" % (v(L16S), STG, v(t1)))
    I("s_lshl_b32 %s, s3, 10" % s(sT2))
    I("s_lshl_b32 s90, %s, 8" % s(sTMP))
    I("s_add_u32 %s, %s, s90" % (s(sT2), s(sT2)))
    I("s_add_u32 %s, %s, %d" % (s(sT2), s(sT2), QX))
    I("v_lshrrev_b32 %s, 5, v40" % v(t1))
    I("v_lshlrev_b32 %s, 9, %s" % (v(t1), v(t1)))
    I("v_and_b32 %s, 15, v40" % v(t2))
    I("v_lshl_add_u32 %s, %s, 4, %s" % (v(t1), v(t2), v(t1)))
    I("v_bfe_u32 %s, v40, 4, 1" % v(t2))
    I("v_lshl_add_u32 %s, %s, 3, %s" % (v(t1), v(t2), v(t1)))
    I("v_add_u32 %s, %s, %s" % (v(XW), s(sT2), v(t1)))
    I("v_lshrrev_b32 %s, 5, v40" % v(t1))
    I("v_lshlrev_b32 %s, 8, %s" % (v(t1), v(t1)))
    I("v_bfe_u32 %s, v40, 4, 1" % v(t2))
    I("v_lshl_add_u32 %s, %s, 6, %s" % (v(t1), v(t2), v(t1)))
    I("v_bfe_u32 %s, v40, 2, 2" % v(t2))
    I("v_lshl_add_u32 %s, %s, 4, %s" % (v(t1), v(t2), v(t1)))
    I("v_and_b32 %s, 1, v40" % v(t2))
    I("v_lshl_add_u32 %s, %s, 3, %s" % (v(t1), v(t2), v(t1)))
    I("v_add_u32 %s, %d, %s" % (v(TR), QX, v(t1)))
    I("v_lshrrev_b32 %s, 5, v40" % v(t1))
    I("v_lshlrev_b32 %s, 10, %s" % (v(t1), v(t1)))
    I("v_bfe_u32 %s, v40, 4, 1" % v(t2))
    I("v_lshl_add_u32 %s, %s, 9, %s" % (v(t1), v(t2), v(t1)))
    I("v_bfe_u32 %s, v40, 3, 1" % v(t2))
    I("v_lshl_add_u32 %s, %s, 8, %s" % (v(t1), v(t2), v(t1)))
    I("v_and_b32 %s, 7, v40" % v(t2))
    I("v_lshl_add_u32 %s, %s, 4, %s" % (v(KOFF), v(t2), v(t1)))
    I("s_lshl_b32 %s, s3, 12" % s(sT2))
    I("s_lshl_b32 s90, %s, 8" % s(sTMP))
    I("s_add_u32 %s, %s, s90" % (s(sT2), s(sT2)))
    I("s_add_u32 %s, %s, 8192" % (s(sT2), s(sT2)))
    I("v_lshrrev_b32 %s, 5, v40" % v(t1))
    I("v_lshlrev_b32 %s, 10, %s" % (v(t1), v(t1)))
    I("v_bfe_u32 %s, v40, 4, 1" % v(t2))
    I("v_lshl_add_u32 %s, %s, 9, %s" % (v(t1), v(t2), v(t1)))
    I("v_and_b32 %s, 15, v40" % v(t2))
    I("v_lshl_add_u32 %s, %s, 4, %s" % (v(t1), v(t2), v(t1)))
    I("v_add_u32 %s, %s, %s" % (v(VOFF), s(sT2), v(t1)))
    I("s_lshl_b32 %s, s3, 10" % s(sT2))
    I("s_lshl_b32 s90, %s, 7" % s(sTMP))
    I("s_add_u32 %s, %s, s90" % (s(sT2), s(sT2)))
    I("s_add_u32 %s, %s, %d" % (s(sT2), s(sT2), STG))
    I("v_lshrrev_b32 %s, 4, v40" % v(t1))
    I("v_lshlrev_b32 %s, 8, %s" % (v(t1), v(t1)))
    I("v_and_b32 %s, 7, v40" % v(t2))
    I("v_lshl_add_u32 %s, %s, 4, %s" % (v(t1), v(t2), v(t1)))
    I("v_add_u32 %s, %s, %s" % (v(OW), s(sT2), v(t1)))
    I("v_lshrrev_b32 %s, 3, v40" % v(t1))
    I("v_mul_u32_u24 %s, 9216, %s" % (v(t1), v(t1)))
    I("v_and_b32 %s, 4, v40" % v(t2))
    I("v_lshl_add_u32 %s, %s, 6, %s" % (v(t1), v(t2), v(t1)))
    I("v_and_b32 %s, 3, v40" % v(t2))
    I("v_lshl_add_u32 %s, %s, 4, %s" % (v(RSO), v(t2), v(t1)))
    I("v_and_b32 %s, 4, v40" % v(t1))
    I("v_bfe_u32 %s, v40, 4, 1" % v(t2))
    I("v_lshl_add_u32 %s, %s, 1, %s" % (v(t1), v(t2), v(t1)))
    I("v_bfe_u32 %s, v40, 3, 1" % v(t2))
    I("v_add_u32 %s, %s, %s" % (v(t1), v(t2), v(t1)))
    I("v_lshlrev_b32 %s, 4, %s" % (v(t1), v(t1)))
    I("v_and_b32 %s, 3, v40" % v(t2))
    I("v_lshl_add_u32 %s, %s, 2, %s" % (v(PUB), v(t2), v(t1)))

def load_weights(A):
    I = A.I
    I("v_lshrrev_b32 v41, 4, v40")
    I("v_lshlrev_b32 v41, 15, v41")
    I("v_and_b32 v42, 15, v40")
    I("v_lshl_add_u32 v41, v42, 3, v41")
    I("s_and_b32 s3, %s, 1" % s(S_WAVE))
    I("s_lshl_b32 s3, s3, 7")
    I("s_lshr_b32 %s, %s, 1" % (s(sTMP), s(S_WAVE)))
    I("s_lshl_b32 %s, %s, 2" % (s(sTMP), s(sTMP)))
    I("s_add_u32 s3, s3, %s" % s(sTMP))
    I("s_lshl_b32 %s, %s, 8" % (s(sTMP), s(sHEAD)))
    I("s_add_u32 s3, s3, %s" % s(sTMP))
    I("v_add_u32 v41, s3, v41")
    I("v_add_u32 v42, 8192, v41")
    I("v_add_u32 v43, 8192, v42")
    I("v_add_u32 v44, 8192, v43")
    I("s_mov_b32 %s, 0x05040100" % s(sPLO))
    I("s_mov_b32 %s, 0x07060302" % s(sPHI))
    WB = 576 * 8192
    jobs = [(mat, T) for mat in range(3) for T in range(9)]
    bufs = [46, 62]
    def issue(job, buf):
        mat, T = job
        if T == 0:
            load_srd(A, S_W1, 40 + 8 * mat, WB)
        toks = []
        for bi, blk in enumerate((0, 32, 16, 48)):
            I("s_mov_b32 %s, %d" % (s(sTMP), (64 * T + blk) * 8192))
            for j in range(4):
                tok = I("buffer_load_dword %s, %s, s[8:11], %s offen" % (v(buf + bi * 4 + j), v(41 + j), s(sTMP)))
        return tok
    def finish(job, buf, tok):
        mat, T = job
        A.wait_vm(tok)
        for hi in range(2):
            for m in range(4):
                bi = 2 * hi + (m & 1); j = 2 * (m >> 1)
                lo_row, hi_row = buf + bi * 4 + j, buf + bi * 4 + j + 1
                for tile in range(2):
                    kind, r = wreg1(widx(mat, tile, T), 4 * hi + m)
                    sel = s(sPLO) if tile == 0 else s(sPHI)
                    if kind == "v":
                        I("v_perm_b32 %s, %s, %s, %s" % (v(r), v(hi_row), v(lo_row), sel))
                    else:
                        I("v_perm_b32 v78, %s, %s, %s" % (v(hi_row), v(lo_row), sel))
                        I("v_accvgpr_write_b32 %s, v78" % a(r))
    tok = issue(jobs[0], bufs[0])
    for i, job in enumerate(jobs):
        nt = None
        if i + 1 < len(jobs):
            if jobs[i + 1][1] == 0: A.wait_vm()
            nt = issue(jobs[i + 1], bufs[(i + 1) & 1])
        if jobs[i + 1:i + 2] and jobs[i + 1][1] == 0:
            finish(job, bufs[i & 1], ("vm", A.vm_issued - 16))
        else:
            finish(job, bufs[i & 1], tok)
        tok = nt
    load_srd(A, S_W1, 64, 32 * 128 * 1152)
    I("v_lshrrev_b32 v41, 4, v40")
    I("v_mul_u32_u24 v41, 9216, v41")
    I("v_and_b32 v42, 15, v40")
    I("v_lshl_add_u32 v41, v42, 2, v41")
    I("v_add_u32 v42, 1152, v41")
    I("v_add_u32 v43, 4608, v41")
    I("v_add_u32 v44, 5760, v41")
    I("v_lshlrev_b32 v45, 4, v40")
    it = 90
    I("s_mov_b32 %s, %s" % (s(it), s(S_WAVE)))
    L = A.newlabel("L_wo")
    A.label(L)
    I("s_lshr_b32 s91, %s, 2" % s(it))
    I("s_bfe_u32 s92, %s, 0x10001" % s(it))
    I("s_and_b32 s93, %s, 1" % s(it))
    I("s_mul_i32 s3, %s, 147456" % s(sHEAD))
    I("s_lshl_b32 s94, s91, 7"); I("s_add_u32 s3, s3, s94")
    I("s_lshl_b32 s94, s92, 6"); I("s_add_u32 s3, s3, s94")
    I("s_mul_i32 s94, s93, 2304"); I("s_add_u32 s3, s3, s94")
    buf = 46
    for hi in range(2):
        for m1 in range(2):
            I("s_add_u32 s94, s3, %d" % ((64 * m1 + 32 * hi) * 1152))
            for j in range(4):
                I("buffer_load_dword %s, %s, s[8:11], s94 offen" % (v(buf + (hi * 2 + m1) * 4 + j), v(41 + j)))
    I("s_lshl_b32 s94, s91, 14")
    I("s_lshl_b32 s95, s92, 12"); I("s_add_u32 s94, s94, s95")
    I("s_lshl_b32 s95, s93, 11"); I("s_add_u32 s94, s94, s95")
    I("v_add_u32 v62, s94, v45")
    A.wait_vm()
    for par in range(2):
        sel = s(sPLO) if par == 0 else s(sPHI)
        for hi in range(2):
            dst = 64 + (par * 2 + hi) * 4
            for m in range(4):
                base = buf + (hi * 2 + (m & 1)) * 4 + 2 * (m >> 1)
                I("v_perm_b32 %s, %s, %s, %s" % (v(dst + m), v(base + 1), v(base), sel))
            I("ds_write_b128 v62, %s offset:%d" % (v(dst, 4), par * 8192 + hi * 1024))
    I("s_add_u32 %s, %s, 4" % (s(it), s(it)))
    I("s_cmp_lt_u32 %s, 36" % s(it))
    I("s_cbranch_scc1 %s" % L)
    I("s_waitcnt lgkmcnt(0)")

def scalars(A):
    I = A.I
    I("s_mov_b32 %s, 0" % s(sSTEP))
    I("s_mul_i32 s3, %s, %d" % (s(sL), M_L))
    I("s_add_u32 s3, s3, %d" % (W_M - STG))
    I("s_add_u32 %s, s3, %s" % (s(sAG), s(sW1024)))
    I("s_add_u32 %s, %s, 4096" % (s(sAG2), s(sAG)))
    I("s_add_u32 %s, s3, 8192" % s(sAG8))
    I("s_lshl_b32 s3, %s, 11" % s(sL))
    I("s_add_u32 s3, s3, %s" % s(sHEAD))
    I("s_lshl_b32 %s, s3, 14" % s(sKV)); I("s_add_u32 %s, %s, %d" % (s(sKV), s(sKV), W_KV))
    I("s_lshl_b32 %s, s3, 12" % s(sMKV)); I("s_add_u32 %s, %s, %d" % (s(sMKV), s(sMKV), W_MKV))
    I("s_lshl_b32 %s, s3, 6" % s(sFKV))
    I("s_add_u32 %s, %s, %d" % (s(sFMKV), s(sFKV), F_MKV * FSTR))
    I("s_add_u32 %s, %s, %d" % (s(sFKV), s(sFKV), F_KV * FSTR))
    I("s_add_u32 %s, %s, %d" % (s(sFKVN), s(sFKV), 32 * FSTR))
    I("s_mov_b32 %s, 0" % s(sRDY))
    I("s_lshl_b32 s3, %s, 1" % s(S_WAVE))
    I("s_add_u32 s3, s3, 1")
    I("s_cmp_eq_u32 %s, 0" % s(S_WAVE))
    I("s_cselect_b32 s3, 0, s3")
    I("s_lshl_b32 %s, s3, 14" % s(sG0))
    I("s_lshl_b32 s3, s3, 10")
    I("s_mul_i32 %s, %s, %d" % (s(sRWH), s(sHEAD), R_H))
    I("s_add_u32 %s, %s, s3" % (s(sRWH), s(sRWH)))
    I("s_sub_u32 s3, %s, 1" % s(S_WAVE))
    I("s_lshl_b32 s3, s3, 5")
    I("s_add_u32 %s, s3, %s" % (s(sPI), s(sHEAD)))
    I("s_cmp_eq_u32 %s, 0" % s(S_WAVE))
    I("s_cselect_b32 %s, 1000, %s" % (s(sPI), s(sPI)))
    I("s_lshr_b32 s3, %s, 3" % s(sPI)); I("s_lshl_b32 %s, s3, 10" % s(sRSO))
    I("s_and_b32 s3, %s, 1" % s(sPI)); I("s_lshl_b32 s3, s3, 9"); I("s_add_u32 %s, %s, s3" % (s(sRSO), s(sRSO)))
    I("s_bfe_u32 s3, %s, 0x20001" % s(sPI)); I("s_lshl_b32 s3, s3, 6"); I("s_add_u32 %s, %s, s3" % (s(sRSO), s(sRSO)))
    I("s_mul_i32 s3, %s, %d" % (s(sL), M_L))
    I("s_add_u32 s3, s3, %d" % (W_M + M_S))
    I("s_lshl_b32 %s, %s, 7" % (s(sPUB), s(sPI)))
    I("s_add_u32 %s, %s, s3" % (s(sPUB), s(sPUB)))
    I("s_lshl_b32 s3, %s, 7" % s(S_WAVE))
    I("s_cmp_eq_u32 %s, 2" % s(S_WAVE))
    I("s_cselect_b32 %s, 2048, s3" % s(sDMAO))
    c = 128 ** -0.5 * 1.4426950408889634
    import struct
    fb = lambda x: struct.unpack("<I", struct.pack("<f", x))[0]
    I("s_mov_b32 %s, 0x%x" % (s(sC), fb(c)))
    I("s_mov_b32 %s, 0x%x" % (s(sNC), fb(-c)))
    I("s_mov_b32 %s, -1" % s(sMLO)); I("s_mov_b32 %s, 0" % s(sMLO + 1))
    for j in range(4):
        m = (3 << (2 * j)) * 0x01010101
        I("s_mov_b32 %s, 0x%x" % (s(sSEL + 2 * j), m)); I("s_mov_b32 %s, 0x%x" % (s(sSEL + 2 * j + 1), m))
    I("s_mov_b32 %s, 0xaaaaaaaa" % s(sODD)); I("s_mov_b32 %s, 0xaaaaaaaa" % s(sODD + 1))
    I("s_mov_b32 %s, 0x3f80" % s(sONE_LO)); I("s_mov_b32 %s, 0x3f800000" % s(sONE_HI))

PB_ = 78
def step_loop(A, opt, sc1):
    I = A.I
    prof = opt.get("prof")
    def ts(k):
        if prof:
            I("s_memtime s[78:79]")
            I("s_waitcnt lgkmcnt(0)")
            I("s_mov_b32 %s, s78" % s(80 + k))
    def ts_store():
        if prof:
            Lp = A.newlabel("L_prof")
            I("s_cmp_lg_u32 %s, %d" % (s(sHEAD), opt.get("prof_head", 0)))
            I("s_cbranch_scc1 %s" % Lp)
            I("s_lshl_b32 s3, %s, 6" % s(sL))
            I("s_add_u32 s3, s3, %s" % s(sSTEP))
            I("s_lshl_b32 s3, s3, 2")
            I("s_add_u32 s3, s3, %s" % s(S_WAVE))
            I("s_lshl_b32 s3, s3, 6")
            I("s_add_u32 s3, s3, 0xF000000")
            for k in range(10):
                I("v_mov_b32 v44, %s" % s(80 + k))
                I("buffer_store_dword v44, off, s[4:7], s3 offset:%d" % (4 * k))
            A.label(Lp)
    ST = " sc1" if sc1 else ""
    tag = "s" if sc1 else "p"
    LTOP = "L_ch_top_" + tag; LSTG = "L_ch_stg_" + tag; LEND = "L_ch_end_" + tag
    load_srd(A, S_W2, 32, 9216)
    I("v_subrev_u32 v60, %d, %s" % (STG, v(L16S)))
    I("v_lshrrev_b32 v61, 4, v60")
    I("v_and_b32 v62, 7, v61")
    I("v_mul_u32_u24 v62, 1152, v62")
    I("v_lshrrev_b32 v63, 4, v61")
    I("v_lshl_add_u32 v62, v63, 4, v62")
    I("v_bfe_u32 v63, v61, 3, 1")
    I("v_lshl_add_u32 v62, v63, 6, v62")
    I("s_lshl_b32 s3, %s, 7" % s(S_WAVE))
    I("buffer_load_dwordx4 v[38:41], v62, s[12:15], s3 offen")
    I("buffer_load_dwordx4 v[42:45], v62, s[12:15], s3 offen offset:512")
    I("buffer_load_dwordx4 v[46:49], v62, s[12:15], 0 offen offset:1024")
    I("buffer_load_dword v50, off, s[4:7], %s sc1" % s(sFKVN))
    I("s_waitcnt vmcnt(0)")
    I("s_branch %s" % LSTG)
    A.label(LTOP)
    I("s_mov_b32 %s, 0" % s(sCNT))
    LP = A.newlabel("L_ag")
    A.label(LP)
    I("buffer_load_dwordx4 v[38:41], %s, s[4:7], %s offen sc1" % (v(L16S), s(sAG)))
    I("buffer_load_dwordx4 v[42:45], %s, s[4:7], %s offen sc1" % (v(L16S), s(sAG2)))
    I("buffer_load_dwordx4 v[46:49], %s, s[4:7], %s offen sc1" % (v(L16S), s(sAG8)))
    I("buffer_load_dword v50, off, s[4:7], %s sc1" % s(sFKVN))
    I("s_add_u32 %s, %s, 1" % (s(sCNT), s(sCNT)))
    I("s_cmp_gt_u32 %s, %d" % (s(sCNT), SPIN_MAX))
    I("s_cbranch_scc1 L_FAIL")
    I("s_waitcnt vmcnt(0)")
    I("v_max3_u32 v51, v38, v39, v40")
    I("v_max3_u32 v52, v41, v42, v43")
    I("v_max3_u32 v53, v44, v45, v46")
    I("v_max3_u32 v54, v47, v48, v49")
    I("v_max3_u32 v51, v51, v52, v53")
    I("v_max_u32 v51, v51, v54")
    I("v_cmp_eq_u32 vcc, -1, v51")
    I("s_cbranch_vccnz %s" % LP)
    A.label(LSTG)
    I("v_add_u32 v52, %s, %s" % (s(sW1024), v(L16S)))
    I("ds_write_b128 v52, v[38:41]")
    I("ds_write_b128 v52, v[42:45] offset:4096")
    I("ds_write_b128 %s, v[46:49] offset:8192" % v(L16S))
    I("v_readfirstlane_b32 %s, v50" % s(sTMP))
    ts(0)
    Lr = A.newlabel("L_rdy")
    I("s_cmp_lg_u32 %s, 0" % s(sRDY))
    I("s_cbranch_scc1 %s" % Lr)
    spin_flag(A, sFKV, 2, vtmp=51)
    A.label(Lr)
    I("s_cmp_ge_u32 %s, 2" % s(sTMP))
    I("s_cselect_b32 %s, 1, 0" % s(sRDY))
    I("s_add_u32 %s, %s, 0x80000" % (s(sPF), s(sKV)))
    I("s_cmp_ge_u32 %s, 2" % s(sTMP))
    I("s_cselect_b32 %s, %s, 0x%x" % (s(sPF), s(sPF), OOB))
    I("s_add_u32 %s, %s, 4096" % (s(sKV2), s(sKV)))
    I("s_waitcnt lgkmcnt(0)")
    I("s_barrier")
    ts(1)
    Ld = A.newlabel("L_nodma")
    I("s_cmp_eq_u32 %s, 3" % s(S_WAVE))
    I("s_cbranch_scc1 %s" % Ld)
    I("s_add_u32 m0, %s, %d" % (s(sW1024), KXL))
    I("s_add_u32 s3, %s, %s" % (s(sKV), s(sDMAO)))
    I("buffer_load_dwordx4 %s, s[4:7], s3 offen sc1 lds" % v(KOFF))
    A.label(Ld)
    dma_mark = ("vm", A.vm_issued)
    AB = [38, 42, 46]
    at = {}
    def aread(T, buf):
        return I("ds_read_b128 %s, %s offset:%d" % (v(buf, 4), v(L16S), T * 1024))
    for T in range(3): at[T] = aread(T, AB[T])
    kt = {}
    kt["3A"] = I("buffer_load_dwordx4 %s, %s, s[4:7], %s offen offset:2048 sc1" % (v(KX + 12, 4), v(KOFF), s(sKV2)))
    kt["3B"] = I("buffer_load_dwordx4 %s, %s, s[4:7], %s offen offset:2176 sc1" % (v(KX + 16, 4), v(KOFF), s(sKV2)))
    kt["2A"] = I("buffer_load_dwordx4 %s, %s, s[4:7], %s offen sc1" % (v(KX + 4, 4), v(KOFF), s(sKV2)))
    kt["2B"] = I("buffer_load_dwordx4 %s, %s, s[4:7], %s offen offset:128 sc1" % (v(KX + 8, 4), v(KOFF), s(sKV2)))
    kt["1B"] = I("buffer_load_dwordx4 %s, %s, s[4:7], %s offen offset:2176 sc1" % (v(KX, 4), v(KOFF), s(sKV)))
    vtok = I("buffer_load_dwordx4 %s, %s, s[4:7], %s offen sc1" % (v(VX, 4), v(VOFF), s(sKV)))
    vtok = I("buffer_load_dwordx4 %s, %s, s[4:7], %s offen offset:2048 sc1" % (v(VX + 4, 4), v(VOFF), s(sKV)))
    QA_, QB_, KA_, KB_ = 50, 54, 58, 62
    for r in range(50, 66): I("v_mov_b32 %s, 0" % v(r))
    I("v_subrev_u32 v78, %d, %s" % (STG, v(L16S)))
    I("v_lshlrev_b32 v78, 2, v78")
    I("v_lshl_add_u32 v78, %s, 2, v78" % s(sW1024))
    I("buffer_load_dword v9, v78, s[4:7], %s offen sc1" % s(sPF))
    I("v_subrev_u32 v79, %d, %s" % (STG, v(L16S)))
    I("v_and_b32 v78, 0x70, v79")
    I("v_lshrrev_b32 v79, 8, v79")
    I("v_lshl_add_u32 v78, v79, 7, v78")
    I("v_lshl_add_u32 v78, %s, 9, v78" % s(S_WAVE))
    for T in range(9):
        A.wait_lgkm(at[T])
        buf = AB[T % 3]
        for acc, f in ((QA_, widx(0, 0, T)), (QB_, widx(0, 1, T)), (KA_, widx(1, 0, T)), (KB_, widx(1, 1, T))):
            I("v_smfmac_f32_16x16x64_bf16 %s, %s, %s, %s" % (v(acc, 4), v(buf, 4), wreg(f), v(IDX)))
        nT = T + 3
        at[nT] = aread(nT % 9, buf)
        if T == 5:
            for r in range(66, 74): I("v_mov_b32 %s, 0" % v(r))
    ts(2)
    VA_, VB_ = 66, 70
    def vstep(T):
        A.wait_lgkm(at[9 + T])
        buf = AB[T % 3]
        I("v_smfmac_f32_16x16x64_bf16 %s, %s, %s, %s" % (v(VA_, 4), v(buf, 4), wreg(widx(2, 0, T)), v(IDX)))
        I("v_smfmac_f32_16x16x64_bf16 %s, %s, %s, %s" % (v(VB_, 4), v(buf, 4), wreg(widx(2, 1, T)), v(IDX)))
        if T + 3 < 9: at[9 + T + 3] = aread(T + 3, buf)
    vstep(0)
    vstep(1)
    for r in range(4): I("v_permlane32_swap_b32 %s, %s" % (v(QA_ + r), v(QB_ + r)))
    vstep(2)
    for r in range(4): I("v_add_f32 %s, %s, %s" % (v(QA_ + r), v(QA_ + r), v(QB_ + r)))
    I("v_cvt_pk_bf16_f32 v74, %s, %s" % (v(QA_), v(QA_ + 1)))
    I("v_cvt_pk_bf16_f32 v75, %s, %s" % (v(QA_ + 2), v(QA_ + 3)))
    for r in range(4): I("v_permlane32_swap_b32 %s, %s" % (v(KA_ + r), v(KB_ + r)))
    vstep(3)
    I("ds_write_b64 %s, v[74:75]" % v(XW))
    for r in range(4): I("v_add_f32 %s, %s, %s" % (v(KA_ + r), v(KA_ + r), v(KB_ + r)))
    I("v_cvt_pk_bf16_f32 v76, %s, %s" % (v(KA_), v(KA_ + 1)))
    I("v_cvt_pk_bf16_f32 v77, %s, %s" % (v(KA_ + 2), v(KA_ + 3)))
    vstep(4)
    I("ds_write_b64 %s, v[76:77] offset:2048" % v(XW))
    vstep(5)
    vstep(6)
    A.I("s_waitcnt vmcnt(%d) lgkmcnt(0)" % (A.vm_issued - dma_mark[1]))
    I("s_barrier")
    ts(3)
    def trq(Tp, dst):
        I("ds_read_b64_tr_b16 %s, %s offset:%d" % (v(dst, 2), v(TR), Tp * 512))
        return I("ds_read_b64_tr_b16 %s, %s offset:%d" % (v(dst + 2, 2), v(TR), Tp * 512 + 128))
    def trk(Tp, dst):
        I("ds_read_b64_tr_b16 %s, %s offset:%d" % (v(dst, 2), v(TR), 2048 + Tp * 512))
        return I("ds_read_b64_tr_b16 %s, %s offset:%d" % (v(dst + 2, 2), v(TR), 2048 + Tp * 512 + 128))
    tq3 = trq(3, 50); tk3 = trk(3, 54)
    at[9 + 7] = at[9 + 8] = None
    tq2 = trq(2, 58); tk2 = trk(2, 62)
    tq1 = trq(1, 74)
    for T in (7, 8):
        buf = AB[T % 3]
        I("v_smfmac_f32_16x16x64_bf16 %s, %s, %s, %s" % (v(VA_, 4), v(buf, 4), wreg(widx(2, 0, T)), v(IDX)))
        I("v_smfmac_f32_16x16x64_bf16 %s, %s, %s, %s" % (v(VB_, 4), v(buf, 4), wreg(widx(2, 1, T)), v(IDX)))
    S0, SA, SB = 38, 42, 46
    def mf(d, x, y, c): I("v_mfma_f32_16x16x32_bf16 %s, %s, %s, %s" % (v(d, 4), v(x, 4), v(y, 4), c))
    A.wait_lgkm(tq3); A.wait_vm(kt["3B"])
    mf(SA, KX + 12, 50, "0"); mf(SB, KX + 16, 50, "0")
    A.wait_lgkm(tk3)
    mf(S0, 54, 50, "0")
    tk1 = trk(1, 54)
    t1A = I("ds_read_b128 %s, %s offset:%d" % (v(KX + 12, 4), v(L16S), KXL - STG + 2 * 1024))
    tq0 = trq(0, 50)
    t0A = I("ds_read_b128 %s, %s offset:%d" % (v(KX + 16, 4), v(L16S), KXL - STG + 0 * 1024))
    A.wait_lgkm(tq2); A.wait_vm(kt["2B"])
    mf(SA, KX + 4, 58, v(SA, 4)); mf(SB, KX + 8, 58, v(SB, 4))
    A.wait_lgkm(tk2)
    mf(S0, 62, 58, v(S0, 4))
    tk0 = trk(0, 58)
    t0B = I("ds_read_b128 %s, %s offset:%d" % (v(KX + 4, 4), v(L16S), KXL - STG + 1 * 1024))
    for r in range(4): I("v_permlane32_swap_b32 %s, %s" % (v(VA_ + r), v(VB_ + r)))
    A.wait_vm(kt["1B"]); A.wait_lgkm(tq1)
    mf(SB, KX, 74, v(SB, 4))
    A.wait_lgkm(t1A)
    mf(SA, KX + 12, 74, v(SA, 4))
    A.wait_lgkm(tk1)
    mf(S0, 54, 74, v(S0, 4))
    for r in range(4): I("v_add_f32 %s, %s, %s" % (v(VA_ + r), v(VA_ + r), v(VB_ + r)))
    A.wait_lgkm(t0A)
    mf(SA, KX + 16, 50, v(SA, 4))
    A.wait_lgkm(tk0)
    mf(S0, 58, 50, v(S0, 4))
    A.wait_lgkm(t0B)
    mf(SB, KX + 4, 50, v(SB, 4))
    I("v_cvt_pk_bf16_f32 v70, %s, %s" % (v(VA_), v(VA_ + 1)))
    I("v_cvt_pk_bf16_f32 v71, %s, %s" % (v(VA_ + 2), v(VA_ + 3)))
    I("v_mov_b32 v72, 0"); I("v_mov_b32 v73, 0")
    I("s_add_u32 s3, %s, %d" % (s(sMKV), 2048 - QX))
    I("buffer_store_dwordx2 v[70:71], %s, s[4:7], s3 offen sc1" % v(XW))
    I("s_lshl_b32 s3, %s, 9" % s(S_WAVE))
    I("v_add_u32 v62, s3, %s" % v(TR))
    I("ds_read_b64_tr_b16 v[74:75], v62 offset:2048")
    tmk = I("ds_read_b64_tr_b16 v[76:77], v62 offset:2176")
    ts(4)
    I("v_max3_f32 v50, v38, v39, v40")
    I("v_max3_f32 v51, v41, v42, v43")
    I("v_max3_f32 v52, v44, v45, v46")
    I("v_max3_f32 v53, v47, v48, v49")
    I("v_max3_f32 v50, v50, v51, v52")
    I("v_max_f32 v50, v50, v53")
    I("v_mov_b32 v51, v50")
    I("v_permlane16_swap_b32 v50, v51")
    I("v_max_f32 v50, v50, v51")
    I("v_mov_b32 v51, v50")
    I("v_permlane32_swap_b32 v50, v51")
    I("v_max_f32 v50, v50, v51")
    I("v_mul_f32 v50, %s, v50" % s(sNC))
    for r in range(38, 50): I("v_fma_f32 %s, %s, %s, v50" % (v(r), v(r), s(sC)))
    A.wait_lgkm(tmk)
    I("buffer_store_dwordx4 v[74:77], v78, s[4:7], %s offen sc1" % (s(sMKV)))
    for r in range(42, 50): I("v_exp_f32 %s, %s" % (v(r), v(r)))
    for i in range(4): I("v_cvt_pk_bf16_f32 %s, %s, %s" % (v(52 + i), v(42 + 2 * i), v(43 + 2 * i)))
    for r in range(38, 42): I("v_exp_f32 %s, %s" % (v(r), v(r)))
    OA_, OB_ = 56, 60
    A.wait_vm(vtok)
    mf(OA_, VX, 52, "0"); mf(OB_, VX + 4, 52, "0")
    I("v_cvt_pk_bf16_f32 v50, v38, v39")
    I("v_cvt_pk_bf16_f32 v51, v40, v41")
    I("v_mov_b32 v66, 0"); I("v_mov_b32 v67, 0"); I("v_mov_b32 v12, 0"); I("v_mov_b32 v13, 0")
    I("v_cndmask_b32_e64 v64, 0, v50, %s" % s(sMLO, 2))
    I("v_cndmask_b32_e64 v65, 0, v51, %s" % s(sMLO, 2))
    I("v_cndmask_b32_e64 v10, v50, 0, %s" % s(sMLO, 2))
    I("v_cndmask_b32_e64 v11, v51, 0, %s" % s(sMLO, 2))
    mf(OA_, 70, 64, v(OA_, 4)); mf(OB_, 70, 10, v(OB_, 4))
    I("v_add_f32 v38, v38, v39"); I("v_add_f32 v40, v40, v41")
    I("v_add_f32 v42, v42, v43"); I("v_add_f32 v44, v44, v45")
    I("v_add_f32 v46, v46, v47"); I("v_add_f32 v48, v48, v49")
    I("v_add_f32 v38, v38, v40")
    I("v_add_f32 v42, v42, v44"); I("v_add_f32 v46, v46, v48")
    I("v_cndmask_b32_e64 v38, 0, v38, %s" % s(sMLO, 2))
    I("v_add_f32 v42, v42, v46")
    I("v_add_f32 v42, v42, v38")
    I("v_mov_b32 v43, v42")
    I("v_permlane16_swap_b32 v42, v43")
    I("v_add_f32 v42, v42, v43")
    I("v_mov_b32 v43, v42")
    I("v_permlane32_swap_b32 v42, v43")
    I("v_add_f32 v42, v42, v43")
    I("v_rcp_f32 v42, v42")
    I("s_cmp_eq_u32 %s, 63" % s(sSTEP))
    I("s_cbranch_scc1 %s" % LEND)
    for r in range(8): I("v_mul_f32 %s, %s, v42" % (v(OA_ + r), v(OA_ + r)))
    for r in range(4): I("v_cvt_pk_bf16_f32 %s, %s, %s" % (v(44 + r), v(OA_ + r), v(OB_ + r)))
    I("ds_write_b128 %s, v[44:47]" % v(OW))
    ts(5)
    BB = [10, 18, 26, 48, 72]
    OF = [34, 38]
    ACC = 56
    WA = 42
    I("v_subrev_u32 %s, %d, %s" % (v(WA), STG, v(L16S)))
    I("v_add_u32 %s, %s, %s" % (v(WA), s(sG0), v(WA)))
    seq = [(gi, x, T) for gi in range(3) for T in range(2) for x in range(4)]
    bt = {}
    def bread(k):
        gi, x, T = seq[k]
        b = BB[k % 5]
        off = gi * 16384 + x * 4096 + T * 2048
        I("ds_read_b128 %s, %s offset:%d" % (v(b, 4), v(WA), off))
        return I("ds_read_b128 %s, %s offset:%d" % (v(b + 4, 4), v(WA), off + 1024))
    A.wait_lgkm()
    for k in range(4): bt[k] = bread(k)
    I("s_barrier")
    of0 = I("ds_read_b128 %s, %s" % (v(OF[0], 4), v(L16S)))
    of1 = I("ds_read_b128 %s, %s offset:1024" % (v(OF[1], 4), v(L16S)))
    bt[4] = bread(4)
    I("s_mul_i32 s3, %s, %d" % (s(sL), R_L))
    I("s_and_b32 %s, %s, 1" % (s(sTMP), s(sSTEP)))
    I("s_mul_i32 %s, %s, %d" % (s(sTMP), s(sTMP), R_B))
    I("s_add_u32 %s, s3, %s" % (s(sRB), s(sTMP)))
    I("s_add_u32 %s, %s, %d" % (s(sRB), s(sRB), W_R))
    I("s_add_u32 %s, %s, %s" % (s(sRW), s(sRB), s(sRWH)))
    I("s_sub_u32 %s, %s, %d" % (s(sRW), s(sRW), STG))
    Lg3 = A.newlabel("L_g3skip")
    def gamma_block(gi, nxt):
        for r in range(16): I("v_mov_b32 %s, 0" % v(ACC + r))
        for kk in range(8):
            k = gi * 8 + kk
            _, x, T = seq[k]
            if kk == 0: A.wait_lgkm(of0)
            if kk == 4 and gi == 0: A.wait_lgkm(of1)
            A.wait_lgkm(bt[k])
            I("v_smfmac_f32_16x16x64_bf16 %s, %s, %s, %s" % (v(ACC + 4 * x, 4), v(OF[T], 4), v(BB[k % 5], 8), v(IDX)))
            if k + 5 < nxt: bt[k + 5] = bread(k + 5)
        for r in range(4): I("v_permlane32_swap_b32 %s, %s" % (v(ACC + r), v(ACC + 4 + r)))
        for r in range(4): I("v_permlane32_swap_b32 %s, %s" % (v(ACC + 8 + r), v(ACC + 12 + r)))
        for r in range(4): I("v_add_f32 %s, %s, %s" % (v(ACC + r), v(ACC + r), v(ACC + 4 + r)))
        for r in range(4): I("v_add_f32 %s, %s, %s" % (v(ACC + 8 + r), v(ACC + 8 + r), v(ACC + 12 + r)))
        for r in range(4): I("v_cvt_pk_bf16_f32 %s, %s, %s" % (v(44 + r), v(ACC + r), v(ACC + 8 + r)))
        I("buffer_store_dwordx4 v[44:47], %s, s[4:7], %s offen offset:%d%s" % (v(L16S), s(sRW), gi * 1024, ST))
    gamma_block(0, 24)
    gamma_block(1, 16)
    I("s_cmp_lg_u32 %s, 0" % s(S_WAVE))
    I("s_cbranch_scc1 %s" % Lg3)
    for k in range(16, 21):
        if k not in bt or True: bt[k] = bread(k)
    gamma_block(2, 24)
    A.label(Lg3)
    ts(6)
    ts_store()
    for r_ in (sAG, sAG2, sAG8): I("s_add_u32 %s, %s, %d" % (s(r_), s(r_), M_S))
    I("s_add_u32 %s, %s, 0x80000" % (s(sKV), s(sKV)))
    I("s_mov_b32 %s, %s" % (s(sFKV), s(sFKVN)))
    I("s_add_u32 %s, %s, %d" % (s(sFKVN), s(sFKVN), 32 * FSTR))
    I("s_add_u32 %s, %s, 1" % (s(sSTEP), s(sSTEP)))
    Lnors = A.newlabel("L_nors")
    I("s_cmp_ge_u32 %s, 72" % s(sPI))
    I("s_cbranch_scc1 %s" % Lnors)
    I("s_add_u32 %s, %s, %s" % (s(sRR), s(sRB), s(sRSO)))
    for i in range(1, 4): I("s_add_u32 %s, %s, %d" % (s(sRR + i), s(sRR + i - 1), 8 * R_H))
    I("v_mov_b32 v42, %s" % s(sONE_LO))
    I("v_mov_b32 v43, %s" % s(sONE_HI))
    I("v_cndmask_b32_e64 v42, v42, v43, %s" % s(sODD, 2))
    for j in range(4): I("v_cndmask_b32_e64 %s, 0, v42, %s" % (v(38 + j), s(sSEL + 2 * j, 2)))
    I("s_mov_b32 %s, 0" % s(sCNT))
    LR = A.newlabel("L_rs")
    A.label(LR)
    for i in range(4):
        I("buffer_load_dwordx4 %s, %s, s[4:7], %s offen sc1" % (v(48 + 4 * i, 4), v(RSO), s(sRR + i)))
    I("s_add_u32 %s, %s, 1" % (s(sCNT), s(sCNT)))
    I("s_cmp_gt_u32 %s, %d" % (s(sCNT), SPIN_MAX))
    I("s_cbranch_scc1 L_FAIL")
    I("s_waitcnt vmcnt(0)")
    I("v_max3_u32 v44, v48, v49, v50"); I("v_max3_u32 v45, v51, v52, v53")
    I("v_max3_u32 v46, v54, v55, v56"); I("v_max3_u32 v47, v57, v58, v59")
    I("v_max3_u32 v44, v44, v60, v61"); I("v_max3_u32 v45, v45, v62, v63")
    I("v_max3_u32 v44, v44, v45, v46")
    I("v_max_u32 v44, v44, v47")
    I("v_cmp_eq_u32 vcc, -1, v44")
    I("s_cbranch_vccnz %s" % LR)
    ts(7)
    mf(64, 38, 48, "0")
    for i in range(1, 4): mf(64, 38, 48 + 4 * i, v(64, 4))
    for i in range(4): I("v_mov_b32 %s, -1" % v(44 + i))
    for i in range(4):
        I("buffer_store_dwordx4 v[44:47], %s, s[4:7], %s offen%s" % (v(RSO), s(sRR + i), ST))
    for r in range(4):
        I("v_add_f32_dpp %s, %s, %s row_ror:8 row_mask:0xf bank_mask:0xf" % (v(68 + r), v(64 + r), v(64 + r)))
    I("v_cvt_pk_bf16_f32 v72, v68, v69")
    I("v_cvt_pk_bf16_f32 v73, v70, v71")
    I("s_mov_b32 s90, 0xff00ff00"); I("s_mov_b32 s91, 0xff00ff00")
    I("v_cndmask_b32_e64 v72, v72, v73, s[90:91]")
    I("s_mov_b64 exec, %s" % s(sMLO, 2))
    I("buffer_store_dword v72, %s, s[4:7], %s offen%s" % (v(PUB), s(sPUB), ST))
    I("s_mov_b64 exec, -1")
    signal(A, sFMKV, 44)
    Lj = A.newlabel("L_rsj")
    I("s_branch %s" % Lj)
    A.label(Lnors)
    I("s_waitcnt vmcnt(0)")
    signal(A, sFMKV, 44)
    A.label(Lj)
    ts(8)
    tl_mark(A, 44)
    I("s_add_u32 %s, %s, %d" % (s(sPUB), s(sPUB), M_S))
    I("s_add_u32 %s, %s, 0x20000" % (s(sMKV), s(sMKV)))
    I("s_add_u32 %s, %s, %d" % (s(sFMKV), s(sFMKV), 32 * FSTR))
    I("s_branch %s" % LTOP)
    A.label(LEND)
    I("s_waitcnt vmcnt(0)")
    signal(A, sFMKV, 44)
    I("s_branch L_END")

def chain_role(A, opt):
    setup(A, opt)
    lane_consts(A)
    load_weights(A)
    A.I("v_and_b32 v40, 63, v0") if False else None
    scalars(A)
    A.I("v_subrev_u32 v40, %d, %s" % (STG, v(L16S)))
    A.I("v_mov_b32 v41, 0x44444444"); A.I("v_mov_b32 v42, 0xeeeeeeee")
    A.I("v_and_b32 v40, 128, v40")
    A.I("v_cmp_eq_u32 vcc, 0, v40")
    A.I("v_cndmask_b32 %s, v42, v41, vcc" % v(IDX))
    tl_mark(A, 44)
    wait_all_arrived(A, vtmp=43)
    tl_mark(A, 44)
    mode = opt.get("chain_mode", "auto")
    if mode == "auto":
        A.I("s_lshl_b32 s3, %s, 2" % s(sL))
        A.I("s_add_u32 s3, s3, 4")
        A.I("s_load_dword s90, s[24:25], s3 glc")
        A.I("s_waitcnt lgkmcnt(0)")
        A.I("s_bcnt1_i32_b32 s90, s90")
        A.I("s_cmp_eq_u32 s90, 1")
        A.I("s_cbranch_scc0 L_ch_slow")
        step_loop(A, opt, False)
        A.label("L_ch_slow")
        step_loop(A, opt, True)
    else:
        step_loop(A, opt, mode == "sc1")
```

```python
from asmlib import *
from lay import *

KNAME = "interleave_layers__sliding_block__memory_aug_recurrent_mem_tr__prompt_kernel"

S_WS = 4
S_W1 = 8
S_W2 = 12
S_DBG = 16
S_WAVE = 20
S_IDX = 21
S_DBGP = 24
S_WSP = 26
SPIN_MAX = 200000

def srd(A, dst, base, nbytes):
    A.I("s_mov_b32 %s, %s" % (s(dst), s(base)))
    A.I("s_and_b32 %s, %s, 0xffff" % (s(dst + 1), s(base + 1)))
    A.I("s_mov_b32 %s, 0x%x" % (s(dst + 2), nbytes))
    A.I("s_mov_b32 %s, 0x20000" % s(dst + 3))

def load_srd(A, dst, karg_off, nbytes, tmp=90):
    A.I("s_load_dwordx2 %s, s[0:1], %d" % (s(tmp, 2), karg_off))
    A.I("s_waitcnt lgkmcnt(0)")
    srd(A, dst, tmp, nbytes)

def prologue(A, opt):
    A.I("s_cmp_ge_u32 s2, 256")
    A.I("s_cbranch_scc1 L_END")
    A.I("s_load_dwordx4 s[24:27], s[0:1], 88")
    A.I("v_lshrrev_b32 v1, 6, v0")
    A.I("s_lshr_b32 %s, s2, 3" % s(S_IDX))
    A.I("v_readfirstlane_b32 %s, v1" % s(S_WAVE))
    A.I("s_waitcnt lgkmcnt(0)")
    srd(A, S_WS, S_WSP, WS_BYTES)
    srd(A, S_DBG, S_DBGP, 256)
    TL["on"] = bool(opt.get("tl"))
    tl_init(A)
    tl_mark(A)
    if opt.get("zero_flags", True):
        A.I("v_lshlrev_b32 v1, 4, v0")
        A.I("s_lshl_b32 s3, s2, 12")
        for i in range(4): A.I("v_mov_b32 %s, 0" % v(4 + i))
        A.I("buffer_store_dwordx4 v[4:7], v1, s[4:7], s3 offen sc1")

TL = {"on": False}
W_TL = 0xF100000
def tl_init(A):
    if not TL["on"]: return
    A.I("s_lshl_b32 s98, s2, 2")
    A.I("s_add_u32 s98, s98, %s" % s(S_WAVE))
    A.I("s_lshl_b32 s98, s98, 9")
    A.I("s_add_u32 s98, s98, 0x%x" % W_TL)
def tl_mark(A, vtmp=14):
    if not TL["on"]: return
    A.I("s_memrealtime s[100:101]")
    A.I("s_waitcnt lgkmcnt(0)")
    A.I("v_mov_b32 %s, s100" % v(vtmp))
    A.I("buffer_store_dword %s, off, s[4:7], s98" % v(vtmp))
    A.I("s_add_u32 s98, s98, 4")

def arrive(A):
    A.I("s_waitcnt vmcnt(0)")
    A.I("s_barrier")
    L = A.newlabel("L_arr")
    A.I("s_cmp_lg_u32 %s, 0" % s(S_WAVE))
    A.I("s_cbranch_scc1 %s" % L)
    A.I("s_mov_b64 exec, 1")
    A.I("v_mov_b32 v1, 1")
    A.I("buffer_atomic_add v1, off, s[16:19], 0 sc1")
    A.I("s_mov_b64 exec, -1")
    A.label(L)

def wait_all_arrived(A, tmp=90, vtmp=15):
    L = A.newlabel("L_wall"); Ld = A.newlabel("L_walld")
    A.I("s_cmp_lg_u32 %s, 0" % s(S_WAVE))
    A.I("s_cbranch_scc1 %s" % Ld)
    A.I("s_mov_b32 %s, 0" % s(tmp + 1))
    A.label(L)
    A.I("buffer_load_dword %s, off, s[16:19], 0 sc1" % v(vtmp))
    A.I("s_add_u32 %s, %s, 1" % (s(tmp + 1), s(tmp + 1)))
    A.I("s_cmp_gt_u32 %s, %d" % (s(tmp + 1), SPIN_MAX))
    A.I("s_cbranch_scc1 L_FAIL")
    A.I("s_waitcnt vmcnt(0)")
    A.I("v_cmp_gt_u32 vcc, 0x100, %s" % v(vtmp))
    A.I("s_cbranch_vccz %s" % Ld)
    A.I("s_sleep 4")
    A.I("s_branch %s" % L)
    A.label(Ld)
    A.I("s_barrier")

POLL_SLEEP = 1
def spin_flag(A, soff, target, tmp=90, vtmp=15, voff=None):
    L = A.newlabel("L_sp"); Ld = A.newlabel("L_spd")
    A.I("s_mov_b32 %s, 0" % s(tmp + 1))
    A.label(L)
    if voff is None: A.I("buffer_load_dword %s, off, s[4:7], %s sc1" % (v(vtmp), s(soff)))
    else: A.I("buffer_load_dword %s, %s, s[4:7], %s offen sc1" % (v(vtmp), v(voff), s(soff)))
    A.I("s_add_u32 %s, %s, 1" % (s(tmp + 1), s(tmp + 1)))
    A.I("s_cmp_gt_u32 %s, %d" % (s(tmp + 1), SPIN_MAX))
    A.I("s_cbranch_scc1 L_FAIL")
    A.I("s_waitcnt vmcnt(0)")
    A.I("v_cmp_gt_u32 vcc, %d, %s" % (target, v(vtmp)))
    A.I("s_cbranch_vccz %s" % Ld)
    if POLL_SLEEP: A.I("s_sleep %d" % POLL_SLEEP)
    A.I("s_branch %s" % L)
    A.label(Ld)

def signal(A, soff, vtmp):
    A.I("s_mov_b64 exec, 1")
    A.I("v_mov_b32 %s, 1" % v(vtmp))
    A.I("buffer_atomic_add %s, off, s[4:7], %s sc1" % (v(vtmp), s(soff)))
    A.I("s_mov_b64 exec, -1")

HEADER = open("interleave_layers__sliding_block__memory_aug_recurrent_mem_tr__prompt.s.ref").read().split("; Override launch")[0]

def wrap(body, name=KNAME, grid=256, lds=163840):
    t = HEADER
    t += "; @launch grid=(%d,1,1) block=(256,1,1) lds=%d\n" % (grid, lds)
    t += '.amdgcn_target "amdgcn-amd-amdhsa--gfx950"\n.text\n.globl %s\n.p2align 8\n.type %s,@function\n%s:\n' % (name, name, name)
    t += body
    t += """.section .rodata,"a"
.p2align 6
.amdhsa_kernel %s
  .amdhsa_next_free_vgpr 512
  .amdhsa_next_free_sgpr 102
  .amdhsa_accum_offset 256
  .amdhsa_group_segment_fixed_size 0
  .amdhsa_kernarg_size 104
  .amdhsa_user_sgpr_count 2
  .amdhsa_user_sgpr_kernarg_segment_ptr 1
  .amdhsa_system_sgpr_workgroup_id_x 1
.end_amdhsa_kernel
""" % name
    return t
```

```python
from g_work import *

def role_fin(A):
    I = A.I
    arrive(A)
    worker_setup(A)
    VU, VR = 5, 6
    I("v_and_b32 v8, 7, %s" % v(LANE))
    I("s_lshl_b32 s3, %s, 3" % s(S_WAVE))
    I("v_add_u32 v8, s3, v8")
    I("v_lshrrev_b32 v9, 3, %s" % v(LANE))
    I("v_lshrrev_b32 v10, 1, v9"); I("v_lshlrev_b32 v10, 10, v10")
    I("v_and_b32 v11, 1, v9"); I("v_lshl_add_u32 v10, v11, 9, v10")
    I("v_lshl_add_u32 %s, v8, 4, v10" % v(VU))
    I("v_mul_u32_u24 v10, 1152, v8")
    I("v_lshl_add_u32 %s, v9, 4, v10" % v(VR))
    I("s_mov_b32 s64, 0x00003f80"); I("s_mov_b32 s65, 0x3f800000"); I("s_mov_b32 s66, 0x3f803f80")
    I("s_mov_b32 s67, 0xffff0000")
    I("s_mov_b32 s68, 0x%x" % fb(1.0 / 576)); I("s_mov_b32 s69, 0x%x" % fb(1e-5))
    load_srd(A, S_W1, 0, 2048 * 1152)
    load_srd(A, S_W2, 80, 2048 * 1152)
    I("s_and_b32 %s, s60, 1" % s(sSeg))
    I("s_lshr_b32 s61, s60, 1")
    start_sync(A)
    for st in range(1, 5):
        I("s_cmp_eq_u32 s61, %d" % st)
        I("s_cbranch_scc1 L_fin_%d" % st)
    for st in range(5):
        A.label("L_fin_%d" % st)
        fin_stage(A, st, VU, VR)

def fin_stage(A, st, VU, VR):
    I = A.I
    npart = [0, 1, 4, 1, 4][st]
    lay = [0, 0, 0, 1, 1][st]
    sRes, sPar, sXo, sNo = 70, 71, 72, 73
    if st <= 1: lin(A, sRes, 0, [(sSeg, SEGB)])
    else: lin(A, sRes, W_X + (st - 2) * X_K, [(sSeg, SEGB)])
    if npart == 1:
        lin(A, sPar, W_PA + lay * PA_L, [(sSeg, SEGB)]); pst = SEGB
        lin(A, sFW, (F_PA + lay * 64) * FSTR, [(sSeg, FSTR)]); tgt = 5
    elif npart == 4:
        lin(A, sPar, W_PB + lay * 64 * 4 * SEGB, [(sSeg, 4 * SEGB)]); pst = 4 * SEGB
        lin(A, sFW, (F_PB + lay * 64) * FSTR, [(sSeg, FSTR)]); tgt = 36
    if st in (1, 2, 3): lin(A, sXo, W_X + (st - 1) * X_K, [(sSeg, SEGB)])
    if st == 4: lin(A, sXo, 0, [(sSeg, SEGB)])
    if st < 4:
        lin(A, sNo, W_XN + st * XN_K, [(sSeg, SEGB)])
        lin(A, sFS, (F_XN + st * 64) * FSTR, [(sSeg, FSTR)])
    LT = "L_fin_top%d" % st
    A.label(LT)
    if npart: spin_flag(A, sFW, tgt)
    X = 16
    P = 64
    F = 64
    xt = []
    for m in range(9):
        if st <= 1: xt.append(I("buffer_load_dwordx4 %s, %s, s[8:11], %s offen offset:%d" % (v(X + 4 * m, 4), v(VR), s(sRes), m * 128)))
        else:
            I("s_add_u32 %s, %s, %d" % (s(sT), s(sRes), m * 4096))
            xt.append(I("buffer_load_dwordx4 %s, %s, s[4:7], %s offen sc1" % (v(X + 4 * m, 4), v(VU), s(sT))))
    pt = {}
    for p in range(npart):
        for m in range(9):
            I("s_add_u32 %s, %s, %d" % (s(sT), s(sPar), p * SEGB + m * 4096))
            pt[(p, m)] = I("buffer_load_dwordx4 %s, %s, s[4:7], %s offen sc1" % (v(P + 36 * p + 4 * m, 4), v(VU), s(sT)))
    if npart == 4:
        T = 208
        for m in range(9):
            A.wait_vm(pt[(3, m)])
            for d in range(4):
                r0 = P + 4 * m + d
                I("v_lshlrev_b32 %s, 16, %s" % (v(T + 2 * d), v(r0)))
                I("v_and_b32 %s, s67, %s" % (v(T + 2 * d + 1), v(r0)))
            for p in range(1, 4):
                for d in range(4):
                    r = P + 36 * p + 4 * m + d
                    I("v_dot2_f32_bf16 %s, %s, s64, %s" % (v(T + 2 * d), v(r), v(T + 2 * d)))
                    I("v_dot2_f32_bf16 %s, %s, s65, %s" % (v(T + 2 * d + 1), v(r), v(T + 2 * d + 1)))
            for d in range(4): I("v_cvt_pk_bf16_f32 %s, %s, %s" % (v(P + 4 * m + d), v(T + 2 * d), v(T + 2 * d + 1)))
    F = 128
    for m in range(9):
        A.wait_vm(xt[m] if npart != 1 else pt[(0, m)])
        for d in range(4):
            r = X + 4 * m + d
            I("v_lshlrev_b32 %s, 16, %s" % (v(F + 8 * m + 2 * d), v(r)))
            I("v_and_b32 %s, s67, %s" % (v(F + 8 * m + 2 * d + 1), v(r)))
        if npart:
            for d in range(4):
                r = P + 4 * m + d
                I("v_dot2_f32_bf16 %s, %s, s64, %s" % (v(F + 8 * m + 2 * d), v(r), v(F + 8 * m + 2 * d)))
                I("v_dot2_f32_bf16 %s, %s, s65, %s" % (v(F + 8 * m + 2 * d + 1), v(r), v(F + 8 * m + 2 * d + 1)))
            for d in range(4):
                I("v_cvt_pk_bf16_f32 %s, %s, %s" % (v(X + 4 * m + d), v(F + 8 * m + 2 * d), v(F + 8 * m + 2 * d + 1)))
            if st == 4:
                I("buffer_store_dwordx4 %s, %s, s[12:15], %s offen offset:%d" % (v(X + 4 * m, 4), v(VR), s(sXo), m * 128))
            else:
                I("s_add_u32 %s, %s, %d" % (s(sT), s(sXo), m * 4096))
                I("buffer_store_dwordx4 %s, %s, s[4:7], %s offen sc1" % (v(X + 4 * m, 4), v(VU), s(sT)))
                for d in range(4):
                    r = X + 4 * m + d
                    I("v_lshlrev_b32 %s, 16, %s" % (v(F + 8 * m + 2 * d), v(r)))
                    I("v_and_b32 %s, s67, %s" % (v(F + 8 * m + 2 * d + 1), v(r)))
    if st < 4:
        def red(r, tmp):
            I("v_add_f32_dpp %s, %s, %s row_ror:8 row_mask:0xf bank_mask:0xf" % (v(r), v(r), v(r)))
            I("v_mov_b32 %s, %s" % (v(tmp), v(r)))
            I("v_permlane16_swap_b32 %s, %s" % (v(r), v(tmp)))
            I("v_add_f32 %s, %s, %s" % (v(r), v(r), v(tmp)))
            I("v_mov_b32 %s, %s" % (v(tmp), v(r)))
            I("v_permlane32_swap_b32 %s, %s" % (v(r), v(tmp)))
            I("v_add_f32 %s, %s, %s" % (v(r), v(r), v(tmp)))
        S_ = 208
        for c in range(4): I("v_pk_add_f32 %s, %s, %s" % (v(S_ + 2 * c, 2), v(F + 2 * c, 2), v(F + 8 + 2 * c, 2)))
        for m in range(2, 9):
            for c in range(4): I("v_pk_add_f32 %s, %s, %s" % (v(S_ + 2 * c, 2), v(S_ + 2 * c, 2), v(F + 8 * m + 2 * c, 2)))
        I("v_pk_add_f32 v[208:209], v[208:209], v[210:211]"); I("v_pk_add_f32 v[212:213], v[212:213], v[214:215]")
        I("v_pk_add_f32 v[208:209], v[208:209], v[212:213]")
        I("v_add_f32 v208, v208, v209")
        red(208, 209)
        I("v_mul_f32 v208, s68, v208")
        I("v_sub_f32 v216, 0, v208"); I("v_mov_b32 v217, v216")
        for i in range(36): I("v_pk_add_f32 %s, %s, v[216:217]" % (v(F + 2 * i, 2), v(F + 2 * i, 2)))
        for c in range(4): I("v_pk_mul_f32 %s, %s, %s" % (v(S_ + 2 * c, 2), v(F + 2 * c, 2), v(F + 2 * c, 2)))
        for m in range(1, 9):
            for c in range(4):
                I("v_pk_fma_f32 %s, %s, %s, %s" % (v(S_ + 2 * c, 2), v(F + 8 * m + 2 * c, 2), v(F + 8 * m + 2 * c, 2), v(S_ + 2 * c, 2)))
        I("v_pk_add_f32 v[208:209], v[208:209], v[210:211]"); I("v_pk_add_f32 v[212:213], v[212:213], v[214:215]")
        I("v_pk_add_f32 v[208:209], v[208:209], v[212:213]")
        I("v_add_f32 v208, v208, v209")
        red(208, 209)
        I("v_mov_b32 v209, s69")
        I("v_fma_f32 v208, v208, s68, v209")
        I("v_rsq_f32 v216, v208")
        I("v_mov_b32 v217, v216")
        for m in range(9):
            for c in range(4): I("v_pk_mul_f32 %s, %s, v[216:217]" % (v(F + 8 * m + 2 * c, 2), v(F + 8 * m + 2 * c, 2)))
            for d in range(4): I("v_cvt_pk_bf16_f32 %s, %s, %s" % (v(64 + 4 * m + d), v(F + 8 * m + 2 * d), v(F + 8 * m + 2 * d + 1)))
            I("s_add_u32 %s, %s, %d" % (s(sT), s(sNo), m * 4096))
            I("buffer_store_dwordx4 %s, %s, s[4:7], %s offen sc1" % (v(64 + 4 * m, 4), v(VU), s(sT)))
        I("s_waitcnt vmcnt(0)")
        signal(A, sFS, 12)
    tl_mark(A, 12)
    I("s_add_u32 %s, %s, %d" % (s(sRes), s(sRes), 2 * SEGB))
    if npart:
        I("s_add_u32 %s, %s, %d" % (s(sPar), s(sPar), 2 * pst))
        I("s_add_u32 %s, %s, %d" % (s(sFW), s(sFW), 2 * FSTR))
    if st >= 1: I("s_add_u32 %s, %s, %d" % (s(sXo), s(sXo), 2 * SEGB))
    if st < 4:
        I("s_add_u32 %s, %s, %d" % (s(sNo), s(sNo), 2 * SEGB))
        I("s_add_u32 %s, %s, %d" % (s(sFS), s(sFS), 2 * FSTR))
    I("s_add_u32 %s, %s, 2" % (s(sSeg), s(sSeg)))
    I("s_cmp_lt_u32 %s, 64" % s(sSeg))
    I("s_cbranch_scc1 %s" % LT)
    I("s_waitcnt vmcnt(0)")
    I("s_branch L_END")
```

```python
from g_common import *
import struct
fb = lambda x: struct.unpack("<I", struct.pack("<f", x))[0]
OOB = 0x7FFF0000
LANE, L16, LB1, LB2 = 1, 2, 3, 4
sLy, sSeg = 22, 23
sFW, sFS, sX, sO = 28, 29, 30, 31
sPLO, sPHI = 32, 33
sT, sT2, sT3 = 34, 35, 36
sXS = 40
sO2 = 37
sSC = 38

def wait2(A, vtok=None, ltok=None):
    parts = []
    if vtok is not None: parts.append("vmcnt(%d)" % min(A.vm_issued - vtok[1], 63))
    if ltok is not None: parts.append("lgkmcnt(%d)" % min(A.lgkm_issued - ltok[1], 15))
    A.I("s_waitcnt " + " ".join(parts))

def lds_ref(off):
    if off < 61440: return L16, off
    if off < 122880: return LB1, off - 61440
    return LB2, off - 122880

def worker_setup(A):
    I = A.I
    I("v_and_b32 %s, 63, v0" % v(LANE))
    I("v_lshlrev_b32 %s, 4, %s" % (v(L16), v(LANE)))
    I("v_add_u32 %s, 61440, %s" % (v(LB1), v(L16)))
    I("v_add_u32 %s, 122880, %s" % (v(LB2), v(L16)))
    I("s_mov_b32 %s, 0x05040100" % s(sPLO))
    I("s_mov_b32 %s, 0x07060302" % s(sPHI))

def lin(A, dst, c0, terms):
    I = A.I
    I("s_mov_b32 %s, 0x%x" % (s(dst), c0 & 0xffffffff))
    for (r, m) in terms:
        if m == 0: continue
        I("s_mul_i32 s3, %s, 0x%x" % (s(r), m))
        I("s_add_u32 %s, %s, s3" % (s(dst), s(dst)))

def load_w(A, ld, nt, groups, width, iters, per, base_fn, deltas, t_fn):
    I = A.I
    RB = 16
    nreg = 8 * width * len(groups)
    assert RB + per * nreg + 4 * nt <= 250
    TB = RB + per * nreg
    I("s_mov_b32 s90, 0")
    L = A.newlabel("L_w")
    A.label(L)
    toks = []
    for u in range(per):
        t_fn(u)
        I("s_mov_b32 %s, %s" % (s(56 + u), s(sT)))
        base_fn()
        for i in range(8):
            I("s_add_u32 %s, %s, %d" % (s(sT3), s(sT2), deltas[i] * ld))
            for g, vo in enumerate(groups):
                r = RB + u * nreg + (g * 8 + i) * width
                op = "buffer_load_dwordx2" if width == 2 else "buffer_load_dword"
                tok = I("%s %s, %s, s[8:11], %s offen" % (op, v(r, width), v(vo), s(sT3)))
        toks.append(tok)
    for u in range(per):
        A.wait_vm(toks[u])
        I("s_mul_i32 s3, %s, %d" % (s(56 + u), nt * 1024))
        I("v_add_u32 v15, s3, %s" % v(L16))
        for tile in range(nt):
            for m in range(4):
                if width == 2:
                    lo = RB + u * nreg + (2 * m) * 2 + (tile >> 1); hi = lo + 2
                else:
                    lo = RB + u * nreg + (tile >> 1) * 8 + 2 * m; hi = lo + 1
                I("v_perm_b32 %s, %s, %s, %s" % (v(TB + 4 * tile + m), v(hi), v(lo), s(sPHI if tile & 1 else sPLO)))
            I("ds_write_b128 v15, %s offset:%d" % (v(TB + 4 * tile, 4), tile * 1024))
        I("s_waitcnt lgkmcnt(0)")
    I("s_add_u32 s90, s90, 1")
    I("s_cmp_lt_u32 s90, %d" % iters)
    I("s_cbranch_scc1 %s" % L)

ACC = 64; WB = 128
def gemm_core(A, nk, nt, swapped, xreg=lambda t: a(4 * t, 4), xtoks=None, wbuf=WB, acc=ACC, ldsbase=0, fill=None):
    I = A.I
    wt = {}
    def wread(t, tile):
        r, o = lds_ref(ldsbase + (t * nt + tile) * 1024)
        return I("ds_read_b128 %s, %s offset:%d" % (v(wbuf + ((t % 3) * nt + tile) * 4, 4), v(r), o))
    for t in range(2):
        for tile in range(nt): wt[(t, tile)] = wread(t, tile)
    for t in range(nk):
        wait2(A, xtoks[t] if xtoks else None, wt[(t, nt - 1)])
        for tile in range(nt):
            w = v(wbuf + ((t % 3) * nt + tile) * 4, 4)
            c = "0" if t == 0 else v(acc + 16 * tile, 16)
            x, y = (xreg(t), w) if swapped else (w, xreg(t))
            I("v_mfma_f32_32x32x16_bf16 %s, %s, %s, %s" % (v(acc + 16 * tile, 16), x, y, c))
            if t + 2 < nk: wt[(t + 2, tile)] = wread(t + 2, tile)
            if fill: fill(t, tile)

def load_x(A, nk, sbase, xreg=lambda t: a(4 * t, 4)):
    I = A.I
    toks = []
    for t in range(nk):
        if t % 4 == 0:
            if t: I("s_add_u32 %s, %s, %d" % (s(sT), s(sbase), t * 1024))
        sr = sbase if t < 4 else sT
        toks.append(I("buffer_load_dwordx4 %s, %s, s[4:7], %s offen offset:%d sc1" % (xreg(t), v(L16), s(sr), (t % 4) * 1024)))
    return toks

def store_units(A, units, sbase, vaddr=L16, tmp=16):
    I = A.I
    cur = None
    k = 0
    for off, srcs in units:
        d = tmp + 4 * (k % 4); k += 1
        for m in range(4):
            (x0, c0), (x1, c1) = srcs[2 * m], srcs[2 * m + 1]
            if c0 is not None:
                I("v_mul_f32 %s, %s, %s" % (v(x0), s(c0), v(x0)))
                I("v_mul_f32 %s, %s, %s" % (v(x1), s(c1), v(x1)))
            I("v_cvt_pk_bf16_f32 %s, %s, %s" % (v(d + m), v(x0), v(x1)))
        blk = off // 4096
        if blk == 0: sr = sbase
        else:
            if cur != blk:
                I("s_add_u32 %s, %s, %d" % (s(sO2), s(sbase), blk * 4096)); cur = blk
            sr = sO2
        I("buffer_store_dwordx4 %s, %s, s[4:7], %s offen offset:%d sc1" % (v(d, 4), v(vaddr), s(sr), off % 4096))

def ep_unit8(nt, acc=ACC):
    return [((2 * tau + jj) * 1024, [(acc + 16 * tau + 8 * jj + i, None) for i in range(8)]) for tau in range(nt) for jj in range(2)]
def ep_pair(ngroups, scale0=None, acc=ACC):
    u = []
    for b in range(ngroups):
        sc = scale0 if b == 0 else None
        for j in range(4):
            srcs = []
            for r in range(4):
                srcs += [(acc + 16 * (2 * b) + 4 * j + r, sc), (acc + 16 * (2 * b + 1) + 4 * j + r, sc)]
            u.append(((4 * b + j) * 1024, srcs))
    return u
def ep_qm(scale=None, acc=ACC):
    u = []
    for j in range(4):
        for hh in range(2):
            srcs = []
            for r in range(4):
                srcs += [(acc + 16 * (2 * hh) + 4 * j + r, scale), (acc + 16 * (2 * hh + 1) + 4 * j + r, scale)]
            u.append((j * 2048 + hh * 512, srcs))
    return u

def task_init(A, fw, fs, xb, ob):
    I = A.I
    I("s_lshr_b32 %s, %s, 1" % (s(sLy), s(S_WAVE)))
    I("s_and_b32 %s, %s, 1" % (s(sSeg), s(S_WAVE)))
    for dst, (c0, cl, cs, ex) in ((sFW, fw), (sFS, fs), (sX, xb), (sO, ob)):
        lin(A, dst, c0, [(sLy, cl), (sSeg, cs)] + list(ex))

def task_next(A, fw, fs, xb, ob, LTOP):
    I = A.I
    tl_mark(A)
    for dst, (c0, cl, cs, ex) in ((sFW, fw), (sFS, fs), (sX, xb), (sO, ob)):
        I("s_add_u32 %s, %s, 0x%x" % (s(dst), s(dst), 2 * cs))
    I("s_add_u32 %s, %s, 2" % (s(sSeg), s(sSeg)))
    I("s_cmp_lt_u32 %s, 64" % s(sSeg))
    I("s_cbranch_scc1 %s" % LTOP)
    I("s_branch L_END")

def start_sync(A):
    A.I("s_waitcnt vmcnt(0) lgkmcnt(0)")
    tl_mark(A)
    wait_all_arrived(A)
    tl_mark(A)

def g32_role(A, name, nk, nt, swapped, fw, ftarget, fs, xb, ob, units, vaddr=L16, extra_ep=None):
    I = A.I
    task_init(A, fw, fs, xb, ob)
    start_sync(A)
    LTOP = "L_%s_top" % name
    A.label(LTOP)
    spin_flag(A, sFW, ftarget)
    toks = load_x(A, nk, sX)
    gemm_core(A, nk, nt, swapped, xtoks=toks)
    store_units(A, units, sO, vaddr)
    if extra_ep: extra_ep()
    I("s_waitcnt vmcnt(0)")
    signal(A, sFS, 16)
    task_next(A, fw, fs, xb, ob, LTOP)

def nat_t(A, per):
    def f(u):
        A.I("s_mul_i32 %s, s90, %d" % (s(sT), 4 * per))
        A.I("s_add_u32 %s, %s, %s" % (s(sT), s(sT), s(S_WAVE)))
        if u: A.I("s_add_u32 %s, %s, %d" % (s(sT), s(sT), 4 * u))
    return f

def col_regs(A):
    A.I("v_and_b32 v8, 31, %s" % v(LANE))
    A.I("v_lshrrev_b32 v9, 5, %s" % v(LANE))

def vmul_const(A, dst, src, c):
    A.I("s_mov_b32 s3, %d" % c)
    A.I("v_mul_lo_u32 %s, %s, s3" % (v(dst), v(src)))

def w_natural(A, ld, nt, groups, width):
    load_w(A, ld, nt, groups, width, 3, 3, lambda: A.I("s_mul_i32 %s, %s, %d" % (s(sT2), s(sT), 16 * ld)), list(range(8)), nat_t(A, 3))

def bw_load(A, karg):
    I = A.I
    load_srd(A, S_W1, karg, 576 * 8192)
    col_regs(A)
    I("v_lshlrev_b32 v10, 16, v9")
    I("v_lshl_add_u32 v10, v8, 3, v10")
    I("s_lshl_b32 s3, %s, 8" % s(S_IDX))
    I("v_add_u32 v10, s3, v10")
    w_natural(A, 8192, 4, [10], 2)

def role_bkv(A, isv):
    name = "bv" if isv else "bk"
    arrive(A)
    worker_setup(A)
    bw_load(A, 56 if isv else 48)
    fw = ((F_XN + 64) * FSTR, 128 * FSTR, FSTR, [])
    fs = (F_KV * FSTR, 64 * 32 * FSTR, 32 * FSTR, [(S_IDX, FSTR)])
    xb = (W_XN + XN_K, 2 * XN_K, SEGB, [])
    ob = (W_KV + (8192 if isv else 0), 64 * 32 * KV_H, 32 * KV_H, [(S_IDX, KV_H)])
    g32_role(A, name, 36, 4, isv, fw, 4, fs, xb, ob, ep_unit8(4))

QSC = 18 ** -0.5 * 1.4426950408889634
def role_aq(A):
    I = A.I
    arrive(A)
    worker_setup(A)
    load_srd(A, S_W1, 8, 576 * 3456)
    col_regs(A)
    fw = (F_XN * FSTR, 128 * FSTR, FSTR, [])
    fs = (F_QKVA * FSTR, 64 * FSTR, FSTR, [])
    xb = (W_XN, 2 * XN_K, SEGB, [])
    I("s_mov_b32 %s, 0x%x" % (s(sSC), fb(QSC)))
    vmul_const(A, 11, 9, 8 * 3456)
    I("s_cmp_ge_u32 %s, 12" % s(S_IDX))
    I("s_cbranch_scc1 L_aq_x")
    I("s_lshr_b32 s91, %s, 2" % s(S_IDX))
    I("s_and_b32 s92, %s, 3" % s(S_IDX))
    I("v_lshrrev_b32 v10, 2, v8")
    I("v_mul_u32_u24 v10, 36, v10")
    I("v_and_b32 v12, 3, v8")
    I("v_lshl_add_u32 v10, v12, 3, v10")
    I("v_add_u32 v10, v10, v11")
    I("s_mul_i32 s3, s91, 1152"); I("s_mul_i32 s93, s92, 288"); I("s_add_u32 s3, s3, s93")
    I("v_add_u32 v10, s3, v10")
    I("s_mov_b32 s60, s91"); I("s_mov_b32 s61, s92")
    w_natural(A, 3456, 4, [10], 2)
    I("s_cmp_eq_u32 s60, 2")
    I("s_cbranch_scc1 L_aq_v")
    I("s_cmp_eq_u32 s60, 0")
    I("s_cselect_b32 %s, %s, 1.0" % (s(sSC), s(sSC)))
    I("v_lshlrev_b32 v12, 10, v9")
    I("v_lshl_add_u32 v12, v8, 4, v12")
    ob = (W_QKVA, 64 * QKVA_S, QKVA_S, [(60, 32768), (61, 8192)])
    g32_role(A, "aqm", 36, 4, False, fw, 4, fs, xb, ob, ep_qm(sSC), vaddr=12)
    A.label("L_aq_v")
    ob = (W_QKVA + 65536, 64 * QKVA_S, QKVA_S, [(61, 8192)])
    g32_role(A, "aqv", 36, 4, True, fw, 4, fs, xb, ob, ep_unit8(4))
    A.label("L_aq_x")
    I("v_mul_u32_u24 v10, 36, v8")
    I("v_add_u32 v10, v10, v11")
    I("v_add_u32 v10, 32, v10")
    I("s_cmp_eq_u32 %s, 13" % s(S_IDX))
    I("s_cbranch_scc1 L_aq_xv")
    I("v_add_u32 v12, 1152, v10")
    w_natural(A, 3456, 4, [10, 12], 1)
    ob = (W_QKVA + 98304, 64 * QKVA_S, QKVA_S, [])
    g32_role(A, "aqx", 36, 4, False, fw, 4, fs, xb, ob, ep_pair(2, sSC))
    A.label("L_aq_xv")
    I("v_add_u32 v10, 2304, v10")
    w_natural(A, 3456, 2, [10], 1)
    ob = (W_QKVA + 98304 + 8192, 64 * QKVA_S, QKVA_S, [])
    def ones():
        for r in range(4): I("v_mov_b32 %s, 0x3f803f80" % v(40 + r))
        I("s_add_u32 %s, %s, 4096" % (s(sO2), s(sO)))
        I("buffer_store_dwordx4 v[40:43], %s, s[4:7], %s offen sc1" % (v(L16), s(sO2)))
        I("buffer_store_dwordx4 v[40:43], %s, s[4:7], %s offen offset:1024 sc1" % (v(L16), s(sO2)))
    g32_role(A, "aqxv", 36, 2, True, fw, 4, fs, xb, ob, ep_unit8(2), extra_ep=ones)

def role_aw(A):
    I = A.I
    arrive(A)
    worker_setup(A)
    load_srd(A, S_W1, 16, 576 * 1152)
    col_regs(A)
    I("s_lshl_b32 s3, %s, 8" % s(S_IDX))
    I("v_lshlrev_b32 v12, 2, v8")
    I("v_add_u32 v12, s3, v12")
    I("s_cmp_eq_u32 %s, 4" % s(S_IDX))
    I("s_mov_b32 s61, 128")
    I("s_cselect_b32 s61, 0x%x, s61" % OOB)
    vmul_const(A, 13, 9, 4 * 1152)
    I("v_add_u32 v10, v12, v13")
    I("v_add_u32 v11, s61, v10")
    d0 = [(i & 3) + 8 * (i >> 2) for i in range(8)]
    load_w(A, 1152, 4, [10, 11], 1, 2, 4, lambda: I("s_mul_i32 %s, %s, %d" % (s(sT2), s(sT), 18 * 1152)), d0, nat_t(A, 4))
    vmul_const(A, 13, 9, 72 * 1152)
    I("v_add_u32 v10, v12, v13")
    I("v_add_u32 v11, s61, v10")
    d1 = [18 * (i >> 1) + 16 + (i & 1) for i in range(8)]
    def base1():
        I("s_mul_i32 %s, %s, %d" % (s(sT2), s(S_WAVE), 144 * 1152))
    load_w(A, 1152, 4, [10, 11], 1, 1, 1, base1, d1, lambda u: I("s_add_u32 %s, %s, 32" % (s(sT), s(S_WAVE))))
    fw = (F_OA * FSTR, 64 * FSTR, FSTR, [])
    fs = (F_PA * FSTR, 64 * FSTR, FSTR, [])
    xb = (W_OA, OA_L, SEGB, [])
    ob = (W_PA, PA_L, SEGB, [(S_IDX, 8192)])
    units = ep_pair(2)
    I("s_cmp_eq_u32 %s, 4" % s(S_IDX))
    I("s_cselect_b32 s61, 0x%x, 0" % OOB)
    I("v_add_u32 v12, s61, %s" % v(L16))
    task_init(A, fw, fs, xb, ob)
    start_sync(A)
    A.label("L_aw_top")
    spin_flag(A, sFW, 32)
    toks = load_x(A, 36, sX)
    gemm_core(A, 36, 4, False, xtoks=toks)
    store_units(A, units[:4], sO, L16)
    store_units(A, units[4:], sO, 12)
    I("s_waitcnt vmcnt(0)")
    signal(A, sFS, 16)
    task_next(A, fw, fs, xb, ob, "L_aw_top")

def role_op(A):
    I = A.I
    arrive(A)
    worker_setup(A)
    load_srd(A, S_W1, 64, 4096 * 1152)
    col_regs(A)
    I("v_lshlrev_b32 v10, 2, v8")
    vmul_const(A, 13, 9, 16 * 1152)
    I("v_add_u32 v10, v10, v13")
    I("s_lshl_b32 s3, s61, 7")
    I("v_add_u32 v10, s3, v10")
    d = [32 * (i >> 2) + 4 * (i & 3) for i in range(8)]
    def base():
        I("s_lshr_b32 s91, %s, 3" % s(sT))
        I("s_lshl_b32 s92, s60, 3"); I("s_add_u32 s91, s91, s92"); I("s_lshl_b32 s91, s91, 7")
        I("s_and_b32 s92, %s, 1" % s(sT)); I("s_lshl_b32 s92, s92, 6"); I("s_add_u32 s91, s91, s92")
        I("s_bfe_u32 s92, %s, 0x20001" % s(sT)); I("s_add_u32 s91, s91, s92")
        I("s_mul_i32 %s, s91, 1152" % s(sT2))
    load_w(A, 1152, 2, [10], 1, 4, 4, base, d, nat_t(A, 4))
    fw = (F_OB * FSTR, 64 * 4 * FSTR, 4 * FSTR, [(60, FSTR)])
    fs = (F_PB * FSTR, 64 * FSTR, FSTR, [])
    xb = (W_OB, 64 * OB_S, OB_S, [(60, 8 * 8192)])
    ob = (W_PB, 64 * 4 * SEGB, 4 * SEGB, [(60, SEGB), (61, 4096)])
    g32_role(A, "op", 64, 2, False, fw, 8, fs, xb, ob, ep_pair(1))
```

```python
import sys
from g_common import *
import g_chain, g_chain2, g_work, g_att, g_fin

ALL = ["chain", "bk", "bv", "qa", "op", "aw", "aq", "aa", "fin"]
NAA = 31
def build(opt):
    A = Asm()
    prologue(A, opt)
    roles = opt.get("roles", ALL)
    I = A.I
    def tgt(r): return "L_R_" + r if r in roles else "L_IDLE"
    I("s_and_b32 s3, s2, 7")
    I("s_cmp_lt_u32 s3, 2"); I("s_cbranch_scc1 %s" % tgt("chain"))
    I("s_cmp_eq_u32 s3, 2"); I("s_cbranch_scc1 %s" % tgt("bk"))
    I("s_cmp_eq_u32 s3, 3"); I("s_cbranch_scc1 %s" % tgt("bv"))
    I("s_cmp_eq_u32 s3, 4"); I("s_cbranch_scc1 %s" % tgt("qa"))
    I("s_cmp_eq_u32 s3, 5"); I("s_cbranch_scc1 L_X5")
    I("s_cmp_eq_u32 s3, 6"); I("s_cbranch_scc1 L_X6")
    I("s_mov_b32 s60, %s" % s(S_IDX))
    I("s_cmp_lt_u32 %s, 10" % s(S_IDX)); I("s_cbranch_scc1 %s" % tgt("fin"))
    I("s_sub_u32 s60, %s, 1" % s(S_IDX))
    I("s_branch %s" % tgt("aa"))
    A.label("L_X5")
    I("s_cmp_ge_u32 %s, 27" % s(S_IDX)); I("s_cbranch_scc1 L_X5b")
    I("s_mul_i32 s60, %s, 57" % s(S_IDX)); I("s_lshr_b32 s60, s60, 9")
    I("s_mul_i32 s3, s60, 9"); I("s_sub_u32 s61, %s, s3" % s(S_IDX))
    I("s_branch %s" % tgt("op"))
    A.label("L_X5b")
    I("s_sub_u32 %s, %s, 27" % (s(S_IDX), s(S_IDX)))
    I("s_branch %s" % tgt("aw"))
    A.label("L_X6")
    I("s_cmp_ge_u32 %s, 9" % s(S_IDX)); I("s_cbranch_scc1 L_X6b")
    I("s_mov_b32 s60, 3"); I("s_mov_b32 s61, %s" % s(S_IDX))
    I("s_branch %s" % tgt("op"))
    A.label("L_X6b")
    I("s_cmp_ge_u32 %s, 23" % s(S_IDX)); I("s_cbranch_scc1 L_X6c")
    I("s_sub_u32 %s, %s, 9" % (s(S_IDX), s(S_IDX)))
    I("s_branch %s" % tgt("aq"))
    A.label("L_X6c")
    I("s_sub_u32 s60, %s, 23" % s(S_IDX))
    I("s_branch %s" % tgt("aa"))
    A.label("L_IDLE")
    arrive(A)
    I("s_branch L_END")
    fn = {"chain": lambda: (g_chain if opt.get("v1") else g_chain2).chain_role(A, opt), "bk": lambda: g_work.role_bkv(A, False), "bv": lambda: g_work.role_bkv(A, True),
          "qa": lambda: g_att.role_qa(A), "op": lambda: g_work.role_op(A), "aw": lambda: g_work.role_aw(A), "aq": lambda: g_work.role_aq(A),
          "aa": lambda: g_att.role_aa(A, NAA), "fin": lambda: g_fin.role_fin(A)}
    for r in ALL:
        if r in roles:
            A.label("L_R_" + r)
            fn[r]()
            I("s_endpgm")
    A.label("L_FAIL")
    I("s_mov_b64 exec, 1")
    I("v_mov_b32 v1, s2")
    I("v_add_u32 v1, 0x1000, v1")
    I("buffer_store_dword v1, off, s[16:19], 0 offset:16")
    I("s_waitcnt vmcnt(0)")
    A.label("L_END")
    I("s_endpgm")
    return wrap(A.text()), A

if __name__ == "__main__":
    t, A = build({})
    open("test.s", "w").write(t)
    print("bytes", len(t), "instrs", A.nins, "nops", A.nops_added)
```

```python
S = 2048; D = 576; NSEG = 64; SEG = 32; H = 32
SEGB = 36864

FSTR = 64
F_XN = 0
F_QKVA = 256
F_OA = 384
F_PA = 512
F_PB = 640
F_OB = 768
F_KV = 2048
F_MKV = 6144
NFLAG = 16384

W_FLAG = 0
W_M = 0x100000;   M_L = 0x90000; M_S = 9216
W_R = 0x300000;   R_L = 0x90000; R_B = 0x48000; R_H = 9216
W_XN = 0x500000;  XN_K = 0x240000
W_X = 0xE00000;   X_K = 0x240000
W_PA = 0x1500000; PA_L = 0x240000
W_OA = 0x1A00000; OA_L = 0x240000
W_QKVA = 0x2000000; QKVA_S = 0x20000
W_MKV = 0x3000000; MKV_H = 4096
W_PB = 0x4000000
W_KV = 0x5400000; KV_H = 16384
W_OB = 0x9400000; OB_S = 0x40000
WS_BYTES = 0x10000000
```

```python
import gen, sys
K = "interleave_layers__sliding_block__memory_aug_recurrent_mem_tr__prompt.s"
t, A = gen.build({})
lines = []
for l in t.split("\n"):
    lines.append(l.strip() if l.startswith("  ") and not l.startswith("  .") else l)
t = "\n".join(lines)
out = sys.argv[1] if len(sys.argv) > 1 else K
open(out, "w").write(t)
print("bytes", len(t), "instrs", A.nins, "nops", A.nops_added)
```

```python
import re

def v(a, n=1): return "v%d" % a if n == 1 else "v[%d:%d]" % (a, a + n - 1)
def a(x, n=1): return "a%d" % x if n == 1 else "a[%d:%d]" % (x, x + n - 1)
def s(x, n=1): return "s%d" % x if n == 1 else "s[%d:%d]" % (x, x + n - 1)

_reg = re.compile(r"^([vas])(\d+)$|^([vas])\[(\d+):(\d+)\]$")
def regs_of(tok):
    tok = tok.strip()
    if tok.startswith("-") or tok.startswith("|"):
        tok = tok.strip("-|")
    m = _reg.match(tok)
    if m:
        if m.group(1): return [(m.group(1), int(m.group(2)))]
        return [(m.group(3), i) for i in range(int(m.group(4)), int(m.group(5)) + 1)]
    if tok == "vcc": return [("s", "vcc")]
    if tok in ("vcc_lo", "vcc_hi"): return [("s", "vcc")]
    if tok == "exec": return [("s", "exec")]
    if tok == "m0": return [("s", "m0")]
    return []

TRANS = ("v_exp_f32", "v_log_f32", "v_rcp_f32", "v_rsq_f32", "v_sqrt_f32", "v_sin_f32", "v_cos_f32", "v_rcp_iflag_f32")

def mfma_passes(op):
    if "32x32" in op: return 8
    return 4

class Ins:
    __slots__ = ("text", "op", "ops", "kind", "vdef", "vuse", "sdef", "suse", "srcc", "passes", "dpp", "sdwa", "wide_store_data", "lds_dma", "full_d")
    def __init__(self, text):
        self.text = text
        t = text.split(";")[0].strip()
        parts = t.split(None, 1)
        self.op = op = parts[0]
        rest = parts[1] if len(parts) > 1 else ""
        ops = []; cur = ""; depth = 0
        for ch in rest:
            if ch in "[(": depth += 1
            if ch in "])": depth -= 1
            if ch == "," and depth == 0:
                ops.append(cur.strip()); cur = ""
            else: cur += ch
        if cur.strip(): ops.append(cur.strip())
        mods = ""
        if ops:
            last = ops[-1].split(None, 1)
            ops[-1] = last[0]
            if len(last) > 1: mods = last[1]
        self.ops = ops
        self.vdef = []; self.vuse = []; self.sdef = []; self.suse = []; self.srcc = []
        self.passes = 0; self.dpp = False; self.sdwa = False; self.wide_store_data = []; self.lds_dma = False; self.full_d = None
        R = [regs_of(o) for o in ops]
        isv = lambda r: r[0] in "va"
        def use(rs):
            for r in rs:
                (self.vuse if isv(r) else self.suse).append(r)
        def df(rs):
            for r in rs:
                (self.vdef if isv(r) else self.sdef).append(r)
        if op.startswith("v_mfma") or op.startswith("v_smfmac"):
            self.kind = "mfma"; self.passes = mfma_passes(op)
            df(R[0]); use(R[1]); use(R[2])
            self.full_d = (op, ops[0])
            if op.startswith("v_smfmac"):
                self.srcc = R[0]; use(R[3])
            else:
                self.srcc = R[3]
        elif op.startswith("v_"):
            self.kind = "valu"
            self.dpp = ("row_" in mods or "quad_perm" in mods or "_dpp" in op or "wave_" in mods)
            self.sdwa = "sdwa" in op or ("op_sel" in mods and not op.startswith("v_pk_"))
            if op.startswith("v_cmp"):
                df(R[0]); [use(r) for r in R[1:]]
            elif op.startswith("v_permlane"):
                df(R[0]); df(R[1]); use(R[0]); use(R[1])
            elif op.startswith("v_readfirstlane") or op.startswith("v_readlane"):
                df(R[0]); [use(r) for r in R[1:]]
            elif "_co_" in op:
                df(R[0]); df(R[1]); [use(r) for r in R[2:]]
            else:
                df(R[0]); [use(r) for r in R[1:]]
                if op.startswith("v_fmac") or op.startswith("v_dot2c") or self.dpp or self.sdwa or op.startswith("v_mac") or op.startswith("v_writelane"):
                    use(R[0])
                if op.startswith("v_cndmask") and len(ops) == 3:
                    use([("s", "vcc")])
                if op.startswith("v_cndmask") and len(ops) == 4 and not R[3]:
                    pass
        elif op.startswith("buffer_") or op.startswith("global_"):
            self.kind = "vmem"
            self.lds_dma = (" lds" in " " + mods) or ("lds" in op)
            isload = "load" in op
            isatomic = "atomic" in op
            if op.startswith("buffer_"):
                if self.lds_dma:
                    [use(r) for r in R]
                elif isload:
                    df(R[0]); [use(r) for r in R[1:]]
                else:
                    [use(r) for r in R]
                    if "x4" in op or "x3" in op: self.wide_store_data = R[0]
            else:
                if isload:
                    df(R[0]); [use(r) for r in R[1:]]
                else:
                    [use(r) for r in R]
                    if "x4" in op or "x3" in op: self.wide_store_data = R[1]
        elif op.startswith("ds_"):
            self.kind = "ds"
            if op.startswith("ds_read") or op.startswith("ds_bpermute") or op.startswith("ds_permute") or op.startswith("ds_swizzle"):
                df(R[0]); [use(r) for r in R[1:]]
            else:
                [use(r) for r in R]
                if "b128" in op: self.wide_store_data = R[1]
        elif op.startswith("s_"):
            self.kind = "salu"
            if op in ("s_waitcnt", "s_nop", "s_barrier", "s_endpgm", "s_branch", "s_setprio", "s_sleep") or op.startswith("s_cbranch"):
                pass
            elif op.startswith("s_cmp") or op.startswith("s_bitcmp"):
                [use(r) for r in R]
            else:
                if R: df(R[0])
                [use(r) for r in R[1:]]
        else:
            raise ValueError("unknown op " + text)

class Asm:
    def __init__(self):
        self.out = []
        self.hist = []
        self.pos = 0
        self.recent = []
        self.vm_issued = 0; self.lgkm_issued = 0
        self.nins = 0
        self.nops_added = 0
        self.uid = 0
        self.mfma_free = 0
        self.mfma_time = True
    def raw(self, line): self.out.append(line)
    def comment(self, c): self.out.append("  ; " + c)
    def newlabel(self, base):
        self.uid += 1
        return "%s_%d" % (base, self.uid)
    def label(self, name):
        self.out.append(name + ":")
        self.mfma_free = 0
    def _need(self, c):
        need = 0
        cu = set(c.vuse); cd = set(c.vdef); csu = set(c.suse); ccc = set(c.srcc)
        for (p, pr) in self.recent:
            dist = self.pos - p - 1
            req = 0
            pd = set(pr.vdef)
            if pr.kind == "valu":
                if pd:
                    if c.kind == "mfma" and (pd & (cu | ccc)): req = max(req, 2)
                    if c.kind == "valu":
                        if pd & cu:
                            if c.dpp or c.op.startswith("v_permlane"): req = max(req, 2)
                            if c.op.startswith("v_readfirstlane") or c.op.startswith("v_readlane"): req = max(req, 1)
                            if pr.op in TRANS: req = max(req, 1)
                            if pr.sdwa: req = max(req, 1)
                        if pr.op.startswith("v_dot") and (pd & (cu | cd)):
                            if not (c.op == pr.op): req = max(req, 3)
                            else:
                                ab = set(regs_of(c.ops[1]) + regs_of(c.ops[2]))
                                if pd & ab: req = max(req, 3)
                    if pr.op.startswith("v_dot") and c.kind in ("vmem", "ds", "mfma") and (pd & (cu | ccc)): req = max(req, 3)
                    if pr.op in TRANS and c.kind in ("vmem", "ds") and (pd & cu): req = max(req, 1)
                psd = set(pr.sdef)
                if psd:
                    if c.kind == "valu" and (psd & csu): req = max(req, 2)
                    if c.kind in ("valu", "mfma") and ("s", "exec") in psd: req = max(req, 5)
                    if c.kind == "vmem" and (psd & csu): req = max(req, 5)
                    if c.kind == "salu" and (psd & csu): req = max(req, 1)
                    if c.op.startswith("s_cbranch_vcc") and ("s", "vcc") in psd: req = max(req, 1)
            elif pr.kind == "mfma":
                P = pr.passes
                rd = {4: 8, 8: 12}[P]; ov = {4: 6, 8: 10}[P]; war = {4: 3, 8: 7}[P]
                if c.kind == "mfma":
                    if pd & cu: req = max(req, rd)
                    if pd & ccc:
                        same = (regs_of(pr.ops[0]) == list(c.srcc)) and pr.passes == c.passes
                        if not same: req = max(req, ov)
                    elif pd & cd:
                        req = max(req, ov)
                else:
                    if pd & (cu | cd): req = max(req, rd)
                    if c.kind == "valu" and (set(pr.srcc) & cd): req = max(req, war)
            elif pr.kind == "salu":
                if ("s", "m0") in set(pr.sdef) and c.lds_dma: req = max(req, 1)
            if pr.wide_store_data and (set(pr.wide_store_data) & cd):
                req = max(req, 2 if c.kind == "valu" else 1)
            if req - dist > need: need = req - dist
        return need
    def _nop(self, n):
        self.nops_added += n
        while n > 0:
            k = min(n, 16)
            self.out.append("  s_nop %d" % (k - 1))
            self.pos += k
            n -= k
    def flush_hazards(self):
        need = 0
        for (p, pr) in self.recent:
            dist = self.pos - p - 1
            w = 0
            if pr.kind == "mfma": w = {4: 8, 8: 12}[pr.passes]
            elif pr.kind == "valu":
                w = 2
                if pr.sdef: w = 5
                if pr.op.startswith("v_dot"): w = 3
            elif pr.kind == "salu":
                if ("s", "m0") in set(pr.sdef): w = 1
            if pr.wide_store_data: w = max(w, 2)
            need = max(need, w - dist)
        if need > 1: self._nop(need - 1)
    def I(self, text, notok=False, noflush=False):
        c = Ins(text)
        if c.op.startswith("s_cbranch") or c.op == "s_branch":
            n0 = self._need(c)
            if n0 > 0: self._nop(n0)
            if not noflush: self.flush_hazards()
        else:
            n = self._need(c)
            if n > 0: self._nop(n)
            if c.kind == "mfma" and self.mfma_time and self.mfma_free > self.pos:
                self.pos = self.mfma_free
        self.out.append("  " + text)
        if c.op == "s_nop":
            self.pos += int(c.ops[0]) + 1
        else:
            self.recent.append((self.pos, c))
            self.pos += 1
        if c.kind == "mfma": self.mfma_free = (self.pos - 1) + c.passes
        self.recent = [(p, x) for (p, x) in self.recent if self.pos - p <= 21]
        self.nins += 1
        tok = None
        if notok: return None
        if c.kind == "vmem":
            self.vm_issued += 1; tok = ("vm", self.vm_issued)
        elif c.kind == "ds" or c.op.startswith("s_load") or c.op.startswith("s_buffer_load") or c.op.startswith("s_memtime") or c.op.startswith("s_memrealtime"):
            self.lgkm_issued += 1; tok = ("lgkm", self.lgkm_issued)
        return tok
    def wait_vm(self, tok=None):
        n = 0 if tok is None else self.vm_issued - tok[1]
        assert n >= 0
        self.I("s_waitcnt vmcnt(%d)" % min(n, 63))
    def wait_lgkm(self, tok=None):
        n = 0 if tok is None else self.lgkm_issued - tok[1]
        assert n >= 0
        self.I("s_waitcnt lgkmcnt(%d)" % min(n, 15))
    def text(self): return "\n".join(self.out) + "\n"
```

```python
from g_common import *
import g_chain as G1
from g_chain import (WO, STG, QX, KXM, KXL, IDX, L16S, XW, TR, KOFF, VOFF, OW, RSO, PUB, KX, VX, wreg, widx, OOB)
import struct
JUNK = 9
sL, sHEAD, sSTEP = 22, 23, 28
sAG = 29
sGODD = 30
sKV, sKV2 = 32, 33
sMKV = 34
sFKVN = 36
sFMKV = 37
sFCUR = 38
sRW = 39
sRR = 40
sPUB, sPI, sRSO, sW1024, sDMAO = 44, 45, 46, 47, 48
sNC = 49; sC = 50
sMLO = 52
sSEL = 54
sODD = 62
sONE_LO, sONE_HI = 64, 65
sPF, sCNT, sG0, sPF1 = 66, 67, 68, 69
sPLO, sPHI = 70, 71
sRB, sTMP, sT2 = 72, 73, 74
sMPF = 75
sPFD = 76
sRWH = 77
sDMAL = 11
sONES = 78
assert (G1.sL, G1.sHEAD, G1.sTMP, G1.sT2, G1.sW1024, G1.sPLO, G1.sPHI) == (sL, sHEAD, sTMP, sT2, sW1024, sPLO, sPHI)
sAGW, sRWH8, sRW8 = 8, 9, 10
sTAG, sRW2 = 35, 41
RWO = RSO
F_DUMMY = 15000
STAMP = [80, 82, 84, 86, 88, 92, 94, 96, 98]

def scalars(A):
    I = A.I
    I("s_mov_b32 %s, 0" % s(sSTEP))
    I("s_mul_i32 s3, %s, %d" % (s(sL), M_L))
    I("s_add_u32 s3, s3, %d" % (W_M - STG - 3072))
    I("s_mul_i32 %s, %s, 3072" % (s(sTMP), s(S_WAVE)))
    I("s_add_u32 %s, s3, %s" % (s(sAG), s(sTMP)))
    I("s_mul_i32 s3, %s, %d" % (s(sL), M_L))
    I("s_add_u32 %s, s3, %d" % (s(sMPF), W_M + M_S))
    I("s_lshl_b32 s3, %s, 11" % s(sL))
    I("s_add_u32 s3, s3, %s" % s(sHEAD))
    I("s_lshl_b32 %s, s3, 14" % s(sKV)); I("s_add_u32 %s, %s, %d" % (s(sKV), s(sKV), W_KV))
    I("s_add_u32 %s, %s, 4096" % (s(sKV2), s(sKV)))
    I("s_lshl_b32 %s, s3, 12" % s(sMKV)); I("s_add_u32 %s, %s, %d" % (s(sMKV), s(sMKV), W_MKV))
    I("s_lshl_b32 %s, s3, 6" % s(sFKVN))
    I("s_add_u32 %s, %s, %d" % (s(sFCUR), s(sFKVN), F_MKV * FSTR))
    I("s_add_u32 %s, %s, %d" % (s(sFKVN), s(sFKVN), F_KV * FSTR))
    I("s_mov_b32 %s, %d" % (s(sFMKV), F_DUMMY * FSTR))
    I("s_lshl_b32 %s, %s, 15" % (s(sG0), s(S_WAVE)))
    I("s_lshl_b32 %s, %s, 7" % (s(sRWH), s(sHEAD)))
    I("s_add_u32 %s, %s, %d" % (s(sRWH8), s(sRWH), 64 * 4096))
    I("s_cmp_eq_u32 %s, 3" % s(S_WAVE))
    I("s_cselect_b32 s3, 64, 0")
    I("s_add_u32 %s, %s, s3" % (s(sRWH8), s(sRWH8)))
    I("s_lshl_b32 s3, %s, 16" % s(S_WAVE))
    I("s_add_u32 %s, %s, s3" % (s(sRWH), s(sRWH)))
    I("s_mul_i32 %s, %s, 3072" % (s(sAGW), s(S_WAVE)))
    I("s_sub_u32 %s, %s, 3072" % (s(sAGW), s(sAGW)))
    I("s_sub_u32 s3, %s, 1" % s(S_WAVE))
    I("s_lshl_b32 s3, s3, 5")
    I("s_add_u32 %s, s3, %s" % (s(sPI), s(sHEAD)))
    I("s_cmp_eq_u32 %s, 0" % s(S_WAVE))
    I("s_cselect_b32 %s, 1000, %s" % (s(sPI), s(sPI)))
    I("s_lshl_b32 %s, %s, 12" % (s(sRSO), s(sPI)))
    I("s_sub_u32 %s, %s, %d" % (s(sRSO), s(sRSO), STG))
    I("s_mul_i32 s3, %s, %d" % (s(sL), M_L))
    I("s_add_u32 s3, s3, %d" % (W_M + M_S))
    I("s_lshl_b32 %s, %s, 7" % (s(sPUB), s(sPI)))
    I("s_add_u32 %s, %s, s3" % (s(sPUB), s(sPUB)))
    I("s_lshl_b32 s3, %s, 7" % s(S_WAVE))
    I("s_cmp_ge_u32 %s, 2" % s(S_WAVE))
    I("s_cselect_b32 %s, 2048, s3" % s(sDMAO))
    I("s_min_u32 s3, %s, 2" % s(S_WAVE))
    I("s_lshl_b32 s3, s3, 10")
    I("s_add_u32 %s, s3, %d" % (s(sDMAL), KXL))
    c = 128 ** -0.5 * 1.4426950408889634
    fb = lambda x: struct.unpack("<I", struct.pack("<f", x))[0]
    I("s_mov_b32 %s, 0x%x" % (s(sC), fb(c))); I("s_mov_b32 %s, 0x%x" % (s(sC + 1), fb(c)))
    I("s_mov_b32 %s, 0x%x" % (s(sNC), fb(-c)))
    I("s_mov_b32 %s, -1" % s(sMLO)); I("s_mov_b32 %s, 0" % s(sMLO + 1))
    I("s_mov_b32 %s, 0xffff0000" % s(sGODD)); I("s_mov_b32 %s, 0xffff0000" % s(sGODD + 1))
    for j in range(4):
        m = (3 << (2 * j)) * 0x01010101
        I("s_mov_b32 %s, 0x%x" % (s(sSEL + 2 * j), m)); I("s_mov_b32 %s, 0x%x" % (s(sSEL + 2 * j + 1), m))
    I("s_mov_b32 %s, 0xaaaaaaaa" % s(sODD)); I("s_mov_b32 %s, 0xaaaaaaaa" % s(sODD + 1))
    I("s_mov_b32 %s, 0x3f80" % s(sONE_LO)); I("s_mov_b32 %s, 0x3f800000" % s(sONE_HI))
    I("s_mov_b32 %s, 0x3f803f80" % s(sONES)); I("s_mov_b32 %s, 0x3f803f80" % s(sONES + 1))
    I("s_mov_b32 %s, 0" % s(sPFD))


def lane_consts(A):
    G1.lane_consts(A)
    I = A.I
    t1, t2 = 41, 42
    I("s_lshr_b32 s3, %s, 1" % s(S_WAVE)); I("s_lshl_b32 s3, s3, 10")
    I("s_and_b32 %s, %s, 1" % (s(sTMP), s(S_WAVE))); I("s_lshl_b32 %s, %s, 8" % (s(sT2), s(sTMP)))
    I("s_add_u32 s3, s3, %s" % s(sT2)); I("s_add_u32 s3, s3, %d" % QX)
    I("v_and_b32 v41, 15, v40"); I("v_lshlrev_b32 v41, 4, v41")
    I("v_lshrrev_b32 v42, 4, v40"); I("v_lshl_add_u32 v41, v42, 2, v41")
    I("v_add_u32 %s, s3, v41" % v(XW))
    I("v_lshrrev_b32 v41, 5, v40"); I("v_lshlrev_b32 v41, 8, v41")
    I("v_bfe_u32 v42, v40, 4, 1"); I("v_lshl_add_u32 v41, v42, 6, v41")
    I("v_bfe_u32 v42, v40, 2, 2"); I("v_lshl_add_u32 v41, v42, 4, v41")
    I("v_bfe_u32 v42, v40, 1, 1"); I("v_lshl_add_u32 v41, v42, 3, v41")
    I("v_add_u32 %s, %d, v41" % (v(TR), QX))
    I("s_lshr_b32 s3, %s, 1" % s(S_WAVE)); I("s_lshl_b32 s3, s3, 10")
    I("s_lshl_b32 %s, %s, 5" % (s(sT2), s(sTMP)))
    I("s_add_u32 s3, s3, %s" % s(sT2)); I("s_add_u32 s3, s3, %d" % STG)
    I("v_lshrrev_b32 v41, 4, v40"); I("v_lshlrev_b32 v41, 8, v41")
    I("v_bfe_u32 v42, v40, 3, 1"); I("v_lshl_add_u32 v41, v42, 7, v41")
    I("v_bfe_u32 v42, v40, 1, 1"); I("v_lshl_add_u32 v41, v42, 6, v41")
    I("v_and_b32 v42, 1, v40"); I("v_lshl_add_u32 v41, v42, 4, v41")
    I("v_add_u32 %s, s3, v41" % v(OW))
    I("v_mov_b32 v41, 0x44444444"); I("v_mov_b32 v42, 0xeeeeeeee")
    I("v_and_b32 v43, 2, v40")
    I("v_cmp_eq_u32 vcc, 0, v43")
    I("v_cndmask_b32 %s, v42, v41, vcc" % v(IDX))

def lane_consts2(A):
    I = A.I
    I("v_and_b32 v41, 3, v40"); I("v_lshlrev_b32 v41, 4, v41")
    I("v_bfe_u32 v42, v40, 2, 2"); I("v_lshl_add_u32 v41, v42, 13, v41")
    I("v_bfe_u32 v42, v40, 5, 1"); I("v_lshl_add_u32 v41, v42, 12, v41")
    I("v_bfe_u32 v42, v40, 4, 1"); I("v_lshl_add_u32 %s, v42, 6, v41" % v(RWO))
    I("v_bfe_u32 v41, v40, 1, 1"); I("v_lshlrev_b32 v41, 6, v41")
    I("v_bfe_u32 v42, v40, 2, 1"); I("v_lshl_add_u32 v41, v42, 5, v41")
    I("v_bfe_u32 v42, v40, 3, 1"); I("v_lshl_add_u32 v41, v42, 4, v41")
    I("v_and_b32 v42, 1, v40"); I("v_lshl_add_u32 v41, v42, 3, v41")
    I("v_bfe_u32 v42, v40, 4, 1"); I("v_lshl_add_u32 v41, v42, 2, v41")
    I("s_cmp_eq_u32 %s, 3" % s(S_WAVE))
    I("s_cselect_b64 vcc, -1, 0")
    I("v_cndmask_b32 %s, %s, v41, vcc" % (v(PUB), v(PUB)))

MKO, TRW, AGW = 78, 79, 77
def shadow_init(A, cls):
    I = A.I
    for r in range(50, 74, 2): I("v_mov_b64 %s, 0" % v(r, 2))
    I("v_subrev_u32 v76, %d, %s" % (STG, v(L16S)))
    I("v_and_b32 %s, 0x30, v76" % v(MKO))
    I("v_bfe_u32 v75, v76, 7, 1")
    I("v_lshl_add_u32 %s, v75, 6, %s" % (v(MKO), v(MKO)))
    I("v_lshrrev_b32 v76, 8, v76")
    I("v_lshl_add_u32 %s, v76, 7, %s" % (v(MKO), v(MKO)))
    I("v_lshl_add_u32 %s, %s, 9, %s" % (v(MKO), s(S_WAVE), v(MKO)))
    I("s_lshl_b32 s3, %s, 9" % s(S_WAVE))
    I("v_add_u32 %s, s3, %s" % (v(TRW), v(TR)))
    if cls != "0": I("v_add_u32 %s, %s, %s" % (v(AGW), s(sAGW), v(L16S)))

FLG = PUB
def w0_spin(A):
    I = A.I
    I("v_subrev_u32 v75, %d, %s" % (STG, v(L16S)))
    I("v_and_b32 v75, 16, v75")
    I("v_lshlrev_b32 v75, 7, v75")
    I("s_mov_b32 %s, 0" % s(sCNT))
    L = A.newlabel("L_w0f")
    A.label(L)
    I("buffer_load_dword %s, v75, s[4:7], %s offen sc1" % (v(FLG), s(sFKVN)))
    I("s_add_u32 %s, %s, 1" % (s(sCNT), s(sCNT)))
    I("s_cmp_gt_u32 %s, %d" % (s(sCNT), SPIN_MAX))
    I("s_cbranch_scc1 L_FAIL", noflush=True)
    I("s_waitcnt vmcnt(0)")
    I("v_readlane_b32 s3, %s, 0" % v(FLG))
    I("s_cmp_ge_u32 s3, 2")
    I("s_cbranch_scc0 %s" % L)

def w0_check(A):
    I = A.I
    Lok = A.newlabel("L_w0ok")
    I("v_readlane_b32 s3, %s, 0" % v(FLG))
    I("s_cmp_ge_u32 s3, 2")
    I("s_cbranch_scc1 %s" % Lok)
    w0_spin(A)
    A.label(Lok)
    w0_next(A)

def w0_next(A):
    I = A.I
    I("v_readlane_b32 s3, %s, 1" % v(FLG))
    I("s_add_u32 %s, %s, 0x80000" % (s(sPF), s(sKV)))
    I("s_cmp_ge_u32 s3, 2")
    I("s_cselect_b32 %s, %s, 0x%x" % (s(sPF), s(sPF), OOB - 8192))

def w0_early(A):
    I = A.I
    L = []
    L.append(lambda: I("v_subrev_u32 v76, %d, %s" % (STG, v(L16S))))
    L.append(lambda: I("v_lshlrev_b32 v76, 3, v76"))
    L.append(lambda: I("buffer_load_dword %s, v76, s[4:7], %s offen sc1" % (v(JUNK), s(sPF))))
    L.append(lambda: I("s_add_u32 s3, %s, 8192" % s(sPF)))
    L.append(lambda: I("buffer_load_dword %s, v76, s[4:7], s3 offen sc1" % v(JUNK)))
    L.append(lambda: I("buffer_load_dword %s, v76, s[4:7], %s offen sc1" % (v(JUNK), s(sMPF))))
    L.append(lambda: (I("v_and_b32 v75, 0x380, v76"), I("s_add_u32 s3, %s, 8192" % s(sMPF))))
    L.append(lambda: I("buffer_load_dword %s, v75, s[4:7], s3 offen sc1" % v(JUNK)))
    L.append(lambda: (I("v_and_b32 v75, 0x80, v76"), I("v_lshlrev_b32 v75, 4, v75")))
    L.append(lambda: I("buffer_load_dword %s, v75, s[4:7], %s offen offset:2048 sc1" % (v(FLG), s(sFKVN))))
    return L

def advance(A):
    I = A.I
    I("s_add_u32 %s, %s, %d" % (s(sAG), s(sAG), M_S))
    I("s_add_u32 %s, %s, %d" % (s(sMPF), s(sMPF), M_S))
    I("s_add_u32 %s, %s, 0x80000" % (s(sKV), s(sKV)))
    I("s_add_u32 %s, %s, 0x80000" % (s(sKV2), s(sKV2)))
    I("s_add_u32 %s, %s, %d" % (s(sFKVN), s(sFKVN), 32 * FSTR))
    I("s_mov_b32 %s, %s" % (s(sFMKV), s(sFCUR)))
    I("s_add_u32 %s, %s, %d" % (s(sFCUR), s(sFCUR), 32 * FSTR))
    I("s_add_u32 %s, %s, 0x20000" % (s(sMKV), s(sMKV)))
    I("s_add_u32 %s, %s, 1" % (s(sSTEP), s(sSTEP)))

def step_loop(A, opt, sc1, cls):
    I = A.I
    prof = opt.get("prof")
    def ts(k):
        if prof: I("s_memtime %s" % s(STAMP[k], 2), notok=True)
    def ts_store():
        if prof:
            Lp = A.newlabel("L_prof")
            I("s_waitcnt lgkmcnt(0)")
            I("s_cmp_lg_u32 %s, %d" % (s(sHEAD), opt.get("prof_head", 0)))
            I("s_cbranch_scc1 %s" % Lp)
            I("s_and_b32 s3, %s, 3" % s(sSTEP))
            I("s_cmp_lg_u32 s3, 0")
            I("s_cbranch_scc1 %s" % Lp)
            I("s_lshl_b32 s3, %s, 6" % s(sL))
            I("s_add_u32 s3, s3, %s" % s(sSTEP))
            I("s_lshl_b32 s3, s3, 2")
            I("s_add_u32 s3, s3, %s" % s(S_WAVE))
            I("s_lshl_b32 s3, s3, 6")
            I("s_add_u32 s3, s3, 0xF000000")
            for k in range(9):
                I("v_mov_b32 v74, %s" % s(STAMP[k]))
                I("buffer_store_dword v74, off, s[4:7], s3 offset:%d" % (4 * k))
            I("v_mov_b32 v74, %s" % s(sCNT))
            I("buffer_store_dword v74, off, s[4:7], s3 offset:36")
            I("v_mov_b32 v74, s13")
            I("buffer_store_dword v74, off, s[4:7], s3 offset:40")
            I("v_mov_b32 v74, s12")
            I("buffer_store_dword v74, off, s[4:7], s3 offset:44")
            I("v_mov_b32 v74, s14")
            I("buffer_store_dword v74, off, s[4:7], s3 offset:48")
            A.label(Lp)
    def dump(k, reg):
        if not opt.get("dump"): return
        I("s_lshl_b32 s14, %s, 5" % s(sL)); I("s_add_u32 s14, s14, %s" % s(sHEAD))
        I("s_lshl_b32 s14, s14, 2"); I("s_add_u32 s14, s14, %s" % s(S_WAVE))
        I("s_lshl_b32 s14, s14, 14"); I("s_add_u32 s14, s14, %d" % (0xF400000 + k * 1024 - STG))
        I("s_cmp_eq_u32 %s, 0" % s(sSTEP)); I("s_cselect_b32 s14, s14, 0x%x" % OOB)
        I("s_nop 7"); I("s_nop 7")
        I("buffer_store_dwordx4 %s, %s, s[4:7], s14 offen" % (v(reg, 4), v(L16S)))
    ST = " sc1" if sc1 else ""
    w0 = cls == "0"
    tag = ("s" if sc1 else "p") + cls
    LB1 = "L_ch_b1_" + tag; LEND = "L_ch_end_" + tag; LTOP = "L_ch_top_" + tag
    I("s_branch %s" % LB1)
    A.label(LTOP)
    if not w0:
        I("s_mov_b32 %s, 0" % s(sCNT))
        LP = A.newlabel("L_ag")
        A.label(LP)
        t = [I("buffer_load_dwordx4 %s, %s, s[4:7], %s offen offset:%d sc1" % (v(38 + 4 * i, 4), v(L16S), s(sAG), 1024 * i)) for i in range(3)]
        I("s_add_u32 %s, %s, 1" % (s(sCNT), s(sCNT)))
        I("s_cmp_gt_u32 %s, %d" % (s(sCNT), SPIN_MAX))
        I("s_cbranch_scc1 L_FAIL", noflush=True)
        for i in range(3):
            A.wait_vm(t[i])
            I("ds_write_b128 %s, %s offset:%d" % (v(AGW), v(38 + 4 * i, 4), 1024 * i))
        I("v_max3_u32 v74, v38, v39, v40")
        I("v_max3_u32 v75, v41, v42, v43")
        I("v_max3_u32 v76, v44, v45, v46")
        I("v_max3_u32 v74, v74, v47, v48")
        I("v_max3_u32 v75, v75, v76, v49")
        I("v_max_u32 v74, v74, v75")
        I("v_cmp_eq_u32 vcc, -1, v74")
        if prof:
            Lok = A.newlabel("L_agok")
            I("s_cbranch_vccz %s" % Lok, noflush=True)
            I("s_cmp_lg_u32 %s, 1" % s(sCNT))
            I("s_cbranch_scc1 %s" % LP, noflush=True)
            I("s_memtime s[14:15]", notok=True)
            I("s_branch %s" % LP, noflush=True)
            A.label(Lok)
        else:
            I("s_cbranch_vccnz %s" % LP, noflush=True)
        I("s_waitcnt lgkmcnt(0)")
    A.label(LB1)
    ts(0)
    I("s_barrier")
    AB = [38, 42, 46]
    at = {}
    def aread(T, buf): return I("ds_read_b128 %s, %s offset:%d" % (v(buf, 4), v(L16S), T * 1024))
    for T in range(3): at[T] = aread(T, AB[T])
    I("s_mov_b32 m0, %s" % s(sDMAL))
    I("s_add_u32 s3, %s, %s" % (s(sKV), s(sDMAO)))
    I("buffer_load_dwordx4 %s, s[4:7], s3 offen sc1 lds" % v(KOFF))
    dma_mark = ("vm", A.vm_issued)
    kt = {}
    def ld(name, dst, addr, so, off):
        def f(): kt[name] = I("buffer_load_dwordx4 %s, %s, s[4:7], %s offen offset:%d sc1" % (v(dst, 4), v(addr), s(so), off))
        return f
    fill = [ld("3A", KX + 12, KOFF, sKV2, 2048), ld("3B", KX + 16, KOFF, sKV2, 2176), ld("2A", KX + 4, KOFF, sKV2, 0),
            ld("2B", KX + 8, KOFF, sKV2, 128), ld("1B", KX, KOFF, sKV, 2176), ld("V0", VX, VOFF, sKV, 0), ld("V1", VX + 4, VOFF, sKV, 2048)]
    for _ in range(2): fill.pop(0)()
    if w0:
        def sig():
            I("s_mov_b64 exec, 1")
            I("v_mov_b32 v77, 4")
            I("buffer_atomic_add v77, off, s[4:7], %s sc1" % s(sFMKV))
            I("s_mov_b64 exec, -1")
        fill.append(sig)
        fill += w0_early(A)
    QA_, QB_, KA_, KB_ = 50, 54, 58, 62
    def smf(acc, buf, f): I("v_smfmac_f32_16x16x64_bf16 %s, %s, %s, %s" % (v(acc, 4), v(buf, 4), f if isinstance(f, str) else wreg(f), v(IDX)))
    for T in range(9):
        A.wait_lgkm(at[T])
        buf = AB[T % 3]
        for acc, f in ((QA_, widx(0, 0, T)), (QB_, widx(0, 1, T)), (KA_, widx(1, 0, T)), (KB_, widx(1, 1, T))):
            smf(acc, buf, f)
            if fill and acc != KB_: fill.pop(0)()
        at[T + 3] = aread((T + 3) % 9, buf)
    assert not fill
    ts(1)
    VA_, VB_ = 66, 70
    def vs(T, half):
        buf = AB[T % 3]
        if half == 0:
            A.wait_lgkm(at[9 + T])
            smf(VA_, buf, widx(2, 0, T))
        else:
            smf(VB_, buf, widx(2, 1, T))
            if T + 3 < 9: at[9 + T + 3] = aread(T + 3, buf)
    ad = lambda d, a_, b_: I("v_add_f32 %s, %s, %s" % (v(d), v(a_), v(b_)))
    cvt = lambda d, a_, b_: I("v_cvt_pk_bf16_f32 %s, %s, %s" % (v(d), v(a_), v(b_)))
    vs(0, 0); vs(0, 1)
    ad(QA_, QA_, QA_ + 2); ad(QA_ + 1, QA_ + 1, QA_ + 3); ad(QB_, QB_, QB_ + 2); ad(QB_ + 1, QB_ + 1, QB_ + 3)
    cvt(74, QA_, QA_ + 1); cvt(75, QB_, QB_ + 1)
    I("ds_write2_b32 %s, v74, v75 offset0:0 offset1:128" % v(XW))
    ad(KA_, KA_, KA_ + 2); ad(KA_ + 1, KA_ + 1, KA_ + 3); ad(KB_, KB_, KB_ + 2); ad(KB_ + 1, KB_ + 1, KB_ + 3)
    cvt(76, KA_, KA_ + 1); cvt(77, KB_, KB_ + 1)
    I("ds_write_b32 %s, v76 offset:2048" % v(XW))
    wtok = I("ds_write_b32 %s, v77 offset:2560" % v(XW))
    vs(1, 0); vs(1, 1); vs(2, 0); vs(2, 1)
    A.wait_lgkm(wtok)
    A.wait_vm(dma_mark)
    I("s_barrier")
    ts(2)
    def trq(Tp, dst):
        I("ds_read_b64_tr_b16 %s, %s offset:%d" % (v(dst, 2), v(TR), Tp * 512))
        return I("ds_read_b64_tr_b16 %s, %s offset:%d" % (v(dst + 2, 2), v(TR), Tp * 512 + 128))
    def trk(Tp, dst):
        I("ds_read_b64_tr_b16 %s, %s offset:%d" % (v(dst, 2), v(TR), 2048 + Tp * 512))
        return I("ds_read_b64_tr_b16 %s, %s offset:%d" % (v(dst + 2, 2), v(TR), 2048 + Tp * 512 + 128))
    tq3 = trq(3, 50); tk3 = trk(3, 54)
    vs(3, 0); tq2 = trq(2, 58); vs(3, 1); tk2 = trk(2, 62)
    vs(4, 0); tq1 = trq(1, 74); vs(4, 1)
    for T in range(5, 9): vs(T, 0); vs(T, 1)
    S0, SA, SB = 38, 42, 46
    def mf(d, x, y, c): I("v_mfma_f32_16x16x32_bf16 %s, %s, %s, %s" % (v(d, 4), v(x, 4), v(y, 4), c))
    A.wait_lgkm(tk3); A.wait_vm(kt["3B"])
    mf(SA, KX + 12, 50, "0"); mf(SB, KX + 16, 50, "0"); mf(S0, 54, 50, "0")
    tk1 = trk(1, 54)
    t1A = I("ds_read_b128 %s, %s offset:%d" % (v(KX + 12, 4), v(L16S), KXL - STG + 2 * 1024))
    tq0 = trq(0, 50)
    t0A = I("ds_read_b128 %s, %s offset:%d" % (v(KX + 16, 4), v(L16S), KXL - STG + 0 * 1024))
    A.wait_lgkm(tk2); A.wait_vm(kt["2B"])
    mf(SA, KX + 4, 58, v(SA, 4)); mf(SB, KX + 8, 58, v(SB, 4)); mf(S0, 62, 58, v(S0, 4))
    tk0 = trk(0, 58)
    t0B = I("ds_read_b128 %s, %s offset:%d" % (v(KX + 4, 4), v(L16S), KXL - STG + 1 * 1024))
    I("ds_read_b64_tr_b16 v[62:63], %s offset:2048" % v(TRW))
    tmk = I("ds_read_b64_tr_b16 v[64:65], %s offset:2176" % v(TRW))
    A.wait_vm(kt["1B"]); A.wait_lgkm(tq1)
    mf(SB, KX, 74, v(SB, 4))
    ad(70, 70, 72); ad(71, 71, 73)
    A.wait_lgkm(t1A)
    mf(SA, KX + 12, 74, v(SA, 4))
    ad(66, 66, 68); ad(67, 67, 69)
    A.wait_lgkm(tk1)
    mf(S0, 54, 74, v(S0, 4))
    cvt(70, 70, 71); cvt(72, 66, 67)
    A.wait_lgkm(t0A)
    mf(SA, KX + 16, 50, v(SA, 4))
    I("v_mov_b32 v71, 0"); I("v_mov_b32 v73, 0")
    A.wait_lgkm(tk0)
    mf(S0, 58, 50, v(S0, 4))
    I("v_mov_b64 v[74:75], %s" % s(sONES, 2)); I("v_mov_b64 v[76:77], %s" % s(sONES, 2))
    A.wait_lgkm(t0B)
    mf(SB, KX + 4, 50, v(SB, 4))
    I("s_add_u32 s3, %s, %d" % (s(sMKV), 2048 - QX))
    I("buffer_store_dword v72, %s, s[4:7], s3 offen sc1" % v(XW))
    I("buffer_store_dword v70, %s, s[4:7], s3 offen offset:512 sc1" % v(XW))
    A.wait_lgkm(tmk)
    I("buffer_store_dwordx4 v[62:65], %s, s[4:7], %s offen sc1" % (v(MKO), s(sMKV)))
    I("s_cmp_eq_u32 %s, 63" % s(sSTEP))
    I("s_cbranch_scc1 %s" % LEND, noflush=True)
    ts(3)
    pass
    ONES, PM, AA_, AB_, DEN = 74, 64, 72, 70, 42
    I("v_cndmask_b32_e64 v38, v38, v40, %s" % s(sGODD, 2))
    I("v_cndmask_b32_e64 v39, v39, v41, %s" % s(sGODD, 2))
    I("v_max3_f32 v50, v42, v43, v44")
    I("v_max3_f32 v51, v45, v46, v47")
    I("v_max3_f32 v52, v48, v49, v38")
    I("v_max3_f32 v50, v50, v51, v39")
    I("v_max_f32 v50, v50, v52")
    I("v_mov_b32 v51, v50")
    I("v_mov_b64 v[66:67], 0")
    I("v_mov_b32 v65, 0")
    I("v_permlane16_swap_b32 v50, v51")
    I("v_max_f32 v50, v50, v51")
    I("v_mov_b32 v51, v50")
    WA, WA2 = 41, 40
    WA, WA2 = 47, 46
    I("v_subrev_u32 v40, %d, %s" % (STG, v(L16S)))
    I("s_nop 0")
    I("v_permlane32_swap_b32 v50, v51")
    I("v_max_f32 v50, v50, v51")
    I("v_mul_f32 v50, %s, v50" % s(sNC))
    for r in list(range(42, 50, 2)) + [38]:
        I("v_pk_fma_f32 %s, %s, %s, v[50:51] op_sel_hi:[1,0,0]" % (v(r, 2), v(r, 2), s(sC, 2)))
    for r in range(42, 50): I("v_exp_f32 %s, %s" % (v(r), v(r)))
    for i in range(4): cvt(52 + i, 42 + 2 * i, 43 + 2 * i)
    OA_, OB_ = 56, 60
    A.wait_vm(kt["V1"])
    mf(DEN, ONES, 52, "0")
    I("v_exp_f32 v38, v38")
    mf(OA_, VX, 52, "0")
    I("v_exp_f32 v39, v39")
    mf(OB_, VX + 4, 52, "0")
    I("v_add_u32 %s, %s, v40" % (v(WA), s(sG0)))
    cvt(64, 38, 39)
    extra = cls in ("0", "3")
    if extra: I("v_add_u32 %s, 0x%x, v40" % (v(WA2), 8 * 16384))
    seq = []
    for gi in range(2):
        for hb in range(2):
            for T in range(2):
                for par in range(2): seq.append((gi, hb + 2 * par, T))
    if extra:
        hb = 0 if cls == "0" else 1
        for T in range(2):
            for par in range(2): seq.append((8, hb + 2 * par, T))
    NK = len(seq)
    BB = [10, 18, 26, 48, 64]
    bt = {}
    def bread(k):
        if k >= NK: return
        gi, x, T = seq[k]
        b = BB[k % 5]
        adr = WA2 if gi == 8 else WA
        off = (0 if gi == 8 else gi * 16384) + x * 4096 + T * 2048
        I("ds_read_b128 %s, %s offset:%d" % (v(b, 4), v(adr), off))
        bt[k] = I("ds_read_b128 %s, %s offset:%d" % (v(b + 4, 4), v(adr), off + 1024))
    mf(DEN, ONES, PM, v(DEN, 4))
    mf(OA_, AA_, PM, v(OA_, 4))
    mf(OB_, AB_, PM, v(OB_, 4))
    bread(0); bread(1)
    I("v_rcp_f32 v42, v42")
    for r in range(0, 8, 2):
        I("v_pk_mul_f32 %s, %s, v[42:43] op_sel_hi:[1,0]" % (v(OA_ + r, 2), v(OA_ + r, 2)))
    for r in range(4): cvt(OA_ + r, OA_ + r, OB_ + r)
    otok = I("ds_write_b128 %s, %s" % (v(OW), v(OA_, 4)))
    ts(4)
    OF = [34, 38]
    P = (56, 60); Q = (72, 42); O = 76
    def zero(u):
        I("v_mov_b64 %s, 0" % v(u, 2)); I("v_mov_b64 %s, 0" % v(u + 2, 2))
    bread(2)
    zero(Q[0]); zero(Q[1]); zero(P[1])
    bread(3)
    A.wait_lgkm(otok)
    I("s_barrier")
    of = [I("ds_read_b128 %s, %s" % (v(OF[0], 4), v(L16S))), I("ds_read_b128 %s, %s offset:1024" % (v(OF[1], 4), v(L16S)))]
    bread(4)
    zero(P[0])
    I("s_mul_i32 s3, %s, %d" % (s(sL), R_L))
    I("s_and_b32 %s, %s, 1" % (s(sTMP), s(sSTEP)))
    I("s_mul_i32 %s, %s, %d" % (s(sTMP), s(sTMP), R_B))
    I("s_add_u32 %s, s3, %s" % (s(sRB), s(sTMP)))
    I("s_add_u32 %s, %s, %d" % (s(sRB), s(sRB), W_R))
    I("s_add_u32 %s, %s, %s" % (s(sRW), s(sRB), s(sRWH)))
    I("s_add_u32 %s, %s, 32768" % (s(sRW2), s(sRW)))
    I("s_bfe_u32 %s, %s, 0x10001" % (s(sTAG), s(sSTEP)))
    if extra:
        I("s_add_u32 %s, %s, %s" % (s(sRW8), s(sRB), s(sRWH8)))
    NH = NK // 4
    fillers = []
    def epi(h):
        ua, ub = (P, Q)[h & 1]
        L_ = []
        for u in (ua, ub):
            L_.append(lambda u=u: ad(u, u, u + 2)); L_.append(lambda u=u: ad(u + 1, u + 1, u + 3))
        o = O + 2 * (h & 1)
        L_.append(lambda: cvt(o, ua, ub)); L_.append(lambda: cvt(o + 1, ua + 1, ub + 1))
        if h >= 4:
            L_.append(lambda: I("v_bfi_b32 %s, 1, %s, %s" % (v(O + 1), s(sTAG), v(O + 1))))
            L_.append(lambda: I("buffer_store_dwordx2 %s, %s, s[4:7], %s offen%s" % (v(O, 2), v(WA2), s(sRW8), ST)))
        elif h & 1:
            L_.append(lambda: I("v_bfi_b32 %s, 1, %s, %s" % (v(O + 3), s(sTAG), v(O + 3))))
            L_.append(lambda: I("buffer_store_dwordx4 %s, %s, s[4:7], %s offen%s" % (v(O, 4), v(RWO), s(sRW2 if h >> 1 else sRW), ST)))
        if h + 2 < NH:
            for u in (ua, ub):
                L_.append(lambda u=u: I("v_mov_b64 %s, 0" % v(u, 2))); L_.append(lambda u=u: I("v_mov_b64 %s, 0" % v(u + 2, 2)))
        return L_
    pend = []
    for k in range(NK):
        h = k // 4
        gi, x, T = seq[k]
        if k == 0: A.wait_lgkm(of[0])
        if k == 2: A.wait_lgkm(of[1])
        if k % 4 == 0 and h >= 2:
            while pend and pend[0][0] <= h - 2: pend.pop(0)[1]()
        if k % 2 == 0: A.wait_lgkm(bt[min(k + 1, NK - 1)])
        u = (P, Q)[h & 1][0 if x < 2 else 1]
        smf(u, OF[T], v(BB[k % 5], 8))
        bread(k + 5)
        if k % 4 == 1 and h >= 1:
            pend += [(h - 1, f) for f in epi(h - 1)]
        if k == 16:
            pend += [(h - 1, lambda: I("v_and_b32 %s, 0x70, %s" % (v(WA2), v(RWO)))),
                     (h - 1, lambda: I("v_lshrrev_b32 %s, 1, %s" % (v(WA2), v(WA2)))),
                     (h - 1, lambda: I("v_sub_u32 %s, %s, %s" % (v(WA2), v(RWO), v(WA2))))]
        n = 3 if k % 4 else 0
        while pend and n > 0:
            pend.pop(0)[1](); n -= 1
    while pend: pend.pop(0)[1]()
    for f in epi(NH - 1): f()
    ts(5)
    advance(A)
    Lnors = A.newlabel("L_nors")
    if cls == "3":
        I("s_cmp_ge_u32 %s, 72" % s(sPI))
        I("s_cbranch_scc1 %s" % Lnors)
    if not w0:
        I("s_add_u32 %s, %s, %s" % (s(sRR), s(sRB), s(sRSO)))
        I("v_mov_b32 v42, %s" % s(sONE_LO))
        I("v_mov_b32 v43, %s" % s(sONE_HI))
        I("v_cndmask_b32_e64 v42, v42, v43, %s" % s(sODD, 2))
        for j in range(4): I("v_cndmask_b32_e64 %s, 0, v42, %s" % (v(38 + j), s(sSEL + 2 * j, 2)))
        I("s_mov_b32 s90, 0xff00ff00"); I("s_mov_b32 s91, 0xff00ff00")
        I("s_mov_b32 s13, 0")
        LR = A.newlabel("L_rs")
        A.label(LR)
        for i in range(4):
            I("buffer_load_dwordx4 %s, %s, s[4:7], %s offen offset:%d sc1" % (v(48 + 4 * i, 4), v(L16S), s(sRR), 1024 * i))
        I("s_add_u32 s13, s13, 1")
        I("s_cmp_gt_u32 s13, %d" % SPIN_MAX)
        I("s_cbranch_scc1 L_FAIL", noflush=True)
        I("s_waitcnt vmcnt(0)")
        ne = lambda d, a_, b_: I("v_bitop3_b32 %s, %s, %s, %s bitop3:0x7e" % (v(d), v(a_), v(b_), s(sTAG)))
        mf(64, 38, 48, "0")
        if cls == "3": ne(44, 49, 51); ne(45, 53, 55)
        else: ne(44, 51, 55)
        mf(64, 38, 52, v(64, 4))
        if cls == "3": ne(46, 57, 59); ne(47, 61, 63)
        else: ne(45, 59, 63)
        mf(64, 38, 56, v(64, 4))
        if cls == "3": I("v_or3_b32 v44, v44, v46, v47")
        I("v_bitop3_b32 v44, v44, v45, 1 bitop3:0xa8")
        mf(64, 38, 60, v(64, 4))
        I("v_cmp_ne_u32 vcc, 0, v44")
        I("s_cbranch_vccnz %s" % LR, noflush=True)
        ts(6)
        for r in range(4):
            I("v_add_f32_dpp %s, %s, %s row_ror:8 row_mask:0xf bank_mask:0xf" % (v(68 + r), v(64 + r), v(64 + r)))
        cvt(72, 68, 69); cvt(73, 70, 71)
        I("v_cndmask_b32_e64 v72, v72, v73, s[90:91]")
        I("s_mov_b64 exec, %s" % s(sMLO, 2))
        I("buffer_store_dword v72, %s, s[4:7], %s offen%s" % (v(PUB), s(sPUB), ST))
        I("s_mov_b64 exec, -1")
        ts(7)
        I("s_add_u32 %s, %s, %d" % (s(sPUB), s(sPUB), M_S))
    if cls == "3": A.label(Lnors)
    if w0:
        I("s_waitcnt vmcnt(3)")
        w0_check(A)
    shadow_init(A, cls)
    if prof: I("s_mov_b32 s12, %s" % s(STAMP[8]))
    ts(8)
    ts_store()
    tl_mark(A, 74)
    if w0:
        I("s_branch %s" % LB1)
    else:
        I("s_branch %s" % LTOP)
    A.label(LEND)
    I("s_nop 7"); I("s_nop 7")
    I("s_waitcnt vmcnt(0)")
    I("s_mov_b32 %s, %s" % (s(sFMKV), s(sFCUR)))
    signal(A, sFMKV, 44)
    tl_mark(A, 74)
    I("s_branch L_END")

def step0(A):
    I = A.I
    load_srd(A, S_W2, 32, 9216)
    I("v_subrev_u32 v60, %d, %s" % (STG, v(L16S)))
    I("v_lshrrev_b32 v61, 4, v60")
    I("v_bfe_u32 v62, v61, 2, 2"); I("v_lshlrev_b32 v62, 1, v62")
    I("v_and_b32 v63, 1, v61"); I("v_add_u32 v62, v62, v63")
    I("v_mul_u32_u24 v62, 1152, v62")
    I("v_lshrrev_b32 v63, 4, v61")
    I("v_lshl_add_u32 v62, v63, 4, v62")
    I("v_bfe_u32 v63, v61, 1, 1")
    I("v_lshl_add_u32 v62, v63, 6, v62")
    I("s_lshl_b32 s3, %s, 7" % s(S_WAVE))
    I("buffer_load_dwordx4 v[38:41], v62, s[12:15], s3 offen")
    I("buffer_load_dwordx4 v[42:45], v62, s[12:15], s3 offen offset:512")
    I("buffer_load_dwordx4 v[46:49], v62, s[12:15], 0 offen offset:1024")
    I("s_waitcnt vmcnt(0)")
    I("v_add_u32 v52, %s, %s" % (s(sW1024), v(L16S)))
    I("ds_write_b128 v52, v[38:41]")
    I("ds_write_b128 v52, v[42:45] offset:4096")
    I("ds_write_b128 %s, v[46:49] offset:8192" % v(L16S))

def chain_role(A, opt):
    G1.setup(A, opt)
    lane_consts(A)
    lane_consts2(A)
    G1.load_weights(A)
    scalars(A)
    tl_mark(A, 44)
    wait_all_arrived(A, vtmp=43)
    tl_mark(A, 44)
    step0(A)
    I = A.I
    mode = opt.get("chain_mode", "auto")
    def classes(sc1):
        tag = "s" if sc1 else "p"
        I("s_cmp_eq_u32 %s, 0" % s(S_WAVE)); I("s_cbranch_scc1 L_cls0%s" % tag)
        I("s_cmp_eq_u32 %s, 3" % s(S_WAVE)); I("s_cbranch_scc1 L_cls3%s" % tag)
        for cls in ("12", "0", "3"):
            if cls != "12": A.label("L_cls%s%s" % (cls, tag))
            if cls == "0":
                w0_spin(A)
                w0_next(A)
            shadow_init(A, cls)
            I("s_waitcnt lgkmcnt(0)")
            step_loop(A, opt, sc1, cls)
    if mode == "auto":
        I("s_lshl_b32 s3, %s, 2" % s(sL))
        I("s_add_u32 s3, s3, 4")
        I("s_load_dword s90, s[24:25], s3 glc")
        I("s_waitcnt lgkmcnt(0)")
        I("s_bcnt1_i32_b32 s90, s90")
        I("s_cmp_eq_u32 s90, 1")
        I("s_cbranch_scc0 L_ch_slow")
        classes(False)
        A.label("L_ch_slow")
        classes(True)
    else:
        classes(mode == "sc1")
```

```python
from g_work import *

NEGINF = 0xff800000
def mf32(A, d, x, y, c): A.I("v_mfma_f32_32x32x16_bf16 %s, %s, %s, %s" % (v(d, 16), x, y, c))
def mf8(A, d, x, y, c): A.I("v_mfma_f32_32x32x8bf16_1k %s, %s, %s, %s" % (v(d, 16), x, y, c))

def xhalf(A, op, r, tmp):
    A.I("v_mov_b32 %s, %s" % (v(tmp), v(r)))
    A.I("v_permlane32_swap_b32 %s, %s" % (v(r), v(tmp)))
    A.I("%s %s, %s, %s" % (op, v(r), v(r), v(tmp)))

def max_tree(A, dst, regs):
    I = A.I
    regs = list(regs)
    if len(regs) >= 12:
        nch = 4
        parts = [regs[i::nch] for i in range(nch)]
        st = [None] * nch
        done = False
        idx = [0] * nch
        while not done:
            done = True
            for c in range(nch):
                p = parts[c]; i = idx[c]
                if i >= len(p): continue
                done = False
                if st[c] is None:
                    if len(p) - i >= 3:
                        I("v_max3_f32 %s, %s, %s, %s" % (v(dst + c), v(p[i]), v(p[i + 1]), v(p[i + 2]))); idx[c] += 3
                    else:
                        I("v_max_f32 %s, %s, %s" % (v(dst + c), v(p[i]), v(p[i + 1]))); idx[c] += 2
                    st[c] = 1
                elif len(p) - i >= 2:
                    I("v_max3_f32 %s, %s, %s, %s" % (v(dst + c), v(dst + c), v(p[i]), v(p[i + 1]))); idx[c] += 2
                else:
                    I("v_max_f32 %s, %s, %s" % (v(dst + c), v(dst + c), v(p[i]))); idx[c] += 1
        I("v_max3_f32 %s, %s, %s, %s" % (v(dst), v(dst), v(dst + 1), v(dst + 2)))
        I("v_max_f32 %s, %s, %s" % (v(dst), v(dst), v(dst + 3)))
    else:
        raise NotImplementedError

MSK = [40 + 2 * i for i in range(8)] + [64 + 2 * i for i in range(8)]
def causal_masks(A):
    I = A.I
    I("v_and_b32 v8, 31, %s" % v(LANE))
    I("v_lshrrev_b32 v9, 5, %s" % v(LANE))
    I("v_lshlrev_b32 v9, 2, v9")
    I("v_sub_u32 v8, v8, v9")
    for j in range(4):
        for r in range(4):
            I("v_cmp_le_i32_e64 %s, %d, v8" % (s(MSK[4 * j + r], 2), 8 * j + r))

BSC = 128 ** -0.5 * 1.4426950408889634
def role_qa(A):
    I = A.I
    worker_setup(A)
    bw_load(A, 40)
    causal_masks(A)
    NEG = 5; MKO = 6; MVO = 7
    I("v_mov_b32 %s, 0x%x" % (v(NEG), NEGINF))
    I("v_lshrrev_b32 v9, 5, %s" % v(LANE))
    I("v_and_b32 v8, 7, %s" % v(LANE))
    I("v_lshlrev_b32 v8, 4, v8")
    I("v_lshl_add_u32 %s, v9, 7, v8" % v(MKO))
    I("v_and_b32 v8, 31, %s" % v(LANE))
    I("v_lshlrev_b32 v8, 4, v8")
    I("v_lshl_add_u32 v8, v9, 3, v8")
    I("v_add_u32 %s, 2048, v8" % v(MVO))
    I("s_mov_b32 %s, 0x%x" % (s(sSC), fb(BSC)))
    fw = ((F_XN + 64) * FSTR, 128 * FSTR, FSTR, [])
    fs = (F_OB * FSTR, 64 * 4 * FSTR, 4 * FSTR, [(62, FSTR)])
    xb = (W_XN + XN_K, 2 * XN_K, SEGB, [])
    ob = (W_OB, 64 * OB_S, OB_S, [(S_IDX, 8192)])
    I("s_lshr_b32 s62, %s, 3" % s(S_IDX))
    task_init(A, fw, fs, xb, ob)
    sFK, sFM, sKV, sMK = 80, 81, 82, 83
    ex = ((sFK, (F_KV * FSTR, 64 * 32 * FSTR, 32 * FSTR, [(S_IDX, FSTR)])),
          (sFM, (F_MKV * FSTR, 64 * 32 * FSTR, 32 * FSTR, [(S_IDX, FSTR)])),
          (sKV, (W_KV, 64 * 32 * KV_H, 32 * KV_H, [(S_IDX, KV_H)])),
          (sMK, (W_MKV, 64 * 32 * MKV_H, 32 * MKV_H, [(S_IDX, MKV_H)])))
    for dst, (c0, cl, cs, e) in ex: lin(A, dst, c0, [(sLy, cl), (sSeg, cs)] + e)
    I("v_cmp_eq_u32 vcc, 1, %s" % v(LANE))
    I("v_mov_b32 v11, 2"); I("v_mov_b32 v12, %d" % (2 * 32 * FSTR))
    I("v_mov_b32 v8, 4"); I("v_mov_b32 v9, 0x%x" % ((F_MKV - F_KV) * FSTR))
    I("v_cndmask_b32 v11, v11, v8, vcc"); I("v_cndmask_b32 v12, v12, v9, vcc")
    start_sync(A)
    A.label("L_qa_top")
    task_head(A, sFK, 2)
    KA, VA, MKA, MVA = 144, 176, 208, 240
    def kvl(t):
        def f():
            if t % 4 == 0 and t: I("s_add_u32 %s, %s, %d" % (s(sT), s(sKV), t * 1024))
            return I(("buffer_load_dwordx4 %s, %s, s[4:7], %s offen offset:%d" + LD) % (a(KA + 4 * t, 4), v(L16), s(sKV if t < 4 else sT), (t % 4) * 1024))
        return f
    toks = XL(A, 36, sX, extra=[kvl(t) for t in range(16)], nup="pre")
    def mloads():
        mt = []
        for t in range(8):
            mt.append(I(("buffer_load_dwordx4 %s, %s, s[4:7], %s offen offset:%d" + LD) % (a(MKA + 4 * t, 4), v(MKO), s(sMK), t * 256)))
        for tau in range(4):
            mvt = I(("buffer_load_dwordx2 %s, %s, s[4:7], %s offen offset:%d" + LD) % (a(MVA + 2 * tau, 2), v(MVO), s(sMK), tau * 512))
        return mt, mvt
    sHV = 84
    TP, TC = 22, 29
    def poll(): I("buffer_load_dword v14, v12, s[4:7], %s offen sc1" % s(sFK))
    def check(): I("v_cmp_le_u32 vcc, v11, v14")
    def more():
        Ls = A.newlabel("L_qa_nm")
        I("s_bfe_u32 %s, vcc_lo, 0x10001" % s(sHV))
        I("s_cmp_eq_u32 %s, 0" % s(sHV))
        I("s_cbranch_scc1 %s" % Ls)
        mloads()
        A.label(Ls)
    gemm_core(A, 36, 4, False, xtoks=toks, fill=look_fill(A, None, None, None, 2 * SEGB, TP, TC, more=more, poll=poll, check=check))
    if TL.get("tlq"): tl_mark(A, 13)
    QF = 16
    for tau in range(4):
        for jj in range(2):
            for m in range(4):
                x0 = ACC + 16 * tau + 8 * jj + 2 * m
                I("v_cvt_pk_bf16_f32 %s, %s, %s" % (v(QF + 4 * (2 * tau + jj) + m), v(x0), v(x0 + 1)))
    SX, SM = 64, 80
    for t in range(8): mf32(A, SX, a(KA + 4 * t, 4), v(QF + 4 * t, 4), "0" if t == 0 else v(SX, 16))
    if TL.get("tlq"): tl_mark(A, 13)
    Lh = A.newlabel("L_qa_hv")
    I("s_cmp_eq_u32 %s, 1" % s(sHV))
    I("s_cbranch_scc1 %s" % Lh)
    spin_flag(A, sFM, 4)
    mloads()
    A.label(Lh)
    for i in range(16): I("v_cndmask_b32_e64 %s, %s, %s, %s" % (v(SX + i), v(NEG), v(SX + i), s(MSK[i], 2)))
    I("s_waitcnt vmcnt(0)")
    for t in range(8):
        mf32(A, SM, a(MKA + 4 * t, 4), v(QF + 4 * t, 4), "0" if t == 0 else v(SM, 16))
    if TL.get("tlq"): tl_mark(A, 13)
    M_ = 48
    max_tree(A, M_, list(range(SX, SX + 16)) + list(range(SM, SM + 4)))
    xhalf(A, "v_max_f32", M_, 52)
    I("v_mul_f32 %s, %s, %s" % (v(M_), s(sSC), v(M_)))
    for r in list(range(SX, SX + 16)) + list(range(SM, SM + 4)):
        I("v_fma_f32 %s, %s, %s, -%s" % (v(r), v(r), s(sSC), v(M_)))
        I("v_exp_f32 %s, %s" % (v(r), v(r)))
    P0, PM = 16, 24
    for jj in range(2):
        for m in range(4): I("v_cvt_pk_bf16_f32 %s, %s, %s" % (v(P0 + 4 * jj + m), v(SX + 8 * jj + 2 * m), v(SX + 8 * jj + 2 * m + 1)))
    for m in range(2): I("v_cvt_pk_bf16_f32 %s, %s, %s" % (v(PM + m), v(SM + 2 * m), v(SM + 2 * m + 1)))
    OAc = 96
    for tau in range(4):
        mf32(A, OAc + 16 * tau, a(VA + 4 * (2 * tau), 4), v(P0, 4), "0")
        mf32(A, OAc + 16 * tau, a(VA + 4 * (2 * tau + 1), 4), v(P0 + 4, 4), v(OAc + 16 * tau, 16))
        mf8(A, OAc + 16 * tau, a(MVA + 2 * tau, 2), v(PM, 2), v(OAc + 16 * tau, 16))
        if tau == 0:
            regs = list(range(SX, SX + 16)) + list(range(SM, SM + 4))
            for c in range(4):
                p = regs[c::4]
                I("v_add_f32 %s, %s, %s" % (v(28 + c), v(p[0]), v(p[1])))
            for k in range(2, 5):
                for c in range(4): I("v_add_f32 %s, %s, %s" % (v(28 + c), v(28 + c), v(regs[c::4][k])))
            I("v_add_f32 v28, v28, v29"); I("v_add_f32 v30, v30, v31"); I("v_add_f32 v28, v28, v30")
            xhalf(A, "v_add_f32", 28, 29)
            I("v_rcp_f32 v28, v28")
            I("v_mov_b32 v29, v28")
    units = [((2 * tau + jj) * 1024, [(OAc + 16 * tau + 8 * jj + i, None) for i in range(8)]) for tau in range(4) for jj in range(2)]
    for tau in range(4):
        for i in range(0, 16, 2): I("v_pk_mul_f32 %s, %s, v[28:29]" % (v(OAc + 16 * tau + i, 2), v(OAc + 16 * tau + i, 2)))
        store_units(A, units[2 * tau:2 * tau + 2], sO, L16, tmp=32 + 8 * (tau & 1))
    I("s_mov_b32 %s, %s" % (s(sPS), s(sFS)))
    for dst, (c0, cl, cs, e) in ex: I("s_add_u32 %s, %s, 0x%x" % (s(dst), s(dst), 2 * cs))
    task_next(A, fw, fs, xb, ob, "L_qa_top")

def role_aa(A, naa):
    I = A.I
    worker_setup(A)
    causal_masks(A)
    NW = 2 * naa
    NEG, VA0, U1, U2, XOF, TOK16 = 5, 6, 7, 8, 9, 10
    I("v_mov_b32 %s, 0x%x" % (v(NEG), NEGINF))
    I("v_and_b32 v11, 31, %s" % v(LANE))
    I("v_lshrrev_b32 v12, 5, %s" % v(LANE))
    I("v_lshlrev_b32 %s, 4, v11" % v(TOK16))
    I("s_mov_b32 s3, 0x%x" % OOB)
    I("v_mul_lo_u32 v13, v12, s3")
    I("v_add_u32 %s, v13, %s" % (v(XOF), v(TOK16)))
    I("v_and_b32 v13, 3, v11"); I("v_lshlrev_b32 v13, 11, v13")
    I("v_lshrrev_b32 v14, 2, v11"); I("v_lshl_add_u32 v14, v12, 5, v14")
    I("v_lshl_add_u32 v13, v14, 4, v13")
    I("v_add_u32 v13, 65536, v13")
    I("v_subrev_u32 v14, 16, v11"); I("v_lshlrev_b32 v14, 11, v14")
    I("v_lshl_add_u32 v14, v12, 9, v14")
    I("v_add_u32 v14, %d, v14" % (98304 + 8192))
    I("v_add_u32 v15, %d, %s" % (98304 + 8192 + 4096, v(L16)))
    I("v_cmp_gt_u32 vcc, 16, v11")
    I("v_cndmask_b32 %s, 0, 1, vcc" % v(U1)) if False else None
    I("v_cndmask_b32_e64 %s, 0, 1, vcc" % v(U1))
    I("v_cmp_gt_u32_e64 s[90:91], 18, v11")
    I("v_cndmask_b32_e64 v15, v15, v14, s[90:91]")
    I("v_cndmask_b32_e64 %s, v15, v13, vcc" % v(VA0))
    I("v_cndmask_b32_e64 %s, 0, 1, s[90:91]" % v(U2))
    I("v_sub_u32 %s, %s, %s" % (v(U2), v(U2), v(U1)))
    KA, KX, VV = 0, 36, 64
    I("v_mov_b32 v21, 0")
    for k in range(9): I("v_accvgpr_write_b32 %s, 0" % a(KX + 2 * k + 1))
    sTK, sHead, sFQ = 62, 63, 80
    SB = 81
    I("s_lshl_b32 %s, s60, 2" % s(sTK))
    I("s_add_u32 %s, %s, %s" % (s(sTK), s(sTK), s(S_WAVE)))
    I("s_and_b32 %s, %s, 1" % (s(sLy), s(sTK)))
    I("s_lshr_b32 %s, %s, 1" % (s(sTK), s(sTK)))
    start_sync(A)
    A.label("L_aa_top")
    I("s_lshr_b32 %s, %s, 5" % (s(sSeg), s(sTK)))
    I("s_and_b32 %s, %s, 31" % (s(sHead), s(sTK)))
    I("s_lshl_b32 %s, %s, 6" % (s(sT), s(sLy)))
    I("s_add_u32 %s, %s, %s" % (s(sT), s(sT), s(sSeg)))
    I("s_lshl_b32 %s, %s, 6" % (s(sFQ), s(sT)))
    I("s_add_u32 %s, %s, %d" % (s(sFS), s(sFQ), F_OA * FSTR))
    I("s_add_u32 %s, %s, %d" % (s(sFQ), s(sFQ), F_QKVA * FSTR))
    I("s_lshl_b32 %s, %s, 6" % (s(sT2), s(sLy)))
    for k in range(9):
        I("s_sub_i32 s3, %s, %d" % (s(sSeg), 8 - k))
        I("s_max_i32 s3, s3, 0")
        I("s_add_u32 s3, s3, %s" % s(sT2))
        I("s_lshl_b32 s3, s3, 17")
        I("s_add_u32 %s, s3, 0x%x" % (s(SB + k), W_QKVA))
    I("s_mul_i32 %s, %s, %d" % (s(sO), s(sT), SEGB))
    I("s_add_u32 %s, %s, 0x%x" % (s(sO), s(sO), W_OA))
    I("s_lshl_b32 s91, %s, 10" % s(sHead))
    I("v_add_u32 v22, s91, %s" % v(L16))
    I("v_add_u32 v23, 32768, v22")
    I("s_lshr_b32 s92, %s, 3" % s(sHead)); I("s_lshl_b32 s93, s92, 10")
    I("s_bfe_u32 s94, %s, 0x10002" % s(sHead)); I("s_lshl_b32 s94, s94, 9"); I("s_add_u32 s93, s93, s94")
    I("s_and_b32 s94, %s, 3" % s(sHead)); I("s_lshl_b32 s94, s94, 2"); I("s_add_u32 s93, s93, s94")
    I("s_add_u32 s94, s93, 98304")
    I("v_add_u32 v24, s94, %s" % v(XOF))
    I("v_add_u32 v25, 4096, v24")
    I("s_add_u32 s94, s93, 32768")
    I("v_add_u32 v27, s94, %s" % v(XOF))
    I("s_lshl_b32 s92, s92, 13"); I("s_and_b32 s94, %s, 7" % s(sHead)); I("s_lshl_b32 s94, s94, 6"); I("s_add_u32 s92, s92, s94")
    I("s_lshl_b32 s94, %s, 4" % s(sHead))
    I("v_mad_u32_u24 v26, %s, s92, %s" % (v(U1), v(VA0)))
    I("v_mad_u32_u24 v26, %s, s94, v26" % v(U2))
    I("s_cmp_eq_u32 %s, 0" % s(sSeg))
    I("s_cselect_b32 s3, 0, %d" % FSTR)
    I("s_sub_u32 %s, %s, s3" % (s(sFQ), s(sFQ)))
    I("v_lshrrev_b32 v14, 5, %s" % v(LANE))
    I("v_mul_u32_u24 v14, s3, v14")
    spin_flag_sig(A, sFQ, 15, sPS, voff=14)
    if TL.get("tl2"): tl_mark(A, 13)
    qt = I(("buffer_load_dwordx4 v[16:19], v22, s[4:7], %s offen" + LD) % s(SB + 8))
    qt = I(("buffer_load_dword v20, v24, s[4:7], %s offen" + LD) % s(SB + 8))
    kt = {}
    for k in range(8, -1, -1):
        I(("buffer_load_dwordx4 %s, v23, s[4:7], %s offen" + LD) % (a(KA + 4 * k, 4), s(SB + k)))
        kt[k] = I(("buffer_load_dword %s, v25, s[4:7], %s offen" + LD) % (a(KX + 2 * k), s(SB + k)))
    vt = {}
    for k in range(8, -1, -1):
        I(("buffer_load_dwordx4 %s, v26, s[4:7], %s offen" + LD) % (a(VV + 8 * k, 4), s(SB + k)))
        vt[k] = I(("buffer_load_dwordx4 %s, v26, s[4:7], %s offen offset:1024" + LD) % (a(VV + 8 * k + 4, 4), s(SB + k)))
    S0 = 64
    for k in range(8, -1, -1):
        A.wait_vm(kt[k])
        mf32(A, S0 + 16 * k, a(KA + 4 * k, 4), v(16, 4), "0")
        mf8(A, S0 + 16 * k, a(KX + 2 * k, 2), v(20, 2), v(S0 + 16 * k, 16))
        if k == 6:
            for i in range(16): I("v_cndmask_b32_e64 %s, %s, %s, %s" % (v(S0 + 128 + i), v(NEG), v(S0 + 128 + i), s(MSK[i], 2)))
    for i in range(16): I("v_cndmask_b32_e64 %s, %s, %s, %s" % (v(S0 + i), v(S0 + i), v(NEG), s(MSK[i], 2)))
    Lfix = A.newlabel("L_aa_fix"); Lback = A.newlabel("L_aa_back")
    I("s_cmp_lt_u32 %s, 8" % s(sSeg))
    I("s_cbranch_scc1 %s" % Lfix)
    A.label(Lback)
    M_ = 28
    max_tree(A, M_, range(S0, S0 + 144))
    xhalf(A, "v_max_f32", M_, 32)
    I("v_sub_f32 v32, 0, %s" % v(M_))
    I("v_mov_b32 v33, v32")
    OA_ = 40
    first = True
    for k in range(8, -1, -1):
        b = S0 + 16 * k
        for i in range(0, 16, 2): I("v_pk_add_f32 %s, %s, v[32:33]" % (v(b + i, 2), v(b + i, 2)))
        for i in range(16): I("v_exp_f32 %s, %s" % (v(b + i), v(b + i)))
        for jj in range(2):
            for m in range(4): I("v_cvt_pk_bf16_f32 %s, %s, %s" % (v(b + 8 * jj + m), v(b + 8 * jj + 2 * m), v(b + 8 * jj + 2 * m + 1)))
        A.wait_vm(vt[k])
        for jj in range(2):
            mf32(A, OA_, a(VV + 8 * k + 4 * jj, 4), v(b + 8 * jj, 4), "0" if first else v(OA_, 16))
            first = False
    I("v_rcp_f32 v34, %s" % v(OA_ + 10))
    for i in range(10): I("v_mul_f32 %s, %s, v34" % (v(OA_ + i), v(OA_ + i)))
    for m in range(4): I("v_cvt_pk_bf16_f32 %s, %s, %s" % (v(36 + m), v(OA_ + 2 * m), v(OA_ + 2 * m + 1)))
    I("v_cvt_pk_bf16_f32 v35, %s, %s" % (v(OA_ + 8), v(OA_ + 9)))
    I("buffer_store_dwordx4 v[36:39], v22, s[4:7], %s offen sc1" % s(sO))
    I("buffer_store_dword v35, v27, s[4:7], %s offen sc1" % s(sO))
    I("s_mov_b32 %s, %s" % (s(sPS), s(sFS)))
    tl_mark(A)
    I("s_add_u32 %s, %s, %d" % (s(sTK), s(sTK), NW))
    I("s_cmp_lt_u32 %s, 2048" % s(sTK))
    I("s_cbranch_scc1 L_aa_top")
    final_signal(A)
    A.label(Lfix)
    for k in range(8):
        Ls = A.newlabel("L_aa_fs")
        I("s_add_u32 s3, %s, %d" % (s(sSeg), k))
        I("s_cmp_ge_u32 s3, 8")
        I("s_cbranch_scc1 %s" % Ls)
        for i in range(16): I("v_mov_b32 %s, %s" % (v(S0 + 16 * k + i), v(NEG)))
        A.label(Ls)
    I("s_branch %s" % Lback)
```

```python
from g_common import *

WO = 0; STG = 147456; QX = 156672; KXM = 158720; KXL = 160768
IDX, L16S, XW, TR, KOFF, VOFF, OW, RSO, PUB, MKO = range(10)
KX = 10
VX = 30
T0 = 38
sL, sHEAD, sSTEP = 22, 23, 28
sAG, sAG2, sAG8 = 29, 30, 31
sKV, sKV2 = 32, 33
sMKV = 34
sFKV = 35
sFKVN = 36
sFMKV = 37
sRDY = 38
sRW = 39
sRR = 40
sPUB = 44
sPI = 45
sRSO = 46
sW1024 = 47
sDMAO = 48
sC, sNC = 49, 50
sMLO = 52
sSEL = 54
sODD = 62
sONE_LO, sONE_HI = 64, 65
sPF = 66
sCNT = 67
sG0 = 68
sNG = 69
sPLO, sPHI = 70, 71
sRB = 72
sTMP = 73
sT2 = 74
sPROF = 75
sMODE = 76
sRWH = 77
OOB = 0x7FFF0000

def wreg(f):
    return a(8 * f, 8) if f < 32 else v(80 + 8 * (f - 32), 8)
def wreg1(f, j):
    return (("a", 8 * f + j) if f < 32 else ("v", 80 + 8 * (f - 32) + j))
def widx(mat, tile, T): return (mat * 2 + tile) * 9 + T

def setup(A, opt):
    I = A.I
    I("s_and_b32 %s, s2, 1" % s(sL))
    I("s_mov_b32 %s, %s" % (s(sHEAD), s(S_IDX)))
    I("v_and_b32 v40, 63, v0")
    if opt.get("zero_flags", True) or opt.get("fill", False):
        for i in range(4): I("v_mov_b32 %s, -1" % v(44 + i))
        I("v_lshlrev_b32 v41, 4, v0")
        I("s_mul_i32 s3, %s, %d" % (s(sL), R_L))
        I("s_mul_i32 %s, %s, %d" % (s(sTMP), s(sHEAD), R_H))
        I("s_add_u32 s3, s3, %s" % s(sTMP))
        I("s_add_u32 s3, s3, %d" % W_R)
        for b in range(2):
            for k in range(2):
                I("s_add_u32 %s, s3, %d" % (s(sTMP), b * R_B + k * 4096))
                I("buffer_store_dwordx4 v[44:47], v41, s[4:7], %s offen sc1" % s(sTMP))
            I("s_add_u32 %s, s3, %d" % (s(sTMP), b * R_B + 8192))
            I("v_cmp_gt_u32 vcc, 64, v0")
            I("s_and_saveexec_b64 s[90:91], vcc")
            I("buffer_store_dwordx4 v[44:47], v41, s[4:7], %s offen sc1" % s(sTMP))
            I("s_mov_b64 exec, s[90:91]")
        I("s_mul_i32 s3, %s, %d" % (s(sL), M_L))
        I("s_mul_i32 %s, %s, %d" % (s(sTMP), s(sHEAD), 18432))
        I("s_add_u32 s3, s3, %s" % s(sTMP))
        I("s_add_u32 s3, s3, %d" % W_M)
        for k in range(4):
            I("s_add_u32 %s, s3, %d" % (s(sTMP), k * 4096))
            I("buffer_store_dwordx4 v[44:47], v41, s[4:7], %s offen sc1" % s(sTMP))
        I("s_add_u32 %s, s3, %d" % (s(sTMP), 4 * 4096))
        I("v_cmp_gt_u32 vcc, 128, v0")
        I("s_and_saveexec_b64 s[90:91], vcc")
        I("buffer_store_dwordx4 v[44:47], v41, s[4:7], %s offen sc1" % s(sTMP))
        I("s_mov_b64 exec, s[90:91]")
    I("s_getreg_b32 s3, hwreg(HW_REG_XCC_ID)")
    I("s_and_b32 s3, s3, 15")
    I("s_lshl_b32 s3, 1, s3")
    I("s_mov_b32 s97, s3")

def chain_arrive(A):
    I = A.I
    I("v_mov_b32 v79, s97")
    I("s_lshl_b32 s96, %s, 2" % s(sL))
    I("s_add_u32 s96, s96, 136")
    I("s_mov_b64 exec, 1")
    I("buffer_atomic_or v79, off, s[16:19], s96 sc1")
    I("s_mov_b64 exec, -1")
    I("s_sub_u32 s96, s96, 8")
    I("s_waitcnt vmcnt(0)")
    I("s_barrier")
    L = A.newlabel("L_carr")
    I("s_cmp_lg_u32 %s, 0" % s(S_WAVE))
    I("s_cbranch_scc1 %s" % L)
    I("s_mov_b64 exec, 1")
    I("v_mov_b32 v79, 1")
    I("buffer_atomic_add v79, off, s[16:19], s96 sc1")
    I("s_mov_b64 exec, -1")
    A.label(L)

def lane_consts(A):
    I = A.I
    l = 40
    I("v_and_b32 v40, 63, v0")
    t1, t2, t3 = 41, 42, 43
    I("s_lshl_b32 %s, %s, 10" % (s(sW1024), s(S_WAVE)))
    I("s_lshr_b32 s3, %s, 1" % s(S_WAVE))
    I("s_and_b32 %s, %s, 1" % (s(sTMP), s(S_WAVE)))
    I("v_lshlrev_b32 %s, 4, v40" % v(t1))
    I("v_add_u32 %s, %d, %s" % (v(L16S), STG, v(t1)))
    I("s_lshl_b32 %s, s3, 10" % s(sT2))
    I("s_lshl_b32 s90, %s, 8" % s(sTMP))
    I("s_add_u32 %s, %s, s90" % (s(sT2), s(sT2)))
    I("s_add_u32 %s, %s, %d" % (s(sT2), s(sT2), QX))
    I("v_lshrrev_b32 %s, 5, v40" % v(t1))
    I("v_lshlrev_b32 %s, 9, %s" % (v(t1), v(t1)))
    I("v_and_b32 %s, 15, v40" % v(t2))
    I("v_lshl_add_u32 %s, %s, 4, %s" % (v(t1), v(t2), v(t1)))
    I("v_bfe_u32 %s, v40, 4, 1" % v(t2))
    I("v_lshl_add_u32 %s, %s, 3, %s" % (v(t1), v(t2), v(t1)))
    I("v_add_u32 %s, %s, %s" % (v(XW), s(sT2), v(t1)))
    I("v_lshrrev_b32 %s, 5, v40" % v(t1))
    I("v_lshlrev_b32 %s, 8, %s" % (v(t1), v(t1)))
    I("v_bfe_u32 %s, v40, 4, 1" % v(t2))
    I("v_lshl_add_u32 %s, %s, 6, %s" % (v(t1), v(t2), v(t1)))
    I("v_bfe_u32 %s, v40, 2, 2" % v(t2))
    I("v_lshl_add_u32 %s, %s, 4, %s" % (v(t1), v(t2), v(t1)))
    I("v_and_b32 %s, 1, v40" % v(t2))
    I("v_lshl_add_u32 %s, %s, 3, %s" % (v(t1), v(t2), v(t1)))
    I("v_add_u32 %s, %d, %s" % (v(TR), QX, v(t1)))
    I("v_lshrrev_b32 %s, 5, v40" % v(t1))
    I("v_lshlrev_b32 %s, 10, %s" % (v(t1), v(t1)))
    I("v_bfe_u32 %s, v40, 4, 1" % v(t2))
    I("v_lshl_add_u32 %s, %s, 9, %s" % (v(t1), v(t2), v(t1)))
    I("v_bfe_u32 %s, v40, 3, 1" % v(t2))
    I("v_lshl_add_u32 %s, %s, 8, %s" % (v(t1), v(t2), v(t1)))
    I("v_and_b32 %s, 7, v40" % v(t2))
    I("v_lshl_add_u32 %s, %s, 4, %s" % (v(KOFF), v(t2), v(t1)))
    I("s_lshl_b32 %s, s3, 12" % s(sT2))
    I("s_lshl_b32 s90, %s, 8" % s(sTMP))
    I("s_add_u32 %s, %s, s90" % (s(sT2), s(sT2)))
    I("s_add_u32 %s, %s, 8192" % (s(sT2), s(sT2)))
    I("v_lshrrev_b32 %s, 5, v40" % v(t1))
    I("v_lshlrev_b32 %s, 10, %s" % (v(t1), v(t1)))
    I("v_bfe_u32 %s, v40, 4, 1" % v(t2))
    I("v_lshl_add_u32 %s, %s, 9, %s" % (v(t1), v(t2), v(t1)))
    I("v_and_b32 %s, 15, v40" % v(t2))
    I("v_lshl_add_u32 %s, %s, 4, %s" % (v(t1), v(t2), v(t1)))
    I("v_add_u32 %s, %s, %s" % (v(VOFF), s(sT2), v(t1)))
    I("s_lshl_b32 %s, s3, 10" % s(sT2))
    I("s_lshl_b32 s90, %s, 7" % s(sTMP))
    I("s_add_u32 %s, %s, s90" % (s(sT2), s(sT2)))
    I("s_add_u32 %s, %s, %d" % (s(sT2), s(sT2), STG))
    I("v_lshrrev_b32 %s, 4, v40" % v(t1))
    I("v_lshlrev_b32 %s, 8, %s" % (v(t1), v(t1)))
    I("v_and_b32 %s, 7, v40" % v(t2))
    I("v_lshl_add_u32 %s, %s, 4, %s" % (v(t1), v(t2), v(t1)))
    I("v_add_u32 %s, %s, %s" % (v(OW), s(sT2), v(t1)))
    I("v_lshrrev_b32 %s, 3, v40" % v(t1))
    I("v_mul_u32_u24 %s, 9216, %s" % (v(t1), v(t1)))
    I("v_and_b32 %s, 4, v40" % v(t2))
    I("v_lshl_add_u32 %s, %s, 6, %s" % (v(t1), v(t2), v(t1)))
    I("v_and_b32 %s, 3, v40" % v(t2))
    I("v_lshl_add_u32 %s, %s, 4, %s" % (v(RSO), v(t2), v(t1)))
    I("v_and_b32 %s, 4, v40" % v(t1))
    I("v_bfe_u32 %s, v40, 4, 1" % v(t2))
    I("v_lshl_add_u32 %s, %s, 1, %s" % (v(t1), v(t2), v(t1)))
    I("v_bfe_u32 %s, v40, 3, 1" % v(t2))
    I("v_add_u32 %s, %s, %s" % (v(t1), v(t2), v(t1)))
    I("v_lshlrev_b32 %s, 4, %s" % (v(t1), v(t1)))
    I("v_and_b32 %s, 3, v40" % v(t2))
    I("v_lshl_add_u32 %s, %s, 2, %s" % (v(PUB), v(t2), v(t1)))

def load_weights(A, hooks={}):
    I = A.I
    I("v_lshrrev_b32 v41, 4, v40")
    I("v_lshlrev_b32 v41, 15, v41")
    I("v_and_b32 v42, 15, v40")
    I("v_lshl_add_u32 v41, v42, 3, v41")
    I("s_and_b32 s3, %s, 1" % s(S_WAVE))
    I("s_lshl_b32 s3, s3, 7")
    I("s_lshr_b32 %s, %s, 1" % (s(sTMP), s(S_WAVE)))
    I("s_lshl_b32 %s, %s, 2" % (s(sTMP), s(sTMP)))
    I("s_add_u32 s3, s3, %s" % s(sTMP))
    I("s_lshl_b32 %s, %s, 8" % (s(sTMP), s(sHEAD)))
    I("s_add_u32 s3, s3, %s" % s(sTMP))
    I("v_add_u32 v41, s3, v41")
    I("v_add_u32 v42, 8192, v41")
    I("v_add_u32 v43, 8192, v42")
    I("v_add_u32 v44, 8192, v43")
    I("s_mov_b32 %s, 0x05040100" % s(sPLO))
    I("s_mov_b32 %s, 0x07060302" % s(sPHI))
    WB = 576 * 8192
    jobs = [(mat, T) for mat in range(3) for T in range(9)]
    bufs = [46, 62]
    def issue(job, buf):
        mat, T = job
        if T == 0:
            load_srd(A, S_W1, 40 + 8 * mat, WB)
        toks = []
        for bi, blk in enumerate((0, 32, 16, 48)):
            I("s_mov_b32 %s, %d" % (s(sTMP), (64 * T + blk) * 8192))
            for j in range(4):
                tok = I("buffer_load_dword %s, %s, s[8:11], %s offen" % (v(buf + bi * 4 + j), v(41 + j), s(sTMP)))
        return tok
    def finish(job, buf, tok):
        mat, T = job
        A.wait_vm(tok)
        for hi in range(2):
            for m in range(4):
                bi = 2 * hi + (m & 1); j = 2 * (m >> 1)
                lo_row, hi_row = buf + bi * 4 + j, buf + bi * 4 + j + 1
                for tile in range(2):
                    kind, r = wreg1(widx(mat, tile, T), 4 * hi + m)
                    sel = s(sPLO) if tile == 0 else s(sPHI)
                    if kind == "v":
                        I("v_perm_b32 %s, %s, %s, %s" % (v(r), v(hi_row), v(lo_row), sel))
                    else:
                        I("v_perm_b32 v78, %s, %s, %s" % (v(hi_row), v(lo_row), sel))
                        I("v_accvgpr_write_b32 %s, v78" % a(r))
    tok = issue(jobs[0], bufs[0])
    if "first" in hooks: hooks["first"]()
    for i, job in enumerate(jobs):
        nt = None
        if i + 1 == len(jobs) and "last" in hooks: hooks["last"]()
        if i + 1 < len(jobs):
            if jobs[i + 1] == (2, 0) and "sw2a" in hooks: hooks["sw2a"]()
            if jobs[i + 1][1] == 0: A.wait_vm()
            if jobs[i + 1] == (2, 0) and "sw2b" in hooks: hooks["sw2b"]()
            nt = issue(jobs[i + 1], bufs[(i + 1) & 1])
        if jobs[i + 1:i + 2] and jobs[i + 1][1] == 0:
            finish(job, bufs[i & 1], ("vm", A.vm_issued - 16))
            if jobs[i + 1][0] == 1:
                chain_arrive(A)
        else:
            finish(job, bufs[i & 1], tok)
        tok = nt
    if "lastb" in hooks: hooks["lastb"]()
    load_srd(A, S_W1, 64, 32 * 128 * 1152)
    I("v_lshrrev_b32 v41, 4, v40")
    I("v_mul_u32_u24 v41, 9216, v41")
    I("v_and_b32 v42, 15, v40")
    I("v_lshl_add_u32 v41, v42, 2, v41")
    I("v_add_u32 v42, 1152, v41")
    I("v_add_u32 v43, 4608, v41")
    I("v_add_u32 v44, 5760, v41")
    I("v_lshlrev_b32 v45, 4, v40")
    it = 90
    I("s_mov_b32 %s, %s" % (s(it), s(S_WAVE)))
    L = A.newlabel("L_wo")
    A.label(L)
    I("s_lshr_b32 s91, %s, 2" % s(it))
    I("s_bfe_u32 s92, %s, 0x10001" % s(it))
    I("s_and_b32 s93, %s, 1" % s(it))
    I("s_mul_i32 s3, %s, 147456" % s(sHEAD))
    I("s_lshl_b32 s94, s91, 7"); I("s_add_u32 s3, s3, s94")
    I("s_lshl_b32 s94, s92, 6"); I("s_add_u32 s3, s3, s94")
    I("s_mul_i32 s94, s93, 2304"); I("s_add_u32 s3, s3, s94")
    buf = 46
    for hi in range(2):
        for m1 in range(2):
            I("s_add_u32 s94, s3, %d" % ((64 * m1 + 32 * hi) * 1152))
            for j in range(4):
                I("buffer_load_dword %s, %s, s[8:11], s94 offen" % (v(buf + (hi * 2 + m1) * 4 + j), v(41 + j)))
    I("s_lshl_b32 s94, s91, 14")
    I("s_lshl_b32 s95, s92, 12"); I("s_add_u32 s94, s94, s95")
    I("s_lshl_b32 s95, s93, 11"); I("s_add_u32 s94, s94, s95")
    I("v_add_u32 v62, s94, v45")
    A.wait_vm()
    for par in range(2):
        sel = s(sPLO) if par == 0 else s(sPHI)
        for hi in range(2):
            dst = 64 + (par * 2 + hi) * 4
            for m in range(4):
                base = buf + (hi * 2 + (m & 1)) * 4 + 2 * (m >> 1)
                I("v_perm_b32 %s, %s, %s, %s" % (v(dst + m), v(base + 1), v(base), sel))
            I("ds_write_b128 v62, %s offset:%d" % (v(dst, 4), par * 8192 + hi * 1024))
    I("s_add_u32 %s, %s, 4" % (s(it), s(it)))
    I("s_cmp_lt_u32 %s, 36" % s(it))
    I("s_cbranch_scc1 %s" % L)
    I("s_waitcnt lgkmcnt(0)")

def scalars(A):
    I = A.I
    I("s_mov_b32 %s, 0" % s(sSTEP))
    I("s_mul_i32 s3, %s, %d" % (s(sL), M_L))
    I("s_add_u32 s3, s3, %d" % (W_M - STG))
    I("s_add_u32 %s, s3, %s" % (s(sAG), s(sW1024)))
    I("s_add_u32 %s, %s, 4096" % (s(sAG2), s(sAG)))
    I("s_add_u32 %s, s3, 8192" % s(sAG8))
    I("s_lshl_b32 s3, %s, 11" % s(sL))
    I("s_add_u32 s3, s3, %s" % s(sHEAD))
    I("s_lshl_b32 %s, s3, 14" % s(sKV)); I("s_add_u32 %s, %s, %d" % (s(sKV), s(sKV), W_KV))
    I("s_lshl_b32 %s, s3, 12" % s(sMKV)); I("s_add_u32 %s, %s, %d" % (s(sMKV), s(sMKV), W_MKV))
    I("s_lshl_b32 %s, s3, 6" % s(sFKV))
    I("s_add_u32 %s, %s, %d" % (s(sFMKV), s(sFKV), F_MKV * FSTR))
    I("s_add_u32 %s, %s, %d" % (s(sFKV), s(sFKV), F_KV * FSTR))
    I("s_add_u32 %s, %s, %d" % (s(sFKVN), s(sFKV), 32 * FSTR))
    I("s_mov_b32 %s, 0" % s(sRDY))
    I("s_lshl_b32 s3, %s, 1" % s(S_WAVE))
    I("s_add_u32 s3, s3, 1")
    I("s_cmp_eq_u32 %s, 0" % s(S_WAVE))
    I("s_cselect_b32 s3, 0, s3")
    I("s_lshl_b32 %s, s3, 14" % s(sG0))
    I("s_lshl_b32 s3, s3, 10")
    I("s_mul_i32 %s, %s, %d" % (s(sRWH), s(sHEAD), R_H))
    I("s_add_u32 %s, %s, s3" % (s(sRWH), s(sRWH)))
    I("s_sub_u32 s3, %s, 1" % s(S_WAVE))
    I("s_lshl_b32 s3, s3, 5")
    I("s_add_u32 %s, s3, %s" % (s(sPI), s(sHEAD)))
    I("s_cmp_eq_u32 %s, 0" % s(S_WAVE))
    I("s_cselect_b32 %s, 1000, %s" % (s(sPI), s(sPI)))
    I("s_lshr_b32 s3, %s, 3" % s(sPI)); I("s_lshl_b32 %s, s3, 10" % s(sRSO))
    I("s_and_b32 s3, %s, 1" % s(sPI)); I("s_lshl_b32 s3, s3, 9"); I("s_add_u32 %s, %s, s3" % (s(sRSO), s(sRSO)))
    I("s_bfe_u32 s3, %s, 0x20001" % s(sPI)); I("s_lshl_b32 s3, s3, 6"); I("s_add_u32 %s, %s, s3" % (s(sRSO), s(sRSO)))
    I("s_mul_i32 s3, %s, %d" % (s(sL), M_L))
    I("s_add_u32 s3, s3, %d" % (W_M + M_S))
    I("s_lshl_b32 %s, %s, 7" % (s(sPUB), s(sPI)))
    I("s_add_u32 %s, %s, s3" % (s(sPUB), s(sPUB)))
    I("s_lshl_b32 s3, %s, 7" % s(S_WAVE))
    I("s_cmp_eq_u32 %s, 2" % s(S_WAVE))
    I("s_cselect_b32 %s, 2048, s3" % s(sDMAO))
    c = 128 ** -0.5 * 1.4426950408889634
    import struct
    fb = lambda x: struct.unpack("<I", struct.pack("<f", x))[0]
    I("s_mov_b32 %s, 0x%x" % (s(sC), fb(c)))
    I("s_mov_b32 %s, 0x%x" % (s(sNC), fb(-c)))
    I("s_mov_b32 %s, -1" % s(sMLO)); I("s_mov_b32 %s, 0" % s(sMLO + 1))
    for j in range(4):
        m = (3 << (2 * j)) * 0x01010101
        I("s_mov_b32 %s, 0x%x" % (s(sSEL + 2 * j), m)); I("s_mov_b32 %s, 0x%x" % (s(sSEL + 2 * j + 1), m))
    I("s_mov_b32 %s, 0xaaaaaaaa" % s(sODD)); I("s_mov_b32 %s, 0xaaaaaaaa" % s(sODD + 1))
    I("s_mov_b32 %s, 0x3f80" % s(sONE_LO)); I("s_mov_b32 %s, 0x3f800000" % s(sONE_HI))

PB_ = 78
def step_loop(A, opt, sc1):
    I = A.I
    prof = opt.get("prof")
    def ts(k):
        if prof:
            I("s_memtime s[78:79]")
            I("s_waitcnt lgkmcnt(0)")
            I("s_mov_b32 %s, s78" % s(80 + k))
    def ts_store():
        if prof:
            Lp = A.newlabel("L_prof")
            I("s_cmp_lg_u32 %s, %d" % (s(sHEAD), opt.get("prof_head", 0)))
            I("s_cbranch_scc1 %s" % Lp)
            I("s_lshl_b32 s3, %s, 6" % s(sL))
            I("s_add_u32 s3, s3, %s" % s(sSTEP))
            I("s_lshl_b32 s3, s3, 2")
            I("s_add_u32 s3, s3, %s" % s(S_WAVE))
            I("s_lshl_b32 s3, s3, 6")
            I("s_add_u32 s3, s3, 0xF000000")
            for k in range(10):
                I("v_mov_b32 v44, %s" % s(80 + k))
                I("buffer_store_dword v44, off, s[4:7], s3 offset:%d" % (4 * k))
            A.label(Lp)
    ST = " sc1" if sc1 else ""
    tag = "s" if sc1 else "p"
    LTOP = "L_ch_top_" + tag; LSTG = "L_ch_stg_" + tag; LEND = "L_ch_end_" + tag
    load_srd(A, S_W2, 32, 9216)
    I("v_subrev_u32 v60, %d, %s" % (STG, v(L16S)))
    I("v_lshrrev_b32 v61, 4, v60")
    I("v_and_b32 v62, 7, v61")
    I("v_mul_u32_u24 v62, 1152, v62")
    I("v_lshrrev_b32 v63, 4, v61")
    I("v_lshl_add_u32 v62, v63, 4, v62")
    I("v_bfe_u32 v63, v61, 3, 1")
    I("v_lshl_add_u32 v62, v63, 6, v62")
    I("s_lshl_b32 s3, %s, 7" % s(S_WAVE))
    I("buffer_load_dwordx4 v[38:41], v62, s[12:15], s3 offen")
    I("buffer_load_dwordx4 v[42:45], v62, s[12:15], s3 offen offset:512")
    I("buffer_load_dwordx4 v[46:49], v62, s[12:15], 0 offen offset:1024")
    I("buffer_load_dword v50, off, s[4:7], %s sc1" % s(sFKVN))
    I("s_waitcnt vmcnt(0)")
    I("s_branch %s" % LSTG)
    A.label(LTOP)
    I("s_mov_b32 %s, 0" % s(sCNT))
    LP = A.newlabel("L_ag")
    A.label(LP)
    I("buffer_load_dwordx4 v[38:41], %s, s[4:7], %s offen sc1" % (v(L16S), s(sAG)))
    I("buffer_load_dwordx4 v[42:45], %s, s[4:7], %s offen sc1" % (v(L16S), s(sAG2)))
    I("buffer_load_dwordx4 v[46:49], %s, s[4:7], %s offen sc1" % (v(L16S), s(sAG8)))
    I("buffer_load_dword v50, off, s[4:7], %s sc1" % s(sFKVN))
    I("s_add_u32 %s, %s, 1" % (s(sCNT), s(sCNT)))
    I("s_cmp_gt_u32 %s, %d" % (s(sCNT), SPIN_MAX))
    I("s_cbranch_scc1 L_FAIL")
    I("s_waitcnt vmcnt(0)")
    I("v_max3_u32 v51, v38, v39, v40")
    I("v_max3_u32 v52, v41, v42, v43")
    I("v_max3_u32 v53, v44, v45, v46")
    I("v_max3_u32 v54, v47, v48, v49")
    I("v_max3_u32 v51, v51, v52, v53")
    I("v_max_u32 v51, v51, v54")
    I("v_cmp_eq_u32 vcc, -1, v51")
    I("s_cbranch_vccnz %s" % LP)
    A.label(LSTG)
    I("v_add_u32 v52, %s, %s" % (s(sW1024), v(L16S)))
    I("ds_write_b128 v52, v[38:41]")
    I("ds_write_b128 v52, v[42:45] offset:4096")
    I("ds_write_b128 %s, v[46:49] offset:8192" % v(L16S))
    I("v_readfirstlane_b32 %s, v50" % s(sTMP))
    ts(0)
    Lr = A.newlabel("L_rdy")
    I("s_cmp_lg_u32 %s, 0" % s(sRDY))
    I("s_cbranch_scc1 %s" % Lr)
    spin_flag(A, sFKV, 2, vtmp=51)
    A.label(Lr)
    I("s_cmp_ge_u32 %s, 2" % s(sTMP))
    I("s_cselect_b32 %s, 1, 0" % s(sRDY))
    I("s_add_u32 %s, %s, 0x80000" % (s(sPF), s(sKV)))
    I("s_cmp_ge_u32 %s, 2" % s(sTMP))
    I("s_cselect_b32 %s, %s, 0x%x" % (s(sPF), s(sPF), OOB))
    I("s_add_u32 %s, %s, 4096" % (s(sKV2), s(sKV)))
    I("s_waitcnt lgkmcnt(0)")
    I("s_barrier")
    ts(1)
    Ld = A.newlabel("L_nodma")
    I("s_cmp_eq_u32 %s, 3" % s(S_WAVE))
    I("s_cbranch_scc1 %s" % Ld)
    I("s_add_u32 m0, %s, %d" % (s(sW1024), KXL))
    I("s_add_u32 s3, %s, %s" % (s(sKV), s(sDMAO)))
    I("buffer_load_dwordx4 %s, s[4:7], s3 offen sc1 lds" % v(KOFF))
    A.label(Ld)
    dma_mark = ("vm", A.vm_issued)
    AB = [38, 42, 46]
    at = {}
    def aread(T, buf):
        return I("ds_read_b128 %s, %s offset:%d" % (v(buf, 4), v(L16S), T * 1024))
    for T in range(3): at[T] = aread(T, AB[T])
    kt = {}
    kt["3A"] = I("buffer_load_dwordx4 %s, %s, s[4:7], %s offen offset:2048 sc1" % (v(KX + 12, 4), v(KOFF), s(sKV2)))
    kt["3B"] = I("buffer_load_dwordx4 %s, %s, s[4:7], %s offen offset:2176 sc1" % (v(KX + 16, 4), v(KOFF), s(sKV2)))
    kt["2A"] = I("buffer_load_dwordx4 %s, %s, s[4:7], %s offen sc1" % (v(KX + 4, 4), v(KOFF), s(sKV2)))
    kt["2B"] = I("buffer_load_dwordx4 %s, %s, s[4:7], %s offen offset:128 sc1" % (v(KX + 8, 4), v(KOFF), s(sKV2)))
    kt["1B"] = I("buffer_load_dwordx4 %s, %s, s[4:7], %s offen offset:2176 sc1" % (v(KX, 4), v(KOFF), s(sKV)))
    vtok = I("buffer_load_dwordx4 %s, %s, s[4:7], %s offen sc1" % (v(VX, 4), v(VOFF), s(sKV)))
    vtok = I("buffer_load_dwordx4 %s, %s, s[4:7], %s offen offset:2048 sc1" % (v(VX + 4, 4), v(VOFF), s(sKV)))
    QA_, QB_, KA_, KB_ = 50, 54, 58, 62
    for r in range(50, 66): I("v_mov_b32 %s, 0" % v(r))
    I("v_subrev_u32 v78, %d, %s" % (STG, v(L16S)))
    I("v_lshlrev_b32 v78, 2, v78")
    I("v_lshl_add_u32 v78, %s, 2, v78" % s(sW1024))
    I("buffer_load_dword v9, v78, s[4:7], %s offen sc1" % s(sPF))
    I("v_subrev_u32 v79, %d, %s" % (STG, v(L16S)))
    I("v_and_b32 v78, 0x70, v79")
    I("v_lshrrev_b32 v79, 8, v79")
    I("v_lshl_add_u32 v78, v79, 7, v78")
    I("v_lshl_add_u32 v78, %s, 9, v78" % s(S_WAVE))
    for T in range(9):
        A.wait_lgkm(at[T])
        buf = AB[T % 3]
        for acc, f in ((QA_, widx(0, 0, T)), (QB_, widx(0, 1, T)), (KA_, widx(1, 0, T)), (KB_, widx(1, 1, T))):
            I("v_smfmac_f32_16x16x64_bf16 %s, %s, %s, %s" % (v(acc, 4), v(buf, 4), wreg(f), v(IDX)))
        nT = T + 3
        at[nT] = aread(nT % 9, buf)
        if T == 5:
            for r in range(66, 74): I("v_mov_b32 %s, 0" % v(r))
    ts(2)
    VA_, VB_ = 66, 70
    def vstep(T):
        A.wait_lgkm(at[9 + T])
        buf = AB[T % 3]
        I("v_smfmac_f32_16x16x64_bf16 %s, %s, %s, %s" % (v(VA_, 4), v(buf, 4), wreg(widx(2, 0, T)), v(IDX)))
        I("v_smfmac_f32_16x16x64_bf16 %s, %s, %s, %s" % (v(VB_, 4), v(buf, 4), wreg(widx(2, 1, T)), v(IDX)))
        if T + 3 < 9: at[9 + T + 3] = aread(T + 3, buf)
    vstep(0)
    vstep(1)
    for r in range(4): I("v_permlane32_swap_b32 %s, %s" % (v(QA_ + r), v(QB_ + r)))
    vstep(2)
    for r in range(4): I("v_add_f32 %s, %s, %s" % (v(QA_ + r), v(QA_ + r), v(QB_ + r)))
    I("v_cvt_pk_bf16_f32 v74, %s, %s" % (v(QA_), v(QA_ + 1)))
    I("v_cvt_pk_bf16_f32 v75, %s, %s" % (v(QA_ + 2), v(QA_ + 3)))
    for r in range(4): I("v_permlane32_swap_b32 %s, %s" % (v(KA_ + r), v(KB_ + r)))
    vstep(3)
    I("ds_write_b64 %s, v[74:75]" % v(XW))
    for r in range(4): I("v_add_f32 %s, %s, %s" % (v(KA_ + r), v(KA_ + r), v(KB_ + r)))
    I("v_cvt_pk_bf16_f32 v76, %s, %s" % (v(KA_), v(KA_ + 1)))
    I("v_cvt_pk_bf16_f32 v77, %s, %s" % (v(KA_ + 2), v(KA_ + 3)))
    vstep(4)
    I("ds_write_b64 %s, v[76:77] offset:2048" % v(XW))
    vstep(5)
    vstep(6)
    A.I("s_waitcnt vmcnt(%d) lgkmcnt(0)" % (A.vm_issued - dma_mark[1]))
    I("s_barrier")
    ts(3)
    def trq(Tp, dst):
        I("ds_read_b64_tr_b16 %s, %s offset:%d" % (v(dst, 2), v(TR), Tp * 512))
        return I("ds_read_b64_tr_b16 %s, %s offset:%d" % (v(dst + 2, 2), v(TR), Tp * 512 + 128))
    def trk(Tp, dst):
        I("ds_read_b64_tr_b16 %s, %s offset:%d" % (v(dst, 2), v(TR), 2048 + Tp * 512))
        return I("ds_read_b64_tr_b16 %s, %s offset:%d" % (v(dst + 2, 2), v(TR), 2048 + Tp * 512 + 128))
    tq3 = trq(3, 50); tk3 = trk(3, 54)
    at[9 + 7] = at[9 + 8] = None
    tq2 = trq(2, 58); tk2 = trk(2, 62)
    tq1 = trq(1, 74)
    for T in (7, 8):
        buf = AB[T % 3]
        I("v_smfmac_f32_16x16x64_bf16 %s, %s, %s, %s" % (v(VA_, 4), v(buf, 4), wreg(widx(2, 0, T)), v(IDX)))
        I("v_smfmac_f32_16x16x64_bf16 %s, %s, %s, %s" % (v(VB_, 4), v(buf, 4), wreg(widx(2, 1, T)), v(IDX)))
    S0, SA, SB = 38, 42, 46
    def mf(d, x, y, c): I("v_mfma_f32_16x16x32_bf16 %s, %s, %s, %s" % (v(d, 4), v(x, 4), v(y, 4), c))
    A.wait_lgkm(tq3); A.wait_vm(kt["3B"])
    mf(SA, KX + 12, 50, "0"); mf(SB, KX + 16, 50, "0")
    A.wait_lgkm(tk3)
    mf(S0, 54, 50, "0")
    tk1 = trk(1, 54)
    t1A = I("ds_read_b128 %s, %s offset:%d" % (v(KX + 12, 4), v(L16S), KXL - STG + 2 * 1024))
    tq0 = trq(0, 50)
    t0A = I("ds_read_b128 %s, %s offset:%d" % (v(KX + 16, 4), v(L16S), KXL - STG + 0 * 1024))
    A.wait_lgkm(tq2); A.wait_vm(kt["2B"])
    mf(SA, KX + 4, 58, v(SA, 4)); mf(SB, KX + 8, 58, v(SB, 4))
    A.wait_lgkm(tk2)
    mf(S0, 62, 58, v(S0, 4))
    tk0 = trk(0, 58)
    t0B = I("ds_read_b128 %s, %s offset:%d" % (v(KX + 4, 4), v(L16S), KXL - STG + 1 * 1024))
    for r in range(4): I("v_permlane32_swap_b32 %s, %s" % (v(VA_ + r), v(VB_ + r)))
    A.wait_vm(kt["1B"]); A.wait_lgkm(tq1)
    mf(SB, KX, 74, v(SB, 4))
    A.wait_lgkm(t1A)
    mf(SA, KX + 12, 74, v(SA, 4))
    A.wait_lgkm(tk1)
    mf(S0, 54, 74, v(S0, 4))
    for r in range(4): I("v_add_f32 %s, %s, %s" % (v(VA_ + r), v(VA_ + r), v(VB_ + r)))
    A.wait_lgkm(t0A)
    mf(SA, KX + 16, 50, v(SA, 4))
    A.wait_lgkm(tk0)
    mf(S0, 58, 50, v(S0, 4))
    A.wait_lgkm(t0B)
    mf(SB, KX + 4, 50, v(SB, 4))
    I("v_cvt_pk_bf16_f32 v70, %s, %s" % (v(VA_), v(VA_ + 1)))
    I("v_cvt_pk_bf16_f32 v71, %s, %s" % (v(VA_ + 2), v(VA_ + 3)))
    I("v_mov_b32 v72, 0"); I("v_mov_b32 v73, 0")
    I("s_add_u32 s3, %s, %d" % (s(sMKV), 2048 - QX))
    I("buffer_store_dwordx2 v[70:71], %s, s[4:7], s3 offen sc1" % v(XW))
    I("s_lshl_b32 s3, %s, 9" % s(S_WAVE))
    I("v_add_u32 v62, s3, %s" % v(TR))
    I("ds_read_b64_tr_b16 v[74:75], v62 offset:2048")
    tmk = I("ds_read_b64_tr_b16 v[76:77], v62 offset:2176")
    ts(4)
    I("v_max3_f32 v50, v38, v39, v40")
    I("v_max3_f32 v51, v41, v42, v43")
    I("v_max3_f32 v52, v44, v45, v46")
    I("v_max3_f32 v53, v47, v48, v49")
    I("v_max3_f32 v50, v50, v51, v52")
    I("v_max_f32 v50, v50, v53")
    I("v_mov_b32 v51, v50")
    I("v_permlane16_swap_b32 v50, v51")
    I("v_max_f32 v50, v50, v51")
    I("v_mov_b32 v51, v50")
    I("v_permlane32_swap_b32 v50, v51")
    I("v_max_f32 v50, v50, v51")
    I("v_mul_f32 v50, %s, v50" % s(sNC))
    for r in range(38, 50): I("v_fma_f32 %s, %s, %s, v50" % (v(r), v(r), s(sC)))
    A.wait_lgkm(tmk)
    I("buffer_store_dwordx4 v[74:77], v78, s[4:7], %s offen sc1" % (s(sMKV)))
    for r in range(42, 50): I("v_exp_f32 %s, %s" % (v(r), v(r)))
    for i in range(4): I("v_cvt_pk_bf16_f32 %s, %s, %s" % (v(52 + i), v(42 + 2 * i), v(43 + 2 * i)))
    for r in range(38, 42): I("v_exp_f32 %s, %s" % (v(r), v(r)))
    OA_, OB_ = 56, 60
    A.wait_vm(vtok)
    mf(OA_, VX, 52, "0"); mf(OB_, VX + 4, 52, "0")
    I("v_cvt_pk_bf16_f32 v50, v38, v39")
    I("v_cvt_pk_bf16_f32 v51, v40, v41")
    I("v_mov_b32 v66, 0"); I("v_mov_b32 v67, 0"); I("v_mov_b32 v12, 0"); I("v_mov_b32 v13, 0")
    I("v_cndmask_b32_e64 v64, 0, v50, %s" % s(sMLO, 2))
    I("v_cndmask_b32_e64 v65, 0, v51, %s" % s(sMLO, 2))
    I("v_cndmask_b32_e64 v10, v50, 0, %s" % s(sMLO, 2))
    I("v_cndmask_b32_e64 v11, v51, 0, %s" % s(sMLO, 2))
    mf(OA_, 70, 64, v(OA_, 4)); mf(OB_, 70, 10, v(OB_, 4))
    I("v_add_f32 v38, v38, v39"); I("v_add_f32 v40, v40, v41")
    I("v_add_f32 v42, v42, v43"); I("v_add_f32 v44, v44, v45")
    I("v_add_f32 v46, v46, v47"); I("v_add_f32 v48, v48, v49")
    I("v_add_f32 v38, v38, v40")
    I("v_add_f32 v42, v42, v44"); I("v_add_f32 v46, v46, v48")
    I("v_cndmask_b32_e64 v38, 0, v38, %s" % s(sMLO, 2))
    I("v_add_f32 v42, v42, v46")
    I("v_add_f32 v42, v42, v38")
    I("v_mov_b32 v43, v42")
    I("v_permlane16_swap_b32 v42, v43")
    I("v_add_f32 v42, v42, v43")
    I("v_mov_b32 v43, v42")
    I("v_permlane32_swap_b32 v42, v43")
    I("v_add_f32 v42, v42, v43")
    I("v_rcp_f32 v42, v42")
    I("s_cmp_eq_u32 %s, 63" % s(sSTEP))
    I("s_cbranch_scc1 %s" % LEND)
    for r in range(8): I("v_mul_f32 %s, %s, v42" % (v(OA_ + r), v(OA_ + r)))
    for r in range(4): I("v_cvt_pk_bf16_f32 %s, %s, %s" % (v(44 + r), v(OA_ + r), v(OB_ + r)))
    I("ds_write_b128 %s, v[44:47]" % v(OW))
    ts(5)
    BB = [10, 18, 26, 48, 72]
    OF = [34, 38]
    ACC = 56
    WA = 42
    I("v_subrev_u32 %s, %d, %s" % (v(WA), STG, v(L16S)))
    I("v_add_u32 %s, %s, %s" % (v(WA), s(sG0), v(WA)))
    seq = [(gi, x, T) for gi in range(3) for T in range(2) for x in range(4)]
    bt = {}
    def bread(k):
        gi, x, T = seq[k]
        b = BB[k % 5]
        off = gi * 16384 + x * 4096 + T * 2048
        I("ds_read_b128 %s, %s offset:%d" % (v(b, 4), v(WA), off))
        return I("ds_read_b128 %s, %s offset:%d" % (v(b + 4, 4), v(WA), off + 1024))
    A.wait_lgkm()
    for k in range(4): bt[k] = bread(k)
    I("s_barrier")
    of0 = I("ds_read_b128 %s, %s" % (v(OF[0], 4), v(L16S)))
    of1 = I("ds_read_b128 %s, %s offset:1024" % (v(OF[1], 4), v(L16S)))
    bt[4] = bread(4)
    I("s_mul_i32 s3, %s, %d" % (s(sL), R_L))
    I("s_and_b32 %s, %s, 1" % (s(sTMP), s(sSTEP)))
    I("s_mul_i32 %s, %s, %d" % (s(sTMP), s(sTMP), R_B))
    I("s_add_u32 %s, s3, %s" % (s(sRB), s(sTMP)))
    I("s_add_u32 %s, %s, %d" % (s(sRB), s(sRB), W_R))
    I("s_add_u32 %s, %s, %s" % (s(sRW), s(sRB), s(sRWH)))
    I("s_sub_u32 %s, %s, %d" % (s(sRW), s(sRW), STG))
    Lg3 = A.newlabel("L_g3skip")
    def gamma_block(gi, nxt):
        for r in range(16): I("v_mov_b32 %s, 0" % v(ACC + r))
        for kk in range(8):
            k = gi * 8 + kk
            _, x, T = seq[k]
            if kk == 0: A.wait_lgkm(of0)
            if kk == 4 and gi == 0: A.wait_lgkm(of1)
            A.wait_lgkm(bt[k])
            I("v_smfmac_f32_16x16x64_bf16 %s, %s, %s, %s" % (v(ACC + 4 * x, 4), v(OF[T], 4), v(BB[k % 5], 8), v(IDX)))
            if k + 5 < nxt: bt[k + 5] = bread(k + 5)
        for r in range(4): I("v_permlane32_swap_b32 %s, %s" % (v(ACC + r), v(ACC + 4 + r)))
        for r in range(4): I("v_permlane32_swap_b32 %s, %s" % (v(ACC + 8 + r), v(ACC + 12 + r)))
        for r in range(4): I("v_add_f32 %s, %s, %s" % (v(ACC + r), v(ACC + r), v(ACC + 4 + r)))
        for r in range(4): I("v_add_f32 %s, %s, %s" % (v(ACC + 8 + r), v(ACC + 8 + r), v(ACC + 12 + r)))
        for r in range(4): I("v_cvt_pk_bf16_f32 %s, %s, %s" % (v(44 + r), v(ACC + r), v(ACC + 8 + r)))
        I("buffer_store_dwordx4 v[44:47], %s, s[4:7], %s offen offset:%d%s" % (v(L16S), s(sRW), gi * 1024, ST))
    gamma_block(0, 24)
    gamma_block(1, 16)
    I("s_cmp_lg_u32 %s, 0" % s(S_WAVE))
    I("s_cbranch_scc1 %s" % Lg3)
    for k in range(16, 21):
        if k not in bt or True: bt[k] = bread(k)
    gamma_block(2, 24)
    A.label(Lg3)
    ts(6)
    ts_store()
    for r_ in (sAG, sAG2, sAG8): I("s_add_u32 %s, %s, %d" % (s(r_), s(r_), M_S))
    I("s_add_u32 %s, %s, 0x80000" % (s(sKV), s(sKV)))
    I("s_mov_b32 %s, %s" % (s(sFKV), s(sFKVN)))
    I("s_add_u32 %s, %s, %d" % (s(sFKVN), s(sFKVN), 32 * FSTR))
    I("s_add_u32 %s, %s, 1" % (s(sSTEP), s(sSTEP)))
    Lnors = A.newlabel("L_nors")
    I("s_cmp_ge_u32 %s, 72" % s(sPI))
    I("s_cbranch_scc1 %s" % Lnors)
    I("s_add_u32 %s, %s, %s" % (s(sRR), s(sRB), s(sRSO)))
    for i in range(1, 4): I("s_add_u32 %s, %s, %d" % (s(sRR + i), s(sRR + i - 1), 8 * R_H))
    I("v_mov_b32 v42, %s" % s(sONE_LO))
    I("v_mov_b32 v43, %s" % s(sONE_HI))
    I("v_cndmask_b32_e64 v42, v42, v43, %s" % s(sODD, 2))
    for j in range(4): I("v_cndmask_b32_e64 %s, 0, v42, %s" % (v(38 + j), s(sSEL + 2 * j, 2)))
    I("s_mov_b32 %s, 0" % s(sCNT))
    LR = A.newlabel("L_rs")
    A.label(LR)
    for i in range(4):
        I("buffer_load_dwordx4 %s, %s, s[4:7], %s offen sc1" % (v(48 + 4 * i, 4), v(RSO), s(sRR + i)))
    I("s_add_u32 %s, %s, 1" % (s(sCNT), s(sCNT)))
    I("s_cmp_gt_u32 %s, %d" % (s(sCNT), SPIN_MAX))
    I("s_cbranch_scc1 L_FAIL")
    I("s_waitcnt vmcnt(0)")
    I("v_max3_u32 v44, v48, v49, v50"); I("v_max3_u32 v45, v51, v52, v53")
    I("v_max3_u32 v46, v54, v55, v56"); I("v_max3_u32 v47, v57, v58, v59")
    I("v_max3_u32 v44, v44, v60, v61"); I("v_max3_u32 v45, v45, v62, v63")
    I("v_max3_u32 v44, v44, v45, v46")
    I("v_max_u32 v44, v44, v47")
    I("v_cmp_eq_u32 vcc, -1, v44")
    I("s_cbranch_vccnz %s" % LR)
    ts(7)
    mf(64, 38, 48, "0")
    for i in range(1, 4): mf(64, 38, 48 + 4 * i, v(64, 4))
    for i in range(4): I("v_mov_b32 %s, -1" % v(44 + i))
    for i in range(4):
        I("buffer_store_dwordx4 v[44:47], %s, s[4:7], %s offen%s" % (v(RSO), s(sRR + i), ST))
    for r in range(4):
        I("v_add_f32_dpp %s, %s, %s row_ror:8 row_mask:0xf bank_mask:0xf" % (v(68 + r), v(64 + r), v(64 + r)))
    I("v_cvt_pk_bf16_f32 v72, v68, v69")
    I("v_cvt_pk_bf16_f32 v73, v70, v71")
    I("s_mov_b32 s90, 0xff00ff00"); I("s_mov_b32 s91, 0xff00ff00")
    I("v_cndmask_b32_e64 v72, v72, v73, s[90:91]")
    I("s_mov_b64 exec, %s" % s(sMLO, 2))
    I("buffer_store_dword v72, %s, s[4:7], %s offen%s" % (v(PUB), s(sPUB), ST))
    I("s_mov_b64 exec, -1")
    signal(A, sFMKV, 44)
    Lj = A.newlabel("L_rsj")
    I("s_branch %s" % Lj)
    A.label(Lnors)
    I("s_waitcnt vmcnt(0)")
    signal(A, sFMKV, 44)
    A.label(Lj)
    ts(8)
    tl_mark(A, 44)
    I("s_add_u32 %s, %s, %d" % (s(sPUB), s(sPUB), M_S))
    I("s_add_u32 %s, %s, 0x20000" % (s(sMKV), s(sMKV)))
    I("s_add_u32 %s, %s, %d" % (s(sFMKV), s(sFMKV), 32 * FSTR))
    I("s_branch %s" % LTOP)
    A.label(LEND)
    I("s_waitcnt vmcnt(0)")
    signal(A, sFMKV, 44)
    I("s_branch L_END")

def chain_role(A, opt):
    setup(A, opt)
    lane_consts(A)
    load_weights(A)
    A.I("v_and_b32 v40, 63, v0") if False else None
    scalars(A)
    A.I("v_subrev_u32 v40, %d, %s" % (STG, v(L16S)))
    A.I("v_mov_b32 v41, 0x44444444"); A.I("v_mov_b32 v42, 0xeeeeeeee")
    A.I("v_and_b32 v40, 128, v40")
    A.I("v_cmp_eq_u32 vcc, 0, v40")
    A.I("v_cndmask_b32 %s, v42, v41, vcc" % v(IDX))
    tl_mark(A, 44)
    wait_all_arrived(A, vtmp=43)
    tl_mark(A, 44)
    mode = opt.get("chain_mode", "auto")
    if mode == "auto":
        A.I("s_lshl_b32 s3, %s, 2" % s(sL))
        A.I("s_add_u32 s3, s3, 4")
        A.I("s_load_dword s90, s[24:25], s3 glc")
        A.I("s_waitcnt lgkmcnt(0)")
        A.I("s_bcnt1_i32_b32 s90, s90")
        A.I("s_cmp_eq_u32 s90, 1")
        A.I("s_cbranch_scc0 L_ch_slow")
        step_loop(A, opt, False)
        A.label("L_ch_slow")
        step_loop(A, opt, True)
    else:
        step_loop(A, opt, mode == "sc1")
```

```python
from g_common import *
import g_chain as G1
from g_chain import (WO, STG, QX, KXM, KXL, IDX, L16S, XW, TR, KOFF, VOFF, OW, RSO, PUB, KX, VX, wreg, widx, OOB)
import struct
JUNK = 9
sL, sHEAD, sSTEP = 22, 23, 28
sAG = 29
sGODD = 30
sKV, sKV2 = 32, 33
sMKV = 34
sFKVN = 36
sFMKV = 37
sFCUR = 38
sRW = 39
sRR = 40
sPUB, sPI, sRSO, sW1024, sDMAO = 44, 45, 46, 47, 48
sNC = 49; sC = 50
sMLO = 52
sSEL = 54
sODD = 62
sONE_LO, sONE_HI = 64, 65
sPF, sCNT, sG0, sPF1 = 66, 67, 68, 69
sPLO, sPHI = 70, 71
sRB, sTMP, sT2 = 72, 73, 74
sMPF = 75
sPFD = 76
sRWH = 77
sDMAL = 11
sONES = 78
assert (G1.sL, G1.sHEAD, G1.sTMP, G1.sT2, G1.sW1024, G1.sPLO, G1.sPHI) == (sL, sHEAD, sTMP, sT2, sW1024, sPLO, sPHI)
sAGW, sRWH8, sRW8 = 8, 9, 10
sTAG, sRW2 = 35, 41
RWO = RSO
F_DUMMY = 15000
STAMP = [80, 82, 84, 86, 88, 92, 94, 96, 98]

def scalars(A):
    I = A.I
    I("s_mov_b32 %s, 0" % s(sSTEP))
    I("s_mul_i32 s3, %s, %d" % (s(sL), M_L))
    I("s_add_u32 s3, s3, %d" % (W_M - STG - 3072))
    I("s_mul_i32 %s, %s, 3072" % (s(sTMP), s(S_WAVE)))
    I("s_add_u32 %s, s3, %s" % (s(sAG), s(sTMP)))
    I("s_mul_i32 s3, %s, %d" % (s(sL), M_L))
    I("s_add_u32 %s, s3, %d" % (s(sMPF), W_M + M_S))
    I("s_lshl_b32 s3, %s, 11" % s(sL))
    I("s_add_u32 s3, s3, %s" % s(sHEAD))
    I("s_lshl_b32 %s, s3, 14" % s(sKV)); I("s_add_u32 %s, %s, %d" % (s(sKV), s(sKV), W_KV))
    I("s_add_u32 %s, %s, 4096" % (s(sKV2), s(sKV)))
    I("s_lshl_b32 %s, s3, 12" % s(sMKV)); I("s_add_u32 %s, %s, %d" % (s(sMKV), s(sMKV), W_MKV))
    I("s_lshl_b32 %s, s3, 6" % s(sFKVN))
    I("s_add_u32 %s, %s, %d" % (s(sFCUR), s(sFKVN), F_MKV * FSTR))
    I("s_add_u32 %s, %s, %d" % (s(sFKVN), s(sFKVN), F_KV * FSTR))
    I("s_mov_b32 %s, %d" % (s(sFMKV), F_DUMMY * FSTR))
    I("s_lshl_b32 %s, %s, 15" % (s(sG0), s(S_WAVE)))
    I("s_lshl_b32 %s, %s, 7" % (s(sRWH), s(sHEAD)))
    I("s_add_u32 %s, %s, %d" % (s(sRWH8), s(sRWH), 64 * 4096))
    I("s_cmp_eq_u32 %s, 3" % s(S_WAVE))
    I("s_cselect_b32 s3, 64, 0")
    I("s_add_u32 %s, %s, s3" % (s(sRWH8), s(sRWH8)))
    I("s_lshl_b32 s3, %s, 16" % s(S_WAVE))
    I("s_add_u32 %s, %s, s3" % (s(sRWH), s(sRWH)))
    I("s_mul_i32 %s, %s, 3072" % (s(sAGW), s(S_WAVE)))
    I("s_sub_u32 %s, %s, 3072" % (s(sAGW), s(sAGW)))
    I("s_sub_u32 s3, %s, 1" % s(S_WAVE))
    I("s_lshl_b32 s3, s3, 5")
    I("s_add_u32 %s, s3, %s" % (s(sPI), s(sHEAD)))
    I("s_cmp_eq_u32 %s, 0" % s(S_WAVE))
    I("s_cselect_b32 %s, 1000, %s" % (s(sPI), s(sPI)))
    I("s_lshl_b32 %s, %s, 12" % (s(sRSO), s(sPI)))
    I("s_sub_u32 %s, %s, %d" % (s(sRSO), s(sRSO), STG))
    I("s_mul_i32 s3, %s, %d" % (s(sL), M_L))
    I("s_add_u32 s3, s3, %d" % (W_M + M_S))
    I("s_lshl_b32 %s, %s, 7" % (s(sPUB), s(sPI)))
    I("s_add_u32 %s, %s, s3" % (s(sPUB), s(sPUB)))
    I("s_lshl_b32 s3, %s, 7" % s(S_WAVE))
    I("s_cmp_ge_u32 %s, 2" % s(S_WAVE))
    I("s_cselect_b32 %s, 2048, s3" % s(sDMAO))
    I("s_min_u32 s3, %s, 2" % s(S_WAVE))
    I("s_lshl_b32 s3, s3, 10")
    I("s_add_u32 %s, s3, %d" % (s(sDMAL), KXL))
    c = 128 ** -0.5 * 1.4426950408889634
    fb = lambda x: struct.unpack("<I", struct.pack("<f", x))[0]
    I("s_mov_b32 %s, 0x%x" % (s(sC), fb(c))); I("s_mov_b32 %s, 0x%x" % (s(sC + 1), fb(c)))
    I("s_mov_b32 %s, 0x%x" % (s(sNC), fb(-c)))
    I("s_mov_b32 %s, -1" % s(sMLO)); I("s_mov_b32 %s, 0" % s(sMLO + 1))
    I("s_mov_b32 %s, 0xffff0000" % s(sGODD)); I("s_mov_b32 %s, 0xffff0000" % s(sGODD + 1))
    for j in range(4):
        m = (3 << (2 * j)) * 0x01010101
        I("s_mov_b32 %s, 0x%x" % (s(sSEL + 2 * j), m)); I("s_mov_b32 %s, 0x%x" % (s(sSEL + 2 * j + 1), m))
    I("s_mov_b32 %s, 0xaaaaaaaa" % s(sODD)); I("s_mov_b32 %s, 0xaaaaaaaa" % s(sODD + 1))
    I("s_mov_b32 %s, 0x3f80" % s(sONE_LO)); I("s_mov_b32 %s, 0x3f800000" % s(sONE_HI))
    I("s_mov_b32 %s, 0x3f803f80" % s(sONES)); I("s_mov_b32 %s, 0x3f803f80" % s(sONES + 1))
    I("s_mov_b32 %s, 0" % s(sPFD))


def lane_consts(A):
    G1.lane_consts(A)
    I = A.I
    t1, t2 = 41, 42
    I("s_lshr_b32 s3, %s, 1" % s(S_WAVE)); I("s_lshl_b32 s3, s3, 10")
    I("s_and_b32 %s, %s, 1" % (s(sTMP), s(S_WAVE))); I("s_lshl_b32 %s, %s, 8" % (s(sT2), s(sTMP)))
    I("s_add_u32 s3, s3, %s" % s(sT2)); I("s_add_u32 s3, s3, %d" % QX)
    I("v_and_b32 v41, 15, v40"); I("v_lshlrev_b32 v41, 4, v41")
    I("v_lshrrev_b32 v42, 4, v40"); I("v_lshl_add_u32 v41, v42, 2, v41")
    I("v_add_u32 %s, s3, v41" % v(XW))
    I("v_lshrrev_b32 v41, 5, v40"); I("v_lshlrev_b32 v41, 8, v41")
    I("v_bfe_u32 v42, v40, 4, 1"); I("v_lshl_add_u32 v41, v42, 6, v41")
    I("v_bfe_u32 v42, v40, 2, 2"); I("v_lshl_add_u32 v41, v42, 4, v41")
    I("v_bfe_u32 v42, v40, 1, 1"); I("v_lshl_add_u32 v41, v42, 3, v41")
    I("v_add_u32 %s, %d, v41" % (v(TR), QX))
    I("s_lshr_b32 s3, %s, 1" % s(S_WAVE)); I("s_lshl_b32 s3, s3, 10")
    I("s_lshl_b32 %s, %s, 5" % (s(sT2), s(sTMP)))
    I("s_add_u32 s3, s3, %s" % s(sT2)); I("s_add_u32 s3, s3, %d" % STG)
    I("v_lshrrev_b32 v41, 4, v40"); I("v_lshlrev_b32 v41, 8, v41")
    I("v_bfe_u32 v42, v40, 3, 1"); I("v_lshl_add_u32 v41, v42, 7, v41")
    I("v_bfe_u32 v42, v40, 1, 1"); I("v_lshl_add_u32 v41, v42, 6, v41")
    I("v_and_b32 v42, 1, v40"); I("v_lshl_add_u32 v41, v42, 4, v41")
    I("v_add_u32 %s, s3, v41" % v(OW))
    I("v_mov_b32 v41, 0x44444444"); I("v_mov_b32 v42, 0xeeeeeeee")
    I("v_and_b32 v43, 2, v40")
    I("v_cmp_eq_u32 vcc, 0, v43")
    I("v_cndmask_b32 %s, v42, v41, vcc" % v(IDX))

def lane_consts2(A):
    I = A.I
    I("v_and_b32 v41, 3, v40"); I("v_lshlrev_b32 v41, 4, v41")
    I("v_bfe_u32 v42, v40, 2, 2"); I("v_lshl_add_u32 v41, v42, 13, v41")
    I("v_bfe_u32 v42, v40, 5, 1"); I("v_lshl_add_u32 v41, v42, 12, v41")
    I("v_bfe_u32 v42, v40, 4, 1"); I("v_lshl_add_u32 %s, v42, 6, v41" % v(RWO))
    I("v_bfe_u32 v41, v40, 1, 1"); I("v_lshlrev_b32 v41, 6, v41")
    I("v_bfe_u32 v42, v40, 2, 1"); I("v_lshl_add_u32 v41, v42, 5, v41")
    I("v_bfe_u32 v42, v40, 3, 1"); I("v_lshl_add_u32 v41, v42, 4, v41")
    I("v_and_b32 v42, 1, v40"); I("v_lshl_add_u32 v41, v42, 3, v41")
    I("v_bfe_u32 v42, v40, 4, 1"); I("v_lshl_add_u32 v41, v42, 2, v41")
    I("s_cmp_eq_u32 %s, 3" % s(S_WAVE))
    I("s_cselect_b64 vcc, -1, 0")
    I("v_cndmask_b32 %s, %s, v41, vcc" % (v(PUB), v(PUB)))

MKO, TRW, AGW = 78, 79, 77
def shadow_init(A, cls):
    I = A.I
    for r in range(50, 74, 2): I("v_mov_b64 %s, 0" % v(r, 2))
    I("v_subrev_u32 v76, %d, %s" % (STG, v(L16S)))
    I("v_and_b32 %s, 0x30, v76" % v(MKO))
    I("v_bfe_u32 v75, v76, 7, 1")
    I("v_lshl_add_u32 %s, v75, 6, %s" % (v(MKO), v(MKO)))
    I("v_lshrrev_b32 v76, 8, v76")
    I("v_lshl_add_u32 %s, v76, 7, %s" % (v(MKO), v(MKO)))
    I("v_lshl_add_u32 %s, %s, 9, %s" % (v(MKO), s(S_WAVE), v(MKO)))
    I("s_lshl_b32 s3, %s, 9" % s(S_WAVE))
    I("v_add_u32 %s, s3, %s" % (v(TRW), v(TR)))
    if cls != "0": I("v_add_u32 %s, %s, %s" % (v(AGW), s(sAGW), v(L16S)))

FLG = PUB
def w0_spin(A):
    I = A.I
    I("v_subrev_u32 v75, %d, %s" % (STG, v(L16S)))
    I("v_and_b32 v75, 16, v75")
    I("v_lshlrev_b32 v75, 7, v75")
    I("s_mov_b32 %s, 0" % s(sCNT))
    L = A.newlabel("L_w0f")
    A.label(L)
    I("buffer_load_dword %s, v75, s[4:7], %s offen sc1" % (v(FLG), s(sFKVN)))
    I("s_add_u32 %s, %s, 1" % (s(sCNT), s(sCNT)))
    I("s_cmp_gt_u32 %s, %d" % (s(sCNT), SPIN_MAX))
    I("s_cbranch_scc1 L_FAIL", noflush=True)
    I("s_waitcnt vmcnt(0)")
    I("v_readlane_b32 s3, %s, 0" % v(FLG))
    I("s_cmp_ge_u32 s3, 2")
    I("s_cbranch_scc0 %s" % L)

def w0_check(A):
    I = A.I
    Lok = A.newlabel("L_w0ok")
    I("v_readlane_b32 s3, %s, 0" % v(FLG))
    I("s_cmp_ge_u32 s3, 2")
    I("s_cbranch_scc1 %s" % Lok)
    w0_spin(A)
    A.label(Lok)
    w0_next(A)

def w0_next(A):
    I = A.I
    I("v_readlane_b32 s3, %s, 1" % v(FLG))
    I("s_add_u32 %s, %s, 0x80000" % (s(sPF), s(sKV)))
    I("s_cmp_ge_u32 s3, 2")
    I("s_cselect_b32 %s, %s, 0x%x" % (s(sPF), s(sPF), OOB - 8192))

def w0_early(A):
    I = A.I
    L = []
    L.append(lambda: I("v_subrev_u32 v76, %d, %s" % (STG, v(L16S))))
    L.append(lambda: I("v_lshlrev_b32 v76, 3, v76"))
    L.append(lambda: I("buffer_load_dword %s, v76, s[4:7], %s offen sc1" % (v(JUNK), s(sPF))))
    L.append(lambda: I("s_add_u32 s3, %s, 8192" % s(sPF)))
    L.append(lambda: I("buffer_load_dword %s, v76, s[4:7], s3 offen sc1" % v(JUNK)))
    L.append(lambda: I("buffer_load_dword %s, v76, s[4:7], %s offen sc1" % (v(JUNK), s(sMPF))))
    L.append(lambda: (I("v_and_b32 v75, 0x380, v76"), I("s_add_u32 s3, %s, 8192" % s(sMPF))))
    L.append(lambda: I("buffer_load_dword %s, v75, s[4:7], s3 offen sc1" % v(JUNK)))
    L.append(lambda: (I("v_and_b32 v75, 0x80, v76"), I("v_lshlrev_b32 v75, 4, v75")))
    L.append(lambda: I("buffer_load_dword %s, v75, s[4:7], %s offen offset:2048 sc1" % (v(FLG), s(sFKVN))))
    return L

def advance(A):
    I = A.I
    I("s_add_u32 %s, %s, %d" % (s(sAG), s(sAG), M_S))
    I("s_add_u32 %s, %s, %d" % (s(sMPF), s(sMPF), M_S))
    I("s_add_u32 %s, %s, 0x80000" % (s(sKV), s(sKV)))
    I("s_add_u32 %s, %s, 0x80000" % (s(sKV2), s(sKV2)))
    I("s_add_u32 %s, %s, %d" % (s(sFKVN), s(sFKVN), 32 * FSTR))
    I("s_mov_b32 %s, %s" % (s(sFMKV), s(sFCUR)))
    I("s_add_u32 %s, %s, %d" % (s(sFCUR), s(sFCUR), 32 * FSTR))
    I("s_add_u32 %s, %s, 0x20000" % (s(sMKV), s(sMKV)))
    I("s_add_u32 %s, %s, 1" % (s(sSTEP), s(sSTEP)))

def step_loop(A, opt, sc1, cls):
    I = A.I
    prof = opt.get("prof")
    def ts(k):
        if prof: I("s_memtime %s" % s(STAMP[k], 2), notok=True)
    def ts_store():
        if prof:
            Lp = A.newlabel("L_prof")
            I("s_waitcnt lgkmcnt(0)")
            I("s_cmp_lg_u32 %s, %d" % (s(sHEAD), opt.get("prof_head", 0)))
            I("s_cbranch_scc1 %s" % Lp)
            I("s_and_b32 s3, %s, 3" % s(sSTEP))
            I("s_cmp_lg_u32 s3, 0")
            I("s_cbranch_scc1 %s" % Lp)
            I("s_lshl_b32 s3, %s, 6" % s(sL))
            I("s_add_u32 s3, s3, %s" % s(sSTEP))
            I("s_lshl_b32 s3, s3, 2")
            I("s_add_u32 s3, s3, %s" % s(S_WAVE))
            I("s_lshl_b32 s3, s3, 6")
            I("s_add_u32 s3, s3, 0xF000000")
            for k in range(9):
                I("v_mov_b32 v74, %s" % s(STAMP[k]))
                I("buffer_store_dword v74, off, s[4:7], s3 offset:%d" % (4 * k))
            I("v_mov_b32 v74, %s" % s(sCNT))
            I("buffer_store_dword v74, off, s[4:7], s3 offset:36")
            I("v_mov_b32 v74, s13")
            I("buffer_store_dword v74, off, s[4:7], s3 offset:40")
            I("v_mov_b32 v74, s12")
            I("buffer_store_dword v74, off, s[4:7], s3 offset:44")
            I("v_mov_b32 v74, s14")
            I("buffer_store_dword v74, off, s[4:7], s3 offset:48")
            A.label(Lp)
    def dump(k, reg):
        if not opt.get("dump"): return
        I("s_lshl_b32 s14, %s, 5" % s(sL)); I("s_add_u32 s14, s14, %s" % s(sHEAD))
        I("s_lshl_b32 s14, s14, 2"); I("s_add_u32 s14, s14, %s" % s(S_WAVE))
        I("s_lshl_b32 s14, s14, 14"); I("s_add_u32 s14, s14, %d" % (0xF400000 + k * 1024 - STG))
        I("s_cmp_eq_u32 %s, 0" % s(sSTEP)); I("s_cselect_b32 s14, s14, 0x%x" % OOB)
        I("s_nop 7"); I("s_nop 7")
        I("buffer_store_dwordx4 %s, %s, s[4:7], s14 offen" % (v(reg, 4), v(L16S)))
    ST = " sc1" if sc1 else ""
    w0 = cls == "0"
    tag = ("s" if sc1 else "p") + cls
    LB1 = "L_ch_b1_" + tag; LEND = "L_ch_end_" + tag; LTOP = "L_ch_top_" + tag
    I("s_branch %s" % LB1)
    A.label(LTOP)
    if not w0:
        I("s_mov_b32 %s, 0" % s(sCNT))
        LP = A.newlabel("L_ag")
        A.label(LP)
        t = [I("buffer_load_dwordx4 %s, %s, s[4:7], %s offen offset:%d sc1" % (v(38 + 4 * i, 4), v(L16S), s(sAG), 1024 * i)) for i in range(3)]
        I("s_add_u32 %s, %s, 1" % (s(sCNT), s(sCNT)))
        I("s_cmp_gt_u32 %s, %d" % (s(sCNT), SPIN_MAX))
        I("s_cbranch_scc1 L_FAIL", noflush=True)
        for i in range(3):
            A.wait_vm(t[i])
            I("ds_write_b128 %s, %s offset:%d" % (v(AGW), v(38 + 4 * i, 4), 1024 * i))
        I("v_max3_u32 v74, v38, v39, v40")
        I("v_max3_u32 v75, v41, v42, v43")
        I("v_max3_u32 v76, v44, v45, v46")
        I("v_max3_u32 v74, v74, v47, v48")
        I("v_max3_u32 v75, v75, v76, v49")
        I("v_max_u32 v74, v74, v75")
        I("v_cmp_eq_u32 vcc, -1, v74")
        if prof:
            Lok = A.newlabel("L_agok")
            I("s_cbranch_vccz %s" % Lok, noflush=True)
            I("s_cmp_lg_u32 %s, 1" % s(sCNT))
            I("s_cbranch_scc1 %s" % LP, noflush=True)
            I("s_memtime s[14:15]", notok=True)
            I("s_branch %s" % LP, noflush=True)
            A.label(Lok)
        else:
            I("s_cbranch_vccnz %s" % LP, noflush=True)
        I("s_waitcnt lgkmcnt(0)")
    A.label(LB1)
    ts(0)
    I("s_barrier")
    AB = [38, 42, 46]
    at = {}
    def aread(T, buf): return I("ds_read_b128 %s, %s offset:%d" % (v(buf, 4), v(L16S), T * 1024))
    for T in range(3): at[T] = aread(T, AB[T])
    I("s_mov_b32 m0, %s" % s(sDMAL))
    I("s_add_u32 s3, %s, %s" % (s(sKV), s(sDMAO)))
    I("buffer_load_dwordx4 %s, s[4:7], s3 offen sc1 lds" % v(KOFF))
    dma_mark = ("vm", A.vm_issued)
    kt = {}
    def ld(name, dst, addr, so, off):
        def f(): kt[name] = I("buffer_load_dwordx4 %s, %s, s[4:7], %s offen offset:%d sc1" % (v(dst, 4), v(addr), s(so), off))
        return f
    fill = [ld("3A", KX + 12, KOFF, sKV2, 2048), ld("3B", KX + 16, KOFF, sKV2, 2176), ld("2A", KX + 4, KOFF, sKV2, 0),
            ld("2B", KX + 8, KOFF, sKV2, 128), ld("1B", KX, KOFF, sKV, 2176), ld("V0", VX, VOFF, sKV, 0), ld("V1", VX + 4, VOFF, sKV, 2048)]
    for _ in range(2): fill.pop(0)()
    if w0:
        def sig():
            I("s_mov_b64 exec, 1")
            I("v_mov_b32 v77, 4")
            I("buffer_atomic_add v77, off, s[4:7], %s sc1" % s(sFMKV))
            I("s_mov_b64 exec, -1")
        fill.append(sig)
        fill += w0_early(A)
    QA_, QB_, KA_, KB_ = 50, 54, 58, 62
    def smf(acc, buf, f): I("v_smfmac_f32_16x16x64_bf16 %s, %s, %s, %s" % (v(acc, 4), v(buf, 4), f if isinstance(f, str) else wreg(f), v(IDX)))
    for T in range(9):
        A.wait_lgkm(at[T])
        buf = AB[T % 3]
        for acc, f in ((QA_, widx(0, 0, T)), (QB_, widx(0, 1, T)), (KA_, widx(1, 0, T)), (KB_, widx(1, 1, T))):
            smf(acc, buf, f)
            if fill and acc != KB_: fill.pop(0)()
        at[T + 3] = aread((T + 3) % 9, buf)
    assert not fill
    ts(1)
    VA_, VB_ = 66, 70
    def vs(T, half):
        buf = AB[T % 3]
        if half == 0:
            A.wait_lgkm(at[9 + T])
            smf(VA_, buf, widx(2, 0, T))
        else:
            smf(VB_, buf, widx(2, 1, T))
            if T + 3 < 9: at[9 + T + 3] = aread(T + 3, buf)
    ad = lambda d, a_, b_: I("v_add_f32 %s, %s, %s" % (v(d), v(a_), v(b_)))
    cvt = lambda d, a_, b_: I("v_cvt_pk_bf16_f32 %s, %s, %s" % (v(d), v(a_), v(b_)))
    vs(0, 0); vs(0, 1)
    ad(QA_, QA_, QA_ + 2); ad(QA_ + 1, QA_ + 1, QA_ + 3); ad(QB_, QB_, QB_ + 2); ad(QB_ + 1, QB_ + 1, QB_ + 3)
    cvt(74, QA_, QA_ + 1); cvt(75, QB_, QB_ + 1)
    I("ds_write2_b32 %s, v74, v75 offset0:0 offset1:128" % v(XW))
    ad(KA_, KA_, KA_ + 2); ad(KA_ + 1, KA_ + 1, KA_ + 3); ad(KB_, KB_, KB_ + 2); ad(KB_ + 1, KB_ + 1, KB_ + 3)
    cvt(76, KA_, KA_ + 1); cvt(77, KB_, KB_ + 1)
    I("ds_write_b32 %s, v76 offset:2048" % v(XW))
    wtok = I("ds_write_b32 %s, v77 offset:2560" % v(XW))
    vs(1, 0); vs(1, 1); vs(2, 0); vs(2, 1)
    A.wait_lgkm(wtok)
    A.wait_vm(dma_mark)
    I("s_barrier")
    ts(2)
    def trq(Tp, dst):
        I("ds_read_b64_tr_b16 %s, %s offset:%d" % (v(dst, 2), v(TR), Tp * 512))
        return I("ds_read_b64_tr_b16 %s, %s offset:%d" % (v(dst + 2, 2), v(TR), Tp * 512 + 128))
    def trk(Tp, dst):
        I("ds_read_b64_tr_b16 %s, %s offset:%d" % (v(dst, 2), v(TR), 2048 + Tp * 512))
        return I("ds_read_b64_tr_b16 %s, %s offset:%d" % (v(dst + 2, 2), v(TR), 2048 + Tp * 512 + 128))
    tq3 = trq(3, 50); tk3 = trk(3, 54)
    vs(3, 0); tq2 = trq(2, 58); vs(3, 1); tk2 = trk(2, 62)
    vs(4, 0); tq1 = trq(1, 74); vs(4, 1)
    for T in range(5, 9): vs(T, 0); vs(T, 1)
    S0, SA, SB = 38, 42, 46
    def mf(d, x, y, c): I("v_mfma_f32_16x16x32_bf16 %s, %s, %s, %s" % (v(d, 4), v(x, 4), v(y, 4), c))
    A.wait_lgkm(tk3); A.wait_vm(kt["3B"])
    mf(SA, KX + 12, 50, "0"); mf(SB, KX + 16, 50, "0"); mf(S0, 54, 50, "0")
    tk1 = trk(1, 54)
    t1A = I("ds_read_b128 %s, %s offset:%d" % (v(KX + 12, 4), v(L16S), KXL - STG + 2 * 1024))
    tq0 = trq(0, 50)
    t0A = I("ds_read_b128 %s, %s offset:%d" % (v(KX + 16, 4), v(L16S), KXL - STG + 0 * 1024))
    A.wait_lgkm(tk2); A.wait_vm(kt["2B"])
    mf(SA, KX + 4, 58, v(SA, 4)); mf(SB, KX + 8, 58, v(SB, 4)); mf(S0, 62, 58, v(S0, 4))
    tk0 = trk(0, 58)
    t0B = I("ds_read_b128 %s, %s offset:%d" % (v(KX + 4, 4), v(L16S), KXL - STG + 1 * 1024))
    I("ds_read_b64_tr_b16 v[62:63], %s offset:2048" % v(TRW))
    tmk = I("ds_read_b64_tr_b16 v[64:65], %s offset:2176" % v(TRW))
    A.wait_vm(kt["1B"]); A.wait_lgkm(tq1)
    mf(SB, KX, 74, v(SB, 4))
    ad(70, 70, 72); ad(71, 71, 73)
    A.wait_lgkm(t1A)
    mf(SA, KX + 12, 74, v(SA, 4))
    ad(66, 66, 68); ad(67, 67, 69)
    A.wait_lgkm(tk1)
    mf(S0, 54, 74, v(S0, 4))
    cvt(70, 70, 71); cvt(72, 66, 67)
    A.wait_lgkm(t0A)
    mf(SA, KX + 16, 50, v(SA, 4))
    I("v_mov_b32 v71, 0"); I("v_mov_b32 v73, 0")
    A.wait_lgkm(tk0)
    mf(S0, 58, 50, v(S0, 4))
    I("v_mov_b64 v[74:75], %s" % s(sONES, 2)); I("v_mov_b64 v[76:77], %s" % s(sONES, 2))
    A.wait_lgkm(t0B)
    mf(SB, KX + 4, 50, v(SB, 4))
    I("s_add_u32 s3, %s, %d" % (s(sMKV), 2048 - QX))
    I("buffer_store_dword v72, %s, s[4:7], s3 offen sc1" % v(XW))
    I("buffer_store_dword v70, %s, s[4:7], s3 offen offset:512 sc1" % v(XW))
    A.wait_lgkm(tmk)
    I("buffer_store_dwordx4 v[62:65], %s, s[4:7], %s offen sc1" % (v(MKO), s(sMKV)))
    I("s_cmp_eq_u32 %s, 63" % s(sSTEP))
    I("s_cbranch_scc1 %s" % LEND, noflush=True)
    ts(3)
    pass
    ONES, PM, AA_, AB_, DEN = 74, 64, 72, 70, 42
    I("v_cndmask_b32_e64 v38, v38, v40, %s" % s(sGODD, 2))
    I("v_cndmask_b32_e64 v39, v39, v41, %s" % s(sGODD, 2))
    I("v_max3_f32 v50, v42, v43, v44")
    I("v_max3_f32 v51, v45, v46, v47")
    I("v_max3_f32 v52, v48, v49, v38")
    I("v_max3_f32 v50, v50, v51, v39")
    I("v_max_f32 v50, v50, v52")
    I("v_mov_b32 v51, v50")
    I("v_mov_b64 v[66:67], 0")
    I("v_mov_b32 v65, 0")
    I("v_permlane16_swap_b32 v50, v51")
    I("v_max_f32 v50, v50, v51")
    I("v_mov_b32 v51, v50")
    WA, WA2 = 41, 40
    WA, WA2 = 47, 46
    I("v_subrev_u32 v40, %d, %s" % (STG, v(L16S)))
    I("s_nop 0")
    I("v_permlane32_swap_b32 v50, v51")
    I("v_max_f32 v50, v50, v51")
    I("v_mul_f32 v50, %s, v50" % s(sNC))
    for r in list(range(42, 50, 2)) + [38]:
        I("v_pk_fma_f32 %s, %s, %s, v[50:51] op_sel_hi:[1,0,0]" % (v(r, 2), v(r, 2), s(sC, 2)))
    for r in range(42, 50): I("v_exp_f32 %s, %s" % (v(r), v(r)))
    for i in range(4): cvt(52 + i, 42 + 2 * i, 43 + 2 * i)
    OA_, OB_ = 56, 60
    A.wait_vm(kt["V1"])
    mf(DEN, ONES, 52, "0")
    I("v_exp_f32 v38, v38")
    mf(OA_, VX, 52, "0")
    I("v_exp_f32 v39, v39")
    mf(OB_, VX + 4, 52, "0")
    I("v_add_u32 %s, %s, v40" % (v(WA), s(sG0)))
    cvt(64, 38, 39)
    extra = cls in ("0", "3")
    if extra: I("v_add_u32 %s, 0x%x, v40" % (v(WA2), 8 * 16384))
    seq = []
    for gi in range(2):
        for hb in range(2):
            for T in range(2):
                for par in range(2): seq.append((gi, hb + 2 * par, T))
    if extra:
        hb = 0 if cls == "0" else 1
        for T in range(2):
            for par in range(2): seq.append((8, hb + 2 * par, T))
    NK = len(seq)
    BB = [10, 18, 26, 48, 64]
    bt = {}
    def bread(k):
        if k >= NK: return
        gi, x, T = seq[k]
        b = BB[k % 5]
        adr = WA2 if gi == 8 else WA
        off = (0 if gi == 8 else gi * 16384) + x * 4096 + T * 2048
        I("ds_read_b128 %s, %s offset:%d" % (v(b, 4), v(adr), off))
        bt[k] = I("ds_read_b128 %s, %s offset:%d" % (v(b + 4, 4), v(adr), off + 1024))
    mf(DEN, ONES, PM, v(DEN, 4))
    mf(OA_, AA_, PM, v(OA_, 4))
    mf(OB_, AB_, PM, v(OB_, 4))
    bread(0); bread(1)
    I("v_rcp_f32 v42, v42")
    for r in range(0, 8, 2):
        I("v_pk_mul_f32 %s, %s, v[42:43] op_sel_hi:[1,0]" % (v(OA_ + r, 2), v(OA_ + r, 2)))
    for r in range(4): cvt(OA_ + r, OA_ + r, OB_ + r)
    otok = I("ds_write_b128 %s, %s" % (v(OW), v(OA_, 4)))
    ts(4)
    OF = [34, 38]
    P = (56, 60); Q = (72, 42); O = 76
    def zero(u):
        I("v_mov_b64 %s, 0" % v(u, 2)); I("v_mov_b64 %s, 0" % v(u + 2, 2))
    bread(2)
    zero(Q[0]); zero(Q[1]); zero(P[1])
    bread(3)
    A.wait_lgkm(otok)
    I("s_barrier")
    of = [I("ds_read_b128 %s, %s" % (v(OF[0], 4), v(L16S))), I("ds_read_b128 %s, %s offset:1024" % (v(OF[1], 4), v(L16S)))]
    bread(4)
    zero(P[0])
    I("s_mul_i32 s3, %s, %d" % (s(sL), R_L))
    I("s_and_b32 %s, %s, 1" % (s(sTMP), s(sSTEP)))
    I("s_mul_i32 %s, %s, %d" % (s(sTMP), s(sTMP), R_B))
    I("s_add_u32 %s, s3, %s" % (s(sRB), s(sTMP)))
    I("s_add_u32 %s, %s, %d" % (s(sRB), s(sRB), W_R))
    I("s_add_u32 %s, %s, %s" % (s(sRW), s(sRB), s(sRWH)))
    I("s_add_u32 %s, %s, 32768" % (s(sRW2), s(sRW)))
    I("s_bfe_u32 %s, %s, 0x10001" % (s(sTAG), s(sSTEP)))
    if extra:
        I("s_add_u32 %s, %s, %s" % (s(sRW8), s(sRB), s(sRWH8)))
    NH = NK // 4
    fillers = []
    def epi(h):
        ua, ub = (P, Q)[h & 1]
        L_ = []
        for u in (ua, ub):
            L_.append(lambda u=u: ad(u, u, u + 2)); L_.append(lambda u=u: ad(u + 1, u + 1, u + 3))
        o = O + 2 * (h & 1)
        L_.append(lambda: cvt(o, ua, ub)); L_.append(lambda: cvt(o + 1, ua + 1, ub + 1))
        if h >= 4:
            L_.append(lambda: I("v_bfi_b32 %s, 1, %s, %s" % (v(O + 1), s(sTAG), v(O + 1))))
            L_.append(lambda: I("buffer_store_dwordx2 %s, %s, s[4:7], %s offen%s" % (v(O, 2), v(WA2), s(sRW8), ST)))
        elif h & 1:
            L_.append(lambda: I("v_bfi_b32 %s, 1, %s, %s" % (v(O + 3), s(sTAG), v(O + 3))))
            L_.append(lambda: I("buffer_store_dwordx4 %s, %s, s[4:7], %s offen%s" % (v(O, 4), v(RWO), s(sRW2 if h >> 1 else sRW), ST)))
        if h + 2 < NH:
            for u in (ua, ub):
                L_.append(lambda u=u: I("v_mov_b64 %s, 0" % v(u, 2))); L_.append(lambda u=u: I("v_mov_b64 %s, 0" % v(u + 2, 2)))
        return L_
    pend = []
    for k in range(NK):
        h = k // 4
        gi, x, T = seq[k]
        if k == 0: A.wait_lgkm(of[0])
        if k == 2: A.wait_lgkm(of[1])
        if k % 4 == 0 and h >= 2:
            while pend and pend[0][0] <= h - 2: pend.pop(0)[1]()
        if k % 2 == 0: A.wait_lgkm(bt[min(k + 1, NK - 1)])
        u = (P, Q)[h & 1][0 if x < 2 else 1]
        smf(u, OF[T], v(BB[k % 5], 8))
        bread(k + 5)
        if k % 4 == 1 and h >= 1:
            pend += [(h - 1, f) for f in epi(h - 1)]
        if k == 16:
            pend += [(h - 1, lambda: I("v_and_b32 %s, 0x70, %s" % (v(WA2), v(RWO)))),
                     (h - 1, lambda: I("v_lshrrev_b32 %s, 1, %s" % (v(WA2), v(WA2)))),
                     (h - 1, lambda: I("v_sub_u32 %s, %s, %s" % (v(WA2), v(RWO), v(WA2))))]
        n = 3 if k % 4 else 0
        while pend and n > 0:
            pend.pop(0)[1](); n -= 1
    while pend: pend.pop(0)[1]()
    for f in epi(NH - 1): f()
    ts(5)
    advance(A)
    Lnors = A.newlabel("L_nors")
    if cls == "3":
        I("s_cmp_ge_u32 %s, 72" % s(sPI))
        I("s_cbranch_scc1 %s" % Lnors)
    if not w0:
        I("s_add_u32 %s, %s, %s" % (s(sRR), s(sRB), s(sRSO)))
        I("v_mov_b32 v42, %s" % s(sONE_LO))
        I("v_mov_b32 v43, %s" % s(sONE_HI))
        I("v_cndmask_b32_e64 v42, v42, v43, %s" % s(sODD, 2))
        for j in range(4): I("v_cndmask_b32_e64 %s, 0, v42, %s" % (v(38 + j), s(sSEL + 2 * j, 2)))
        I("s_mov_b32 s90, 0xff00ff00"); I("s_mov_b32 s91, 0xff00ff00")
        I("s_mov_b32 s13, 0")
        LR = A.newlabel("L_rs")
        A.label(LR)
        for i in range(4):
            I("buffer_load_dwordx4 %s, %s, s[4:7], %s offen offset:%d sc1" % (v(48 + 4 * i, 4), v(L16S), s(sRR), 1024 * i))
        I("s_add_u32 s13, s13, 1")
        I("s_cmp_gt_u32 s13, %d" % SPIN_MAX)
        I("s_cbranch_scc1 L_FAIL", noflush=True)
        I("s_waitcnt vmcnt(0)")
        ne = lambda d, a_, b_: I("v_bitop3_b32 %s, %s, %s, %s bitop3:0x7e" % (v(d), v(a_), v(b_), s(sTAG)))
        mf(64, 38, 48, "0")
        if cls == "3": ne(44, 49, 51); ne(45, 53, 55)
        else: ne(44, 51, 55)
        mf(64, 38, 52, v(64, 4))
        if cls == "3": ne(46, 57, 59); ne(47, 61, 63)
        else: ne(45, 59, 63)
        mf(64, 38, 56, v(64, 4))
        if cls == "3": I("v_or3_b32 v44, v44, v46, v47")
        I("v_bitop3_b32 v44, v44, v45, 1 bitop3:0xa8")
        mf(64, 38, 60, v(64, 4))
        I("v_cmp_ne_u32 vcc, 0, v44")
        I("s_cbranch_vccnz %s" % LR, noflush=True)
        ts(6)
        for r in range(4):
            I("v_add_f32_dpp %s, %s, %s row_ror:8 row_mask:0xf bank_mask:0xf" % (v(68 + r), v(64 + r), v(64 + r)))
        cvt(72, 68, 69); cvt(73, 70, 71)
        I("v_cndmask_b32_e64 v72, v72, v73, s[90:91]")
        I("s_mov_b64 exec, %s" % s(sMLO, 2))
        I("buffer_store_dword v72, %s, s[4:7], %s offen%s" % (v(PUB), s(sPUB), ST))
        I("s_mov_b64 exec, -1")
        ts(7)
        I("s_add_u32 %s, %s, %d" % (s(sPUB), s(sPUB), M_S))
    if cls == "3": A.label(Lnors)
    if w0:
        I("s_waitcnt vmcnt(3)")
        w0_check(A)
    shadow_init(A, cls)
    if prof: I("s_mov_b32 s12, %s" % s(STAMP[8]))
    ts(8)
    ts_store()
    tl_mark(A, 74)
    if w0:
        I("s_branch %s" % LB1)
    else:
        I("s_branch %s" % LTOP)
    A.label(LEND)
    I("s_nop 7"); I("s_nop 7")
    I("s_waitcnt vmcnt(0)")
    I("s_mov_b32 %s, %s" % (s(sFMKV), s(sFCUR)))
    signal(A, sFMKV, 44)
    tl_mark(A, 74)
    tl_end(A, 74)
    I("s_branch L_END")

def mem0_issue(A):
    I = A.I
    load_srd(A, S_W2, 32, 9216)
    I("v_subrev_u32 v60, %d, %s" % (STG, v(L16S)))
    I("v_lshrrev_b32 v61, 4, v60")
    I("v_bfe_u32 v62, v61, 2, 2"); I("v_lshlrev_b32 v62, 1, v62")
    I("v_and_b32 v63, 1, v61"); I("v_add_u32 v62, v62, v63")
    I("v_mul_u32_u24 v62, 1152, v62")
    I("v_lshrrev_b32 v63, 4, v61")
    I("v_lshl_add_u32 v62, v63, 4, v62")
    I("v_bfe_u32 v63, v61, 1, 1")
    I("v_lshl_add_u32 v62, v63, 6, v62")
    I("s_lshl_b32 s3, %s, 7" % s(S_WAVE))
    I("buffer_load_dwordx4 v[64:67], v62, s[12:15], s3 offen")
    I("buffer_load_dwordx4 v[68:71], v62, s[12:15], s3 offen offset:512")
    return I("buffer_load_dwordx4 v[72:75], v62, s[12:15], 0 offen offset:1024")

def mem0_finish(A, tok):
    I = A.I
    A.wait_vm(tok)
    I("v_add_u32 v79, %s, %s" % (s(sW1024), v(L16S)))
    I("ds_write_b128 v79, v[64:67]")
    I("ds_write_b128 v79, v[68:71] offset:4096")
    I("ds_write_b128 %s, v[72:75] offset:8192" % v(L16S))
    I("s_waitcnt lgkmcnt(0)")

def chain_role(A, opt):
    G1.setup(A, opt)
    lane_consts(A)
    lane_consts2(A)
    I = A.I
    mtok = mem0_issue(A)
    def sw2a():
        I("s_lshl_b32 s96, %s, 2" % s(sL)); I("s_add_u32 s96, s96, 128")
        I("buffer_load_dword v38, off, s[16:19], 0 sc1")
        I("buffer_load_dword v39, off, s[16:19], s96 sc1")
    def sw2b():
        L = A.newlabel("L_carr"); Lok = A.newlabel("L_carrok")
        I("s_mov_b32 s95, 0")
        A.label(L)
        I("v_min_u32 v38, v38, v39")
        I("v_cmp_gt_u32 vcc, %d, v38" % NARR)
        I("s_cbranch_vccz %s" % Lok)
        I("s_add_u32 s95, s95, 1")
        I("s_cmp_gt_u32 s95, %d" % SPIN_MAX)
        I("s_cbranch_scc1 L_FAIL")
        I("s_sleep 4")
        I("buffer_load_dword v38, off, s[16:19], 0 sc1")
        I("buffer_load_dword v39, off, s[16:19], s96 sc1")
        I("s_waitcnt vmcnt(0)")
        I("s_branch %s" % L)
        A.label(Lok)
    def last():
        I("s_add_u32 s96, s96, 8")
        I("buffer_load_dword v38, off, s[16:19], s96 sc1")
    def lastb():
        I("s_waitcnt vmcnt(0)")
        I("v_readfirstlane_b32 s97, v38")
    G1.load_weights(A, {"first": lambda: mem0_finish(A, mtok), "sw2a": sw2a, "sw2b": sw2b, "last": last, "lastb": lastb})
    scalars(A)
    tl_mark(A, 44)
    I("s_barrier")
    tl_mark(A, 44)
    I = A.I
    mode = opt.get("chain_mode", "auto")
    def classes(sc1):
        tag = "s" if sc1 else "p"
        I("s_cmp_eq_u32 %s, 0" % s(S_WAVE)); I("s_cbranch_scc1 L_cls0%s" % tag)
        I("s_cmp_eq_u32 %s, 3" % s(S_WAVE)); I("s_cbranch_scc1 L_cls3%s" % tag)
        for cls in ("12", "0", "3"):
            if cls != "12": A.label("L_cls%s%s" % (cls, tag))
            if cls == "0":
                w0_spin(A)
                w0_next(A)
            shadow_init(A, cls)
            I("s_waitcnt lgkmcnt(0)")
            step_loop(A, opt, sc1, cls)
    if mode == "auto":
        I("s_bcnt1_i32_b32 s90, s97")
        I("s_cmp_eq_u32 s90, 1")
        I("s_cbranch_scc0 L_ch_slow")
        classes(False)
        A.label("L_ch_slow")
        classes(True)
    else:
        classes(mode == "sc1")
```

```python
from asmlib import *
from lay import *

KNAME = "interleave_layers__sliding_block__memory_aug_recurrent_mem_tr__prompt_kernel"

S_WS = 4
S_W1 = 8
S_W2 = 12
S_DBG = 16
S_WAVE = 20
S_IDX = 21
S_DBGP = 24
S_WSP = 26
SPIN_MAX = 200000

def srd(A, dst, base, nbytes):
    A.I("s_mov_b32 %s, %s" % (s(dst), s(base)))
    A.I("s_and_b32 %s, %s, 0xffff" % (s(dst + 1), s(base + 1)))
    A.I("s_mov_b32 %s, 0x%x" % (s(dst + 2), nbytes))
    A.I("s_mov_b32 %s, 0x20000" % s(dst + 3))

def load_srd(A, dst, karg_off, nbytes, tmp=90):
    A.I("s_load_dwordx2 %s, s[0:1], %d" % (s(tmp, 2), karg_off))
    A.I("s_waitcnt lgkmcnt(0)")
    srd(A, dst, tmp, nbytes)

def prologue(A, opt):
    A.I("s_cmp_ge_u32 s2, 256")
    A.I("s_cbranch_scc1 L_END")
    A.I("s_load_dwordx4 s[24:27], s[0:1], 88")
    A.I("v_lshrrev_b32 v1, 6, v0")
    A.I("s_lshr_b32 %s, s2, 3" % s(S_IDX))
    A.I("v_readfirstlane_b32 %s, v1" % s(S_WAVE))
    A.I("s_waitcnt lgkmcnt(0)")
    srd(A, S_WS, S_WSP, WS_BYTES)
    srd(A, S_DBG, S_DBGP, 256)
    TL["on"] = bool(opt.get("tl")); TL["tl2"] = TL["tl2w"] = bool(opt.get("tl2")); TL["tlq"] = bool(opt.get("tlq"))
    tl_init(A)
    tl_mark(A)
    Lz = A.newlabel("L_nozero")
    A.I("s_and_b32 s3, s2, 7")
    A.I("s_cmp_eq_u32 s3, 7")
    A.I("s_cbranch_scc0 %s" % Lz)
    if opt.get("zero_flags", True):
        A.I("v_lshlrev_b32 v1, 4, v0")
        A.I("s_lshl_b32 s3, %s, 15" % s(S_IDX))
        for i in range(4): A.I("v_mov_b32 %s, 0" % v(4 + i))
        for k in range(8):
            A.I("buffer_store_dwordx4 v[4:7], v1, s[4:7], s3 offen sc1")
            if k < 7: A.I("s_add_u32 s3, s3, 4096")
    arrive(A)
    A.label(Lz)

NARR = 32
TL = {"on": False}
W_TL = 0xF100000
def tl_init(A):
    if not TL["on"]: return
    A.I("s_lshl_b32 s98, s2, 2")
    A.I("s_add_u32 s98, s98, %s" % s(S_WAVE))
    A.I("s_lshl_b32 s98, s98, 10")
    A.I("s_add_u32 s98, s98, 0x%x" % W_TL)
    A.I("s_memtime s[100:101]"); A.I("s_waitcnt lgkmcnt(0)"); A.I("s_mov_b32 s99, s100")
def tl_end(A, vtmp=14):
    if not TL["on"]: return
    A.I("s_or_b32 s98, s98, 0x3ff"); A.I("s_sub_u32 s98, s98, 7")
    A.I("s_memrealtime s[100:101]"); A.I("s_waitcnt lgkmcnt(0)")
    A.I("v_mov_b32 %s, s100" % v(vtmp))
    A.I("buffer_store_dword %s, off, s[4:7], s98" % v(vtmp))
    A.I("s_memtime s[100:101]"); A.I("s_waitcnt lgkmcnt(0)"); A.I("s_sub_u32 s100, s100, s99")
    A.I("v_mov_b32 %s, s100" % v(vtmp))
    A.I("buffer_store_dword %s, off, s[4:7], s98 offset:4" % v(vtmp))
    A.I("s_waitcnt vmcnt(0)")
def tl_mark(A, vtmp=14):
    if not TL["on"]: return
    A.I("s_memrealtime s[100:101]")
    A.I("s_waitcnt lgkmcnt(0)")
    A.I("v_mov_b32 %s, s100" % v(vtmp))
    A.I("buffer_store_dword %s, off, s[4:7], s98" % v(vtmp))
    A.I("s_add_u32 s98, s98, 4")

def arrive(A, soff="0"):
    A.I("s_waitcnt vmcnt(0)")
    A.I("s_barrier")
    L = A.newlabel("L_arr")
    A.I("s_cmp_lg_u32 %s, 0" % s(S_WAVE))
    A.I("s_cbranch_scc1 %s" % L)
    A.I("s_mov_b64 exec, 1")
    A.I("v_mov_b32 v1, 1")
    A.I("buffer_atomic_add v1, off, s[16:19], %s sc1" % soff)
    A.I("s_mov_b64 exec, -1")
    A.label(L)

def wait_all_arrived(A, tmp=90, vtmp=15, soff="0"):
    L = A.newlabel("L_wall"); Ld = A.newlabel("L_walld")
    A.I("s_cmp_lg_u32 %s, 0" % s(S_WAVE))
    A.I("s_cbranch_scc1 %s" % Ld)
    A.I("s_mov_b32 %s, 0" % s(tmp + 1))
    A.label(L)
    A.I("buffer_load_dword %s, off, s[16:19], %s sc1" % (v(vtmp), soff))
    A.I("s_add_u32 %s, %s, 1" % (s(tmp + 1), s(tmp + 1)))
    A.I("s_cmp_gt_u32 %s, %d" % (s(tmp + 1), SPIN_MAX))
    A.I("s_cbranch_scc1 L_FAIL")
    A.I("s_waitcnt vmcnt(0)")
    A.I("v_cmp_gt_u32 vcc, %d, %s" % (NARR, v(vtmp)))
    A.I("s_cbranch_vccz %s" % Ld)
    A.I("s_sleep 4")
    A.I("s_branch %s" % L)
    A.label(Ld)
    A.I("s_barrier")

POLL_SLEEP = 1
def spin_flag(A, soff, target, tmp=90, vtmp=15, voff=None):
    L = A.newlabel("L_sp"); Ld = A.newlabel("L_spd")
    A.I("s_mov_b32 %s, 0" % s(tmp + 1))
    A.label(L)
    if voff is None: A.I("buffer_load_dword %s, off, s[4:7], %s sc1" % (v(vtmp), s(soff)))
    else: A.I("buffer_load_dword %s, %s, s[4:7], %s offen sc1" % (v(vtmp), v(voff), s(soff)))
    A.I("s_add_u32 %s, %s, 1" % (s(tmp + 1), s(tmp + 1)))
    A.I("s_cmp_gt_u32 %s, %d" % (s(tmp + 1), SPIN_MAX))
    A.I("s_cbranch_scc1 L_FAIL")
    A.I("s_waitcnt vmcnt(0)")
    A.I("v_cmp_gt_u32 vcc, %d, %s" % (target, v(vtmp)))
    A.I("s_cbranch_vccz %s" % Ld)
    if POLL_SLEEP: A.I("s_sleep %d" % POLL_SLEEP)
    A.I("s_branch %s" % L)
    A.label(Ld)

def spin_flag_sig(A, soff, target, pend, tmp=90, vtmp=15, voff=None, vsig=13):
    L = A.newlabel("L_sp"); Ld = A.newlabel("L_spd")
    def poll():
        if voff is None: A.I("buffer_load_dword %s, off, s[4:7], %s sc1" % (v(vtmp), s(soff)))
        else: A.I("buffer_load_dword %s, %s, s[4:7], %s offen sc1" % (v(vtmp), v(voff), s(soff)))
    poll()
    A.I("s_mov_b32 %s, 0" % s(tmp + 1))
    A.I("s_waitcnt vmcnt(0)")
    signal(A, pend, vsig)
    A.I("v_cmp_gt_u32 vcc, %d, %s" % (target, v(vtmp)))
    A.I("s_cbranch_vccz %s" % Ld)
    A.label(L)
    poll()
    A.I("s_add_u32 %s, %s, 1" % (s(tmp + 1), s(tmp + 1)))
    A.I("s_cmp_gt_u32 %s, %d" % (s(tmp + 1), SPIN_MAX))
    A.I("s_cbranch_scc1 L_FAIL")
    A.I("s_waitcnt vmcnt(0)")
    A.I("v_cmp_gt_u32 vcc, %d, %s" % (target, v(vtmp)))
    A.I("s_cbranch_vccnz %s" % L)
    A.label(Ld)

def signal(A, soff, vtmp):
    A.I("s_mov_b64 exec, 1")
    A.I("v_mov_b32 %s, 1" % v(vtmp))
    A.I("buffer_atomic_add %s, off, s[4:7], %s sc1" % (v(vtmp), s(soff)))
    A.I("s_mov_b64 exec, -1")

HEADER = open("interleave_layers__sliding_block__memory_aug_recurrent_mem_tr__prompt.s.ref").read().split("; Override launch")[0]

def wrap(body, name=KNAME, grid=256, lds=163840):
    t = HEADER
    t += "; @launch grid=(%d,1,1) block=(256,1,1) lds=%d\n" % (grid, lds)
    t += '.amdgcn_target "amdgcn-amd-amdhsa--gfx950"\n.text\n.globl %s\n.p2align 8\n.type %s,@function\n%s:\n' % (name, name, name)
    t += body
    t += """.section .rodata,"a"
.p2align 6
.amdhsa_kernel %s
  .amdhsa_next_free_vgpr 512
  .amdhsa_next_free_sgpr 102
  .amdhsa_accum_offset 256
  .amdhsa_group_segment_fixed_size 0
  .amdhsa_kernarg_size 104
  .amdhsa_user_sgpr_count 2
  .amdhsa_user_sgpr_kernarg_segment_ptr 1
  .amdhsa_system_sgpr_workgroup_id_x 1
.end_amdhsa_kernel
""" % name
    return t
```

```python
from g_work import *

def role_fin(A):
    I = A.I
    worker_setup(A)
    VU, VR = 5, 6
    I("v_and_b32 v8, 7, %s" % v(LANE))
    I("s_lshl_b32 s3, %s, 3" % s(S_WAVE))
    I("v_add_u32 v8, s3, v8")
    I("v_lshrrev_b32 v9, 3, %s" % v(LANE))
    I("v_lshrrev_b32 v10, 1, v9"); I("v_lshlrev_b32 v10, 10, v10")
    I("v_and_b32 v11, 1, v9"); I("v_lshl_add_u32 v10, v11, 9, v10")
    I("v_lshl_add_u32 %s, v8, 4, v10" % v(VU))
    I("v_mul_u32_u24 v10, 1152, v8")
    I("v_lshl_add_u32 %s, v9, 4, v10" % v(VR))
    I("s_mov_b32 s64, 0x00003f80"); I("s_mov_b32 s65, 0x3f800000"); I("s_mov_b32 s66, 0x3f803f80")
    I("s_mov_b32 s67, 0xffff0000")
    I("s_mov_b32 s68, 0x%x" % fb(1.0 / 576)); I("s_mov_b32 s69, 0x%x" % fb(1e-5))
    load_srd(A, S_W1, 0, 2048 * 1152)
    load_srd(A, S_W2, 80, 2048 * 1152)
    I("s_mov_b32 %s, 0x%x" % (s(sPS), OOB))
    I("s_cmp_lt_u32 s60, 2")
    I("s_cbranch_scc1 L_fin_sync")
    I("s_sub_u32 %s, s60, 2" % s(sSeg))
    fin_stage(A, 0, VU, VR, 8)
    I("s_branch L_fin_go")
    A.label("L_fin_sync")
    start_sync(A)
    A.label("L_fin_go")
    for st, lo, n in ((1, 0, 2), (2, 2, 3), (3, 5, 2), (4, 7, 3)):
        Ln = "L_fin_n%d" % st
        if st < 4:
            I("s_cmp_ge_u32 s60, %d" % (lo + n))
            I("s_cbranch_scc1 %s" % Ln)
        I("s_sub_u32 %s, s60, %d" % (s(sSeg), lo))
        fin_stage(A, st, VU, VR, n)
        final_signal(A)
        A.label(Ln)

def fin_stage(A, st, VU, VR, NS):
    I = A.I
    npart = [0, 1, 4, 1, 4][st]
    lay = [0, 0, 0, 1, 1][st]
    sRes, sPar, sXo, sNo = 70, 71, 72, 73
    if st <= 1: lin(A, sRes, 0, [(sSeg, SEGB)])
    else: lin(A, sRes, W_X + (st - 2) * X_K, [(sSeg, SEGB)])
    if npart == 1:
        lin(A, sPar, W_PA + lay * PA_L, [(sSeg, SEGB)]); pst = SEGB
        lin(A, sFW, (F_PA + lay * 64) * FSTR, [(sSeg, FSTR)]); tgt = 5
    elif npart == 4:
        lin(A, sPar, W_PB + lay * 64 * 4 * SEGB, [(sSeg, 4 * SEGB)]); pst = 4 * SEGB
        lin(A, sFW, (F_PB + lay * 64) * FSTR, [(sSeg, FSTR)]); tgt = 36
    if st in (1, 2, 3): lin(A, sXo, W_X + (st - 1) * X_K, [(sSeg, SEGB)])
    if st == 4: lin(A, sXo, 0, [(sSeg, SEGB)])
    if st < 4:
        lin(A, sNo, W_XN + st * XN_K, [(sSeg, SEGB)])
        lin(A, sFS, (F_XN + st * 64) * FSTR, [(sSeg, FSTR)])
    LT = "L_fin_top%d" % st
    if st == 0: I("s_mov_b32 s62, 0")
    A.label(LT)
    if npart:
        spin_flag_sig(A, sFW, tgt, sPS)
        if TL.get("tl2"): tl_mark(A, 13)
    else:
        Lns = A.newlabel("L_fin_ns")
        I("s_cmp_lg_u32 s62, 1")
        I("s_cbranch_scc1 %s" % Lns)
        I("s_mov_b32 s63, %s" % s(sPS))
        start_sync(A)
        I("s_mov_b32 %s, s63" % s(sPS))
        A.label(Lns)
        I("s_add_u32 s62, s62, 1")
        I("s_waitcnt vmcnt(0)")
        signal(A, sPS, 13)
    X = 16
    P = 64
    F = 64
    xt = []
    for m in range(9):
        if st <= 1: xt.append(I("buffer_load_dwordx4 %s, %s, s[8:11], %s offen offset:%d" % (v(X + 4 * m, 4), v(VR), s(sRes), m * 128)))
        else:
            I("s_add_u32 %s, %s, %d" % (s(sT), s(sRes), m * 4096))
            xt.append(I(("buffer_load_dwordx4 %s, %s, s[4:7], %s offen" + LD) % (v(X + 4 * m, 4), v(VU), s(sT))))
    pt = {}
    for p in range(npart):
        for m in range(9):
            I("s_add_u32 %s, %s, %d" % (s(sT), s(sPar), p * SEGB + m * 4096))
            pt[(p, m)] = I(("buffer_load_dwordx4 %s, %s, s[4:7], %s offen" + LD) % (v(P + 36 * p + 4 * m, 4), v(VU), s(sT)))
    tq = lambda: tl_mark(A, 13) if TL.get("tlq") and st == 2 else None
    tq()
    if npart == 4:
        T = 208
        for m in range(9):
            A.wait_vm(pt[(3, m)])
            for d in range(4):
                r0 = P + 4 * m + d
                I("v_lshlrev_b32 %s, 16, %s" % (v(T + 2 * d), v(r0)))
                I("v_and_b32 %s, s67, %s" % (v(T + 2 * d + 1), v(r0)))
            for p in range(1, 4):
                for d in range(4):
                    r = P + 36 * p + 4 * m + d
                    I("v_dot2_f32_bf16 %s, %s, s64, %s" % (v(T + 2 * d), v(r), v(T + 2 * d)))
                    I("v_dot2_f32_bf16 %s, %s, s65, %s" % (v(T + 2 * d + 1), v(r), v(T + 2 * d + 1)))
            for d in range(4): I("v_cvt_pk_bf16_f32 %s, %s, %s" % (v(P + 4 * m + d), v(T + 2 * d), v(T + 2 * d + 1)))
    tq()
    F = 128
    for m in range(9):
        A.wait_vm(xt[m] if npart != 1 else pt[(0, m)])
        for d in range(4):
            r = X + 4 * m + d
            I("v_lshlrev_b32 %s, 16, %s" % (v(F + 8 * m + 2 * d), v(r)))
            I("v_and_b32 %s, s67, %s" % (v(F + 8 * m + 2 * d + 1), v(r)))
        if npart:
            for d in range(4):
                r = P + 4 * m + d
                I("v_dot2_f32_bf16 %s, %s, s64, %s" % (v(F + 8 * m + 2 * d), v(r), v(F + 8 * m + 2 * d)))
                I("v_dot2_f32_bf16 %s, %s, s65, %s" % (v(F + 8 * m + 2 * d + 1), v(r), v(F + 8 * m + 2 * d + 1)))
            for d in range(4):
                I("v_cvt_pk_bf16_f32 %s, %s, %s" % (v(X + 4 * m + d), v(F + 8 * m + 2 * d), v(F + 8 * m + 2 * d + 1)))
            if st == 4:
                I("buffer_store_dwordx4 %s, %s, s[12:15], %s offen offset:%d" % (v(X + 4 * m, 4), v(VR), s(sXo), m * 128))
            else:
                I("s_add_u32 %s, %s, %d" % (s(sT), s(sXo), m * 4096))
                I("buffer_store_dwordx4 %s, %s, s[4:7], %s offen sc1" % (v(X + 4 * m, 4), v(VU), s(sT)))
                for d in range(4):
                    r = X + 4 * m + d
                    I("v_lshlrev_b32 %s, 16, %s" % (v(F + 8 * m + 2 * d), v(r)))
                    I("v_and_b32 %s, s67, %s" % (v(F + 8 * m + 2 * d + 1), v(r)))
    tq()
    if st < 4:
        def red(r, tmp):
            I("v_add_f32_dpp %s, %s, %s row_ror:8 row_mask:0xf bank_mask:0xf" % (v(r), v(r), v(r)))
            I("v_mov_b32 %s, %s" % (v(tmp), v(r)))
            I("v_permlane16_swap_b32 %s, %s" % (v(r), v(tmp)))
            I("v_add_f32 %s, %s, %s" % (v(r), v(r), v(tmp)))
            I("v_mov_b32 %s, %s" % (v(tmp), v(r)))
            I("v_permlane32_swap_b32 %s, %s" % (v(r), v(tmp)))
            I("v_add_f32 %s, %s, %s" % (v(r), v(r), v(tmp)))
        S_ = 208
        for c in range(4): I("v_pk_add_f32 %s, %s, %s" % (v(S_ + 2 * c, 2), v(F + 2 * c, 2), v(F + 8 + 2 * c, 2)))
        for m in range(2, 9):
            for c in range(4): I("v_pk_add_f32 %s, %s, %s" % (v(S_ + 2 * c, 2), v(S_ + 2 * c, 2), v(F + 8 * m + 2 * c, 2)))
        I("v_pk_add_f32 v[208:209], v[208:209], v[210:211]"); I("v_pk_add_f32 v[212:213], v[212:213], v[214:215]")
        I("v_pk_add_f32 v[208:209], v[208:209], v[212:213]")
        I("v_add_f32 v208, v208, v209")
        red(208, 209)
        I("v_mul_f32 v208, s68, v208")
        I("v_sub_f32 v216, 0, v208"); I("v_mov_b32 v217, v216")
        for i in range(36): I("v_pk_add_f32 %s, %s, v[216:217]" % (v(F + 2 * i, 2), v(F + 2 * i, 2)))
        for c in range(4): I("v_pk_mul_f32 %s, %s, %s" % (v(S_ + 2 * c, 2), v(F + 2 * c, 2), v(F + 2 * c, 2)))
        for m in range(1, 9):
            for c in range(4):
                I("v_pk_fma_f32 %s, %s, %s, %s" % (v(S_ + 2 * c, 2), v(F + 8 * m + 2 * c, 2), v(F + 8 * m + 2 * c, 2), v(S_ + 2 * c, 2)))
        I("v_pk_add_f32 v[208:209], v[208:209], v[210:211]"); I("v_pk_add_f32 v[212:213], v[212:213], v[214:215]")
        I("v_pk_add_f32 v[208:209], v[208:209], v[212:213]")
        I("v_add_f32 v208, v208, v209")
        red(208, 209)
        I("v_mov_b32 v209, s69")
        I("v_fma_f32 v208, v208, s68, v209")
        I("v_rsq_f32 v216, v208")
        I("v_mov_b32 v217, v216")
        for m in range(9):
            for c in range(4): I("v_pk_mul_f32 %s, %s, v[216:217]" % (v(F + 8 * m + 2 * c, 2), v(F + 8 * m + 2 * c, 2)))
            for d in range(4): I("v_cvt_pk_bf16_f32 %s, %s, %s" % (v(64 + 4 * m + d), v(F + 8 * m + 2 * d), v(F + 8 * m + 2 * d + 1)))
            I("s_add_u32 %s, %s, %d" % (s(sT), s(sNo), m * 4096))
            I("buffer_store_dwordx4 %s, %s, s[4:7], %s offen sc1" % (v(64 + 4 * m, 4), v(VU), s(sT)))
        I("s_mov_b32 %s, %s" % (s(sPS), s(sFS)))
    tl_mark(A, 12)
    I("s_add_u32 %s, %s, %d" % (s(sRes), s(sRes), NS * SEGB))
    if npart:
        I("s_add_u32 %s, %s, %d" % (s(sPar), s(sPar), NS * pst))
        I("s_add_u32 %s, %s, %d" % (s(sFW), s(sFW), NS * FSTR))
    if st >= 1: I("s_add_u32 %s, %s, %d" % (s(sXo), s(sXo), NS * SEGB))
    if st < 4:
        I("s_add_u32 %s, %s, %d" % (s(sNo), s(sNo), NS * SEGB))
        I("s_add_u32 %s, %s, %d" % (s(sFS), s(sFS), NS * FSTR))
    I("s_add_u32 %s, %s, %d" % (s(sSeg), s(sSeg), NS))
    I("s_cmp_lt_u32 %s, 64" % s(sSeg))
    I("s_cbranch_scc1 %s" % LT)
    if st == 0:
        I("s_waitcnt vmcnt(0)")
        signal(A, sPS, 13)
        I("s_mov_b32 %s, 0x%x" % (s(sPS), OOB))
```

```python
from g_common import *
import struct
fb = lambda x: struct.unpack("<I", struct.pack("<f", x))[0]
OOB = 0x7FFF0000
import os
LD = ' sc1' if os.environ.get('LDSC1') else ''
LANE, L16, LB1, LB2 = 1, 2, 3, 4
sLy, sSeg = 22, 23
sFW, sFS, sX, sO = 28, 29, 30, 31
sPLO, sPHI = 32, 33
sT, sT2, sT3 = 34, 35, 36
sXS = 40
sO2 = 37
sSC = 38
sPS = 39

def wait2(A, vtok=None, ltok=None):
    parts = []
    if vtok is not None: parts.append("vmcnt(%d)" % min(A.vm_issued - vtok[1], 63))
    if ltok is not None: parts.append("lgkmcnt(%d)" % min(A.lgkm_issued - ltok[1], 15))
    A.I("s_waitcnt " + " ".join(parts))

def lds_ref(off):
    if off < 61440: return L16, off
    if off < 122880: return LB1, off - 61440
    return LB2, off - 122880

def worker_setup(A):
    I = A.I
    I("v_and_b32 %s, 63, v0" % v(LANE))
    I("v_lshlrev_b32 %s, 4, %s" % (v(L16), v(LANE)))
    I("v_add_u32 %s, 61440, %s" % (v(LB1), v(L16)))
    I("v_add_u32 %s, 122880, %s" % (v(LB2), v(L16)))
    I("s_mov_b32 %s, 0x05040100" % s(sPLO))
    I("s_mov_b32 %s, 0x07060302" % s(sPHI))

def lin(A, dst, c0, terms):
    I = A.I
    I("s_mov_b32 %s, 0x%x" % (s(dst), c0 & 0xffffffff))
    for (r, m) in terms:
        if m == 0: continue
        I("s_mul_i32 s3, %s, 0x%x" % (s(r), m))
        I("s_add_u32 %s, %s, s3" % (s(dst), s(dst)))

def load_w(A, ld, nt, groups, width, iters, per, base_fn, deltas, t_fn):
    I = A.I
    RB = 16
    nreg = 8 * width * len(groups)
    assert RB + per * nreg + 4 * nt <= 250
    TB = RB + per * nreg
    I("s_mov_b32 s90, 0")
    L = A.newlabel("L_w")
    A.label(L)
    toks = []
    for u in range(per):
        t_fn(u)
        I("s_mov_b32 %s, %s" % (s(64 + u), s(sT)))
        base_fn()
        for i in range(8):
            I("s_add_u32 %s, %s, %d" % (s(sT3), s(sT2), deltas[i] * ld))
            for g, vo in enumerate(groups):
                r = RB + u * nreg + (g * 8 + i) * width
                op = "buffer_load_dwordx2" if width == 2 else "buffer_load_dword"
                tok = I("%s %s, %s, s[8:11], %s offen" % (op, v(r, width), v(vo), s(sT3)))
        toks.append(tok)
    for u in range(per):
        A.wait_vm(toks[u])
        I("s_mul_i32 s3, %s, %d" % (s(64 + u), nt * 1024))
        I("v_add_u32 v15, s3, %s" % v(L16))
        for tile in range(nt):
            for m in range(4):
                if width == 2:
                    lo = RB + u * nreg + (2 * m) * 2 + (tile >> 1); hi = lo + 2
                else:
                    lo = RB + u * nreg + (tile >> 1) * 8 + 2 * m; hi = lo + 1
                I("v_perm_b32 %s, %s, %s, %s" % (v(TB + 4 * tile + m), v(hi), v(lo), s(sPHI if tile & 1 else sPLO)))
            I("ds_write_b128 v15, %s offset:%d" % (v(TB + 4 * tile, 4), tile * 1024))
        I("s_waitcnt lgkmcnt(0)")
    I("s_add_u32 s90, s90, 1")
    I("s_cmp_lt_u32 s90, %d" % iters)
    I("s_cbranch_scc1 %s" % L)

ACC = 64; WB = 128
def gemm_core(A, nk, nt, swapped, xreg=lambda t: a(4 * t, 4), xtoks=None, wbuf=WB, acc=ACC, ldsbase=0, fill=None):
    I = A.I
    wt = {}
    def wread(t, tile):
        r, o = lds_ref(ldsbase + (t * nt + tile) * 1024)
        return I("ds_read_b128 %s, %s offset:%d" % (v(wbuf + ((t % 3) * nt + tile) * 4, 4), v(r), o))
    for t in range(2):
        for tile in range(nt): wt[(t, tile)] = wread(t, tile)
    for t in range(nk):
        wait2(A, xtoks[t] if xtoks else None, wt[(t, nt - 1)])
        if fill and t == NUP: assert xtoks[t] is not None
        for tile in range(nt):
            w = v(wbuf + ((t % 3) * nt + tile) * 4, 4)
            c = "0" if t == 0 else v(acc + 16 * tile, 16)
            x, y = (xreg(t), w) if swapped else (w, xreg(t))
            I("v_mfma_f32_32x32x16_bf16 %s, %s, %s, %s" % (v(acc + 16 * tile, 16), x, y, c))
            if t + 2 < nk: wt[(t + 2, tile)] = wread(t + 2, tile)
            if isinstance(xtoks, XL): xtoks.step(t, tile, nt)
            if fill: fill(t, tile, nt)

class XL:
    def __init__(s_, A, nk, sbase, extra=(), xreg=lambda t: a(4 * t, 4), nup=None):
        s_.A, s_.nk, s_.sbase, s_.xreg, s_.toks, s_.extra, s_.etoks = A, nk, sbase, xreg, {}, list(extra), []
        s_.n = 0
        if nup == "pre":
            s_.n = NUP
            for t in range(NUP): s_.toks[t] = None
        else:
            for _ in range(min(nk, NUP if nup is None else nup)): s_.one()
    def one(s_):
        A = s_.A; t = s_.n
        if t < s_.nk:
            if (t % 4 == 0 and t) or (t == NUP and t >= 4): A.I("s_add_u32 %s, %s, %d" % (s(sXT), s(s_.sbase), (t // 4) * 4096))
            sr = s_.sbase if t < 4 else sXT
            s_.toks[t] = A.I(("buffer_load_dwordx4 %s, %s, s[4:7], %s offen offset:%d" + LD) % (s_.xreg(t), v(L16), s(sr), (t % 4) * 1024))
            s_.n += 1
        elif s_.extra:
            s_.etoks.append(s_.extra.pop(0)())
    def __getitem__(s_, t): return s_.toks[t]
    def step(s_, t, tile, nt):
        per = XPER
        if tile < per or (nt < per and tile == nt - 1):
            for _ in range(1 if tile < nt - 1 or nt >= per else per - nt + 1): s_.one()
import os
NUP = int(os.environ.get("NUP", 8)); XPER = int(os.environ.get("XPER", 2)); sXT = 27

def load_x(A, nk, sbase, xreg=lambda t: a(4 * t, 4)):
    return XL(A, nk, sbase, xreg=xreg)

sNX = 85
def first_x(A, sbase, extra_off=0):
    I = A.I
    for t in range(NUP):
        if t % 4 == 0: I("s_add_u32 %s, %s, 0x%x" % (s(sXT), s(sbase), extra_off + t * 1024))
        I(("buffer_load_dwordx4 %s, %s, s[4:7], %s offen offset:%d" + LD) % (a(4 * t, 4), v(L16), s(sXT), (t % 4) * 1024))

def task_head(A, sflag, target, voff=None, vsig=13):
    I = A.I
    Lw = A.newlabel("L_warm")
    I("s_cmp_lg_u32 %s, 0" % s(sNX))
    I("s_cbranch_scc1 %s" % Lw)
    spin_flag_sig(A, sflag, target, sPS, voff=voff, vsig=vsig)
    I("s_mov_b32 %s, 0x%x" % (s(sPS), OOB))
    first_x(A, sX)
    I("s_waitcnt vmcnt(0)")
    A.label(Lw)
    if TL.get("tl2w"): tl_mark(A, vsig)

def look_fill(A, sflag, fstride, target, xstride, TP, TC, vsig=13, more=None, poll=None, check=None):
    I = A.I
    def fill(t, tile, nt):
        if t == NUP and tile == 0: signal(A, sPS, vsig)
        if tile != nt - 1: return
        if t == TP:
            if poll: poll()
            else:
                I("s_add_u32 s3, %s, 0x%x" % (s(sflag), fstride))
                I("buffer_load_dword v14, off, s[4:7], s3 sc1")
        if t == TC:
            Ls = A.newlabel("L_nnx")
            I("s_waitcnt vmcnt(0)")
            if check: check()
            else: I("v_cmp_le_u32 vcc, %d, v14" % target)
            I("s_nop 3")
            I("s_and_b32 %s, vcc_lo, 1" % s(sNX))
            if more: more()
            I("s_cmp_lt_u32 %s, 62" % s(sSeg))
            I("s_cselect_b32 %s, %s, 0" % (s(sNX), s(sNX)))
            I("s_cmp_eq_u32 %s, 0" % s(sNX))
            I("s_cbranch_scc1 %s" % Ls)
            first_x(A, sX, xstride)
            A.label(Ls)
    return fill

def load_x_old(A, nk, sbase, xreg=lambda t: a(4 * t, 4)):
    I = A.I
    toks = []
    for t in range(nk):
        if t % 4 == 0:
            if t: I("s_add_u32 %s, %s, %d" % (s(sT), s(sbase), t * 1024))
        sr = sbase if t < 4 else sT
        toks.append(I(("buffer_load_dwordx4 %s, %s, s[4:7], %s offen offset:%d" + LD) % (xreg(t), v(L16), s(sr), (t % 4) * 1024)))
    return toks

def store_units(A, units, sbase, vaddr=L16, tmp=16):
    I = A.I
    cur = None
    k = 0
    for off, srcs in units:
        d = tmp + 4 * (k % 4); k += 1
        for m in range(4):
            (x0, c0), (x1, c1) = srcs[2 * m], srcs[2 * m + 1]
            if c0 is not None:
                I("v_mul_f32 %s, %s, %s" % (v(x0), s(c0), v(x0)))
                I("v_mul_f32 %s, %s, %s" % (v(x1), s(c1), v(x1)))
            I("v_cvt_pk_bf16_f32 %s, %s, %s" % (v(d + m), v(x0), v(x1)))
        blk = off // 4096
        if blk == 0: sr = sbase
        else:
            if cur != blk:
                I("s_add_u32 %s, %s, %d" % (s(sO2), s(sbase), blk * 4096)); cur = blk
            sr = sO2
        I("buffer_store_dwordx4 %s, %s, s[4:7], %s offen offset:%d sc1" % (v(d, 4), v(vaddr), s(sr), off % 4096))

def ep_unit8(nt, acc=ACC):
    return [((2 * tau + jj) * 1024, [(acc + 16 * tau + 8 * jj + i, None) for i in range(8)]) for tau in range(nt) for jj in range(2)]
def ep_pair(ngroups, scale0=None, acc=ACC):
    u = []
    for b in range(ngroups):
        sc = scale0 if b == 0 else None
        for j in range(4):
            srcs = []
            for r in range(4):
                srcs += [(acc + 16 * (2 * b) + 4 * j + r, sc), (acc + 16 * (2 * b + 1) + 4 * j + r, sc)]
            u.append(((4 * b + j) * 1024, srcs))
    return u
def ep_qm(scale=None, acc=ACC):
    u = []
    for j in range(4):
        for hh in range(2):
            srcs = []
            for r in range(4):
                srcs += [(acc + 16 * (2 * hh) + 4 * j + r, scale), (acc + 16 * (2 * hh + 1) + 4 * j + r, scale)]
            u.append((j * 2048 + hh * 512, srcs))
    return u

def task_init(A, fw, fs, xb, ob):
    I = A.I
    I("s_lshr_b32 %s, %s, 1" % (s(sLy), s(S_WAVE)))
    I("s_and_b32 %s, %s, 1" % (s(sSeg), s(S_WAVE)))
    for dst, (c0, cl, cs, ex) in ((sFW, fw), (sFS, fs), (sX, xb), (sO, ob)):
        lin(A, dst, c0, [(sLy, cl), (sSeg, cs)] + list(ex))

def task_next(A, fw, fs, xb, ob, LTOP):
    I = A.I
    tl_mark(A)
    for dst, (c0, cl, cs, ex) in ((sFW, fw), (sFS, fs), (sX, xb), (sO, ob)):
        I("s_add_u32 %s, %s, 0x%x" % (s(dst), s(dst), 2 * cs))
    I("s_add_u32 %s, %s, 2" % (s(sSeg), s(sSeg)))
    I("s_cmp_lt_u32 %s, 64" % s(sSeg))
    I("s_cbranch_scc1 %s" % LTOP)
    final_signal(A)

def final_signal(A):
    A.I("s_waitcnt vmcnt(0)")
    signal(A, sPS, 13)
    A.I("s_waitcnt vmcnt(0)")
    tl_end(A)
    A.I("s_branch L_END")

def start_sync(A):
    A.I("s_mov_b32 %s, 0x%x" % (s(sPS), OOB))
    A.I("s_mov_b32 %s, 0" % s(sNX))
    A.I("s_waitcnt vmcnt(0) lgkmcnt(0)")
    tl_mark(A)
    wait_all_arrived(A)
    tl_mark(A)

def g32_role(A, name, nk, nt, swapped, fw, ftarget, fs, xb, ob, units, vaddr=L16, extra_ep=None):
    I = A.I
    task_init(A, fw, fs, xb, ob)
    start_sync(A)
    LTOP = "L_%s_top" % name
    A.label(LTOP)
    g32_body(A, nk, nt, swapped, fw, ftarget, xb)
    I("s_waitcnt vmcnt(0)")
    store_units(A, units, sO, vaddr)
    if extra_ep: extra_ep()
    I("s_mov_b32 %s, %s" % (s(sPS), s(sFS)))
    task_next(A, fw, fs, xb, ob, LTOP)

def g32_body(A, nk, nt, swapped, fw, ftarget, xb, vsig=13):
    task_head(A, sFW, ftarget, vsig=vsig)
    toks = XL(A, nk, sX, nup="pre")
    TP, TC = {(36, 4): (16, 25), (36, 2): (16, 30), (64, 2): (36, 54)}[(nk, nt)]
    gemm_core(A, nk, nt, swapped, xtoks=toks, fill=look_fill(A, sFW, 2 * fw[2], ftarget, 2 * xb[2], TP, TC, vsig))

def nat_t(A, per):
    def f(u):
        A.I("s_mul_i32 %s, s90, %d" % (s(sT), 4 * per))
        A.I("s_add_u32 %s, %s, %s" % (s(sT), s(sT), s(S_WAVE)))
        if u: A.I("s_add_u32 %s, %s, %d" % (s(sT), s(sT), 4 * u))
    return f

def col_regs(A):
    A.I("v_and_b32 v8, 31, %s" % v(LANE))
    A.I("v_lshrrev_b32 v9, 5, %s" % v(LANE))

def vmul_const(A, dst, src, c):
    A.I("s_mov_b32 s3, %d" % c)
    A.I("v_mul_lo_u32 %s, %s, s3" % (v(dst), v(src)))

def w_natural(A, ld, nt, groups, width):
    load_w(A, ld, nt, groups, width, 1, 9, lambda: A.I("s_mul_i32 %s, %s, %d" % (s(sT2), s(sT), 16 * ld)), list(range(8)), nat_t(A, 9))

def bw_load(A, karg):
    I = A.I
    load_srd(A, S_W1, karg, 576 * 8192)
    col_regs(A)
    I("v_lshlrev_b32 v10, 16, v9")
    I("v_lshl_add_u32 v10, v8, 3, v10")
    I("s_lshl_b32 s3, %s, 8" % s(S_IDX))
    I("v_add_u32 v10, s3, v10")
    w_natural(A, 8192, 4, [10], 2)

def role_bkv(A, isv):
    name = "bv" if isv else "bk"
    worker_setup(A)
    bw_load(A, 56 if isv else 48)
    fw = ((F_XN + 64) * FSTR, 128 * FSTR, FSTR, [])
    fs = (F_KV * FSTR, 64 * 32 * FSTR, 32 * FSTR, [(S_IDX, FSTR)])
    xb = (W_XN + XN_K, 2 * XN_K, SEGB, [])
    ob = (W_KV + (8192 if isv else 0), 64 * 32 * KV_H, 32 * KV_H, [(S_IDX, KV_H)])
    g32_role(A, name, 36, 4, isv, fw, 4, fs, xb, ob, ep_unit8(4))

QSC = 18 ** -0.5 * 1.4426950408889634
def role_aq(A):
    I = A.I
    worker_setup(A)
    load_srd(A, S_W1, 8, 576 * 3456)
    col_regs(A)
    fw = (F_XN * FSTR, 128 * FSTR, FSTR, [])
    fs = (F_QKVA * FSTR, 64 * FSTR, FSTR, [])
    xb = (W_XN, 2 * XN_K, SEGB, [])
    I("s_mov_b32 %s, 0x%x" % (s(sSC), fb(QSC)))
    vmul_const(A, 11, 9, 8 * 3456)
    I("s_cmp_ge_u32 %s, 12" % s(S_IDX))
    I("s_cbranch_scc1 L_aq_x")
    I("s_lshr_b32 s91, %s, 2" % s(S_IDX))
    I("s_and_b32 s92, %s, 3" % s(S_IDX))
    I("v_lshrrev_b32 v10, 2, v8")
    I("v_mul_u32_u24 v10, 36, v10")
    I("v_and_b32 v12, 3, v8")
    I("v_lshl_add_u32 v10, v12, 3, v10")
    I("v_add_u32 v10, v10, v11")
    I("s_mul_i32 s3, s91, 1152"); I("s_mul_i32 s93, s92, 288"); I("s_add_u32 s3, s3, s93")
    I("v_add_u32 v10, s3, v10")
    I("s_mov_b32 s60, s91"); I("s_mov_b32 s61, s92")
    w_natural(A, 3456, 4, [10], 2)
    I("s_cmp_eq_u32 s60, 2")
    I("s_cbranch_scc1 L_aq_v")
    I("s_cmp_eq_u32 s60, 0")
    I("s_cselect_b32 %s, %s, 1.0" % (s(sSC), s(sSC)))
    I("v_lshlrev_b32 v12, 10, v9")
    I("v_lshl_add_u32 v12, v8, 4, v12")
    ob = (W_QKVA, 64 * QKVA_S, QKVA_S, [(60, 32768), (61, 8192)])
    g32_role(A, "aqm", 36, 4, False, fw, 4, fs, xb, ob, ep_qm(sSC), vaddr=12)
    A.label("L_aq_v")
    ob = (W_QKVA + 65536, 64 * QKVA_S, QKVA_S, [(61, 8192)])
    g32_role(A, "aqv", 36, 4, True, fw, 4, fs, xb, ob, ep_unit8(4))
    A.label("L_aq_x")
    I("v_mul_u32_u24 v10, 36, v8")
    I("v_add_u32 v10, v10, v11")
    I("v_add_u32 v10, 32, v10")
    I("s_cmp_eq_u32 %s, 14" % s(S_IDX))
    I("s_cbranch_scc1 L_aq_xv")
    I("s_sub_u32 s60, %s, 12" % s(S_IDX))
    I("s_mul_i32 s3, s60, 1152")
    I("v_add_u32 v10, s3, v10")
    w_natural(A, 3456, 2, [10], 1)
    I("s_cmp_eq_u32 s60, 0")
    I("s_cselect_b32 %s, %s, 1.0" % (s(sSC), s(sSC)))
    ob = (W_QKVA + 98304, 64 * QKVA_S, QKVA_S, [(60, 4096)])
    g32_role(A, "aqx", 36, 2, False, fw, 4, fs, xb, ob, ep_pair(1, sSC))
    A.label("L_aq_xv")
    I("v_add_u32 v10, 2304, v10")
    w_natural(A, 3456, 2, [10], 1)
    ob = (W_QKVA + 98304 + 8192, 64 * QKVA_S, QKVA_S, [])
    def ones():
        for r in range(4): I("v_mov_b32 %s, 0x3f803f80" % v(40 + r))
        I("s_add_u32 %s, %s, 4096" % (s(sO2), s(sO)))
        I("buffer_store_dwordx4 v[40:43], %s, s[4:7], %s offen sc1" % (v(L16), s(sO2)))
        I("buffer_store_dwordx4 v[40:43], %s, s[4:7], %s offen offset:1024 sc1" % (v(L16), s(sO2)))
    g32_role(A, "aqxv", 36, 2, True, fw, 4, fs, xb, ob, ep_unit8(2), extra_ep=ones)

def role_aw(A):
    I = A.I
    worker_setup(A)
    load_srd(A, S_W1, 16, 576 * 1152)
    col_regs(A)
    I("s_lshl_b32 s3, %s, 8" % s(S_IDX))
    I("v_lshlrev_b32 v12, 2, v8")
    I("v_add_u32 v12, s3, v12")
    I("s_cmp_eq_u32 %s, 4" % s(S_IDX))
    I("s_mov_b32 s61, 128")
    I("s_cselect_b32 s61, 0x%x, s61" % OOB)
    vmul_const(A, 13, 9, 4 * 1152)
    I("v_add_u32 v10, v12, v13")
    I("v_add_u32 v11, s61, v10")
    d0 = [(i & 3) + 8 * (i >> 2) for i in range(8)]
    load_w(A, 1152, 4, [10, 11], 1, 1, 8, lambda: I("s_mul_i32 %s, %s, %d" % (s(sT2), s(sT), 18 * 1152)), d0, nat_t(A, 8))
    vmul_const(A, 13, 9, 72 * 1152)
    I("v_add_u32 v10, v12, v13")
    I("v_add_u32 v11, s61, v10")
    d1 = [18 * (i >> 1) + 16 + (i & 1) for i in range(8)]
    def base1():
        I("s_mul_i32 %s, %s, %d" % (s(sT2), s(S_WAVE), 144 * 1152))
    load_w(A, 1152, 4, [10, 11], 1, 1, 1, base1, d1, lambda u: I("s_add_u32 %s, %s, 32" % (s(sT), s(S_WAVE))))
    fw = (F_OA * FSTR, 64 * FSTR, FSTR, [])
    fs = (F_PA * FSTR, 64 * FSTR, FSTR, [])
    xb = (W_OA, OA_L, SEGB, [])
    ob = (W_PA, PA_L, SEGB, [(S_IDX, 8192)])
    units = ep_pair(2)
    I("s_cmp_eq_u32 %s, 4" % s(S_IDX))
    I("s_cselect_b32 s61, 0x%x, 0" % OOB)
    I("v_add_u32 v12, s61, %s" % v(L16))
    task_init(A, fw, fs, xb, ob)
    start_sync(A)
    A.label("L_aw_top")
    g32_body(A, 36, 4, False, fw, 32, xb)
    I("s_waitcnt vmcnt(0)")
    store_units(A, units[:4], sO, L16)
    store_units(A, units[4:], sO, 12)
    I("s_mov_b32 %s, %s" % (s(sPS), s(sFS)))
    task_next(A, fw, fs, xb, ob, "L_aw_top")

def role_op(A):
    I = A.I
    worker_setup(A)
    load_srd(A, S_W1, 64, 4096 * 1152)
    col_regs(A)
    I("v_lshlrev_b32 v10, 2, v8")
    vmul_const(A, 13, 9, 16 * 1152)
    I("v_add_u32 v10, v10, v13")
    I("s_lshl_b32 s3, s61, 7")
    I("v_add_u32 v10, s3, v10")
    d = [32 * (i >> 2) + 4 * (i & 3) for i in range(8)]
    def base():
        I("s_lshr_b32 s91, %s, 3" % s(sT))
        I("s_lshl_b32 s92, s60, 3"); I("s_add_u32 s91, s91, s92"); I("s_lshl_b32 s91, s91, 7")
        I("s_and_b32 s92, %s, 1" % s(sT)); I("s_lshl_b32 s92, s92, 6"); I("s_add_u32 s91, s91, s92")
        I("s_bfe_u32 s92, %s, 0x20001" % s(sT)); I("s_add_u32 s91, s91, s92")
        I("s_mul_i32 %s, s91, 1152" % s(sT2))
    load_w(A, 1152, 2, [10], 1, 1, 16, base, d, nat_t(A, 16))
    fw = (F_OB * FSTR, 64 * 4 * FSTR, 4 * FSTR, [(60, FSTR)])
    fs = (F_PB * FSTR, 64 * FSTR, FSTR, [])
    xb = (W_OB, 64 * OB_S, OB_S, [(60, 8 * 8192)])
    ob = (W_PB, 64 * 4 * SEGB, 4 * SEGB, [(60, SEGB), (61, 4096)])
    g32_role(A, "op", 64, 2, False, fw, 8, fs, xb, ob, ep_pair(1))
```

```python
import sys
from g_common import *
import g_chain, g_chain2, g_work, g_att, g_fin

ALL = ["chain", "bk", "bv", "qa", "op", "aw", "aq", "aa", "fin"]
NAA = 30
def build(opt):
    A = Asm()
    prologue(A, opt)
    roles = opt.get("roles", ALL)
    I = A.I
    def tgt(r): return "L_R_" + r if r in roles else "L_IDLE"
    I("s_and_b32 s3, s2, 7")
    I("s_cmp_lt_u32 s3, 2"); I("s_cbranch_scc1 %s" % tgt("chain"))
    I("s_cmp_eq_u32 s3, 2"); I("s_cbranch_scc1 %s" % tgt("bk"))
    I("s_cmp_eq_u32 s3, 3"); I("s_cbranch_scc1 %s" % tgt("bv"))
    I("s_cmp_eq_u32 s3, 4"); I("s_cbranch_scc1 %s" % tgt("qa"))
    I("s_cmp_eq_u32 s3, 5"); I("s_cbranch_scc1 L_X5")
    I("s_cmp_eq_u32 s3, 6"); I("s_cbranch_scc1 L_X6")
    I("s_mov_b32 s60, %s" % s(S_IDX))
    I("s_cmp_lt_u32 %s, 10" % s(S_IDX)); I("s_cbranch_scc1 %s" % tgt("fin"))
    I("s_sub_u32 s60, %s, 2" % s(S_IDX))
    I("s_branch %s" % tgt("aa"))
    A.label("L_X5")
    I("s_cmp_ge_u32 %s, 27" % s(S_IDX)); I("s_cbranch_scc1 L_X5b")
    I("s_mul_i32 s60, %s, 57" % s(S_IDX)); I("s_lshr_b32 s60, s60, 9")
    I("s_mul_i32 s3, s60, 9"); I("s_sub_u32 s61, %s, s3" % s(S_IDX))
    I("s_branch %s" % tgt("op"))
    A.label("L_X5b")
    I("s_sub_u32 %s, %s, 27" % (s(S_IDX), s(S_IDX)))
    I("s_branch %s" % tgt("aw"))
    A.label("L_X6")
    I("s_cmp_ge_u32 %s, 9" % s(S_IDX)); I("s_cbranch_scc1 L_X6b")
    I("s_mov_b32 s60, 3"); I("s_mov_b32 s61, %s" % s(S_IDX))
    I("s_branch %s" % tgt("op"))
    A.label("L_X6b")
    I("s_cmp_ge_u32 %s, 24" % s(S_IDX)); I("s_cbranch_scc1 L_X6c")
    I("s_sub_u32 %s, %s, 9" % (s(S_IDX), s(S_IDX)))
    I("s_branch %s" % tgt("aq"))
    A.label("L_X6c")
    I("s_sub_u32 s60, %s, 24" % s(S_IDX))
    I("s_branch %s" % tgt("aa"))
    A.label("L_IDLE")
    I("s_branch L_END")
    fn = {"chain": lambda: (g_chain if opt.get("v1") else g_chain2).chain_role(A, opt), "bk": lambda: g_work.role_bkv(A, False), "bv": lambda: g_work.role_bkv(A, True),
          "qa": lambda: g_att.role_qa(A), "op": lambda: g_work.role_op(A), "aw": lambda: g_work.role_aw(A), "aq": lambda: g_work.role_aq(A),
          "aa": lambda: g_att.role_aa(A, NAA), "fin": lambda: g_fin.role_fin(A)}
    for r in ALL:
        if r in roles:
            A.label("L_R_" + r)
            fn[r]()
            I("s_endpgm")
    A.label("L_FAIL")
    I("s_mov_b64 exec, 1")
    I("v_mov_b32 v1, s2")
    I("v_add_u32 v1, 0x1000, v1")
    I("buffer_store_dword v1, off, s[16:19], 0 offset:16")
    I("s_waitcnt vmcnt(0)")
    A.label("L_END")
    I("s_endpgm")
    return wrap(A.text()), A

if __name__ == "__main__":
    t, A = build({})
    open("test.s", "w").write(t)
    print("bytes", len(t), "instrs", A.nins, "nops", A.nops_added)
```

```python
from g_work import *

NEGINF = 0xff800000
def mf32(A, d, x, y, c): A.I("v_mfma_f32_32x32x16_bf16 %s, %s, %s, %s" % (v(d, 16), x, y, c))
def mf8(A, d, x, y, c): A.I("v_mfma_f32_32x32x8bf16_1k %s, %s, %s, %s" % (v(d, 16), x, y, c))

def xhalf(A, op, r, tmp):
    A.I("v_mov_b32 %s, %s" % (v(tmp), v(r)))
    A.I("v_permlane32_swap_b32 %s, %s" % (v(r), v(tmp)))
    A.I("%s %s, %s, %s" % (op, v(r), v(r), v(tmp)))

def max_tree(A, dst, regs):
    I = A.I
    regs = list(regs)
    if len(regs) >= 12:
        nch = 4
        parts = [regs[i::nch] for i in range(nch)]
        st = [None] * nch
        done = False
        idx = [0] * nch
        while not done:
            done = True
            for c in range(nch):
                p = parts[c]; i = idx[c]
                if i >= len(p): continue
                done = False
                if st[c] is None:
                    if len(p) - i >= 3:
                        I("v_max3_f32 %s, %s, %s, %s" % (v(dst + c), v(p[i]), v(p[i + 1]), v(p[i + 2]))); idx[c] += 3
                    else:
                        I("v_max_f32 %s, %s, %s" % (v(dst + c), v(p[i]), v(p[i + 1]))); idx[c] += 2
                    st[c] = 1
                elif len(p) - i >= 2:
                    I("v_max3_f32 %s, %s, %s, %s" % (v(dst + c), v(dst + c), v(p[i]), v(p[i + 1]))); idx[c] += 2
                else:
                    I("v_max_f32 %s, %s, %s" % (v(dst + c), v(dst + c), v(p[i]))); idx[c] += 1
        I("v_max3_f32 %s, %s, %s, %s" % (v(dst), v(dst), v(dst + 1), v(dst + 2)))
        I("v_max_f32 %s, %s, %s" % (v(dst), v(dst), v(dst + 3)))
    else:
        raise NotImplementedError

MSK = [40 + 2 * i for i in range(8)] + [64 + 2 * i for i in range(8)]
def causal_masks(A):
    I = A.I
    I("v_and_b32 v8, 31, %s" % v(LANE))
    I("v_lshrrev_b32 v9, 5, %s" % v(LANE))
    I("v_lshlrev_b32 v9, 2, v9")
    I("v_sub_u32 v8, v8, v9")
    for j in range(4):
        for r in range(4):
            I("v_cmp_le_i32_e64 %s, %d, v8" % (s(MSK[4 * j + r], 2), 8 * j + r))

BSC = 128 ** -0.5 * 1.4426950408889634
def role_qa(A):
    I = A.I
    worker_setup(A)
    bw_load(A, 40)
    causal_masks(A)
    NEG = 5; MKO = 6; MVO = 7
    I("v_mov_b32 %s, 0x%x" % (v(NEG), NEGINF))
    I("v_lshrrev_b32 v9, 5, %s" % v(LANE))
    I("v_and_b32 v8, 7, %s" % v(LANE))
    I("v_lshlrev_b32 v8, 4, v8")
    I("v_lshl_add_u32 %s, v9, 7, v8" % v(MKO))
    I("v_and_b32 v8, 31, %s" % v(LANE))
    I("v_lshlrev_b32 v8, 4, v8")
    I("v_lshl_add_u32 v8, v9, 3, v8")
    I("v_add_u32 %s, 2048, v8" % v(MVO))
    I("s_mov_b32 %s, 0x%x" % (s(sSC), fb(BSC)))
    fw = ((F_XN + 64) * FSTR, 128 * FSTR, FSTR, [])
    fs = (F_OB * FSTR, 64 * 4 * FSTR, 4 * FSTR, [(62, FSTR)])
    xb = (W_XN + XN_K, 2 * XN_K, SEGB, [])
    ob = (W_OB, 64 * OB_S, OB_S, [(S_IDX, 8192)])
    I("s_lshr_b32 s62, %s, 3" % s(S_IDX))
    task_init(A, fw, fs, xb, ob)
    sFK, sFM, sKV, sMK = 80, 81, 82, 83
    ex = ((sFK, (F_KV * FSTR, 64 * 32 * FSTR, 32 * FSTR, [(S_IDX, FSTR)])),
          (sFM, (F_MKV * FSTR, 64 * 32 * FSTR, 32 * FSTR, [(S_IDX, FSTR)])),
          (sKV, (W_KV, 64 * 32 * KV_H, 32 * KV_H, [(S_IDX, KV_H)])),
          (sMK, (W_MKV, 64 * 32 * MKV_H, 32 * MKV_H, [(S_IDX, MKV_H)])))
    for dst, (c0, cl, cs, e) in ex: lin(A, dst, c0, [(sLy, cl), (sSeg, cs)] + e)
    I("v_cmp_eq_u32 vcc, 1, %s" % v(LANE))
    I("v_mov_b32 v11, 2"); I("v_mov_b32 v12, %d" % (2 * 32 * FSTR))
    I("v_mov_b32 v8, 4"); I("v_mov_b32 v9, 0x%x" % ((F_MKV - F_KV) * FSTR))
    I("v_cndmask_b32 v11, v11, v8, vcc"); I("v_cndmask_b32 v12, v12, v9, vcc")
    start_sync(A)
    A.label("L_qa_top")
    task_head(A, sFK, 2)
    KA, VA, MKA, MVA = 144, 176, 208, 240
    def kvl(t):
        def f():
            if t % 4 == 0 and t: I("s_add_u32 %s, %s, %d" % (s(sT), s(sKV), t * 1024))
            return I(("buffer_load_dwordx4 %s, %s, s[4:7], %s offen offset:%d" + LD) % (a(KA + 4 * t, 4), v(L16), s(sKV if t < 4 else sT), (t % 4) * 1024))
        return f
    toks = XL(A, 36, sX, extra=[kvl(t) for t in range(16)], nup="pre")
    def mloads():
        mt = []
        for t in range(8):
            mt.append(I(("buffer_load_dwordx4 %s, %s, s[4:7], %s offen offset:%d" + LD) % (a(MKA + 4 * t, 4), v(MKO), s(sMK), t * 256)))
        for tau in range(4):
            mvt = I(("buffer_load_dwordx2 %s, %s, s[4:7], %s offen offset:%d" + LD) % (a(MVA + 2 * tau, 2), v(MVO), s(sMK), tau * 512))
        return mt, mvt
    sHV = 84
    TP, TC = 22, 29
    def poll(): I("buffer_load_dword v14, v12, s[4:7], %s offen sc1" % s(sFK))
    def check(): I("v_cmp_le_u32 vcc, v11, v14")
    def more():
        Ls = A.newlabel("L_qa_nm")
        I("s_bfe_u32 %s, vcc_lo, 0x10001" % s(sHV))
        I("s_cmp_eq_u32 %s, 0" % s(sHV))
        I("s_cbranch_scc1 %s" % Ls)
        mloads()
        A.label(Ls)
    gemm_core(A, 36, 4, False, xtoks=toks, fill=look_fill(A, None, None, None, 2 * SEGB, TP, TC, more=more, poll=poll, check=check))
    if TL.get("tlq"): tl_mark(A, 13)
    QF = 16
    for tau in range(4):
        for jj in range(2):
            for m in range(4):
                x0 = ACC + 16 * tau + 8 * jj + 2 * m
                I("v_cvt_pk_bf16_f32 %s, %s, %s" % (v(QF + 4 * (2 * tau + jj) + m), v(x0), v(x0 + 1)))
    SX, SM = 64, 80
    for t in range(8): mf32(A, SX, a(KA + 4 * t, 4), v(QF + 4 * t, 4), "0" if t == 0 else v(SX, 16))
    if TL.get("tlq"): tl_mark(A, 13)
    Lh = A.newlabel("L_qa_hv")
    I("s_cmp_eq_u32 %s, 1" % s(sHV))
    I("s_cbranch_scc1 %s" % Lh)
    spin_flag(A, sFM, 4)
    mloads()
    A.label(Lh)
    for i in range(16): I("v_cndmask_b32_e64 %s, %s, %s, %s" % (v(SX + i), v(NEG), v(SX + i), s(MSK[i], 2)))
    I("s_waitcnt vmcnt(0)")
    for t in range(8):
        mf32(A, SM, a(MKA + 4 * t, 4), v(QF + 4 * t, 4), "0" if t == 0 else v(SM, 16))
    if TL.get("tlq"): tl_mark(A, 13)
    M_ = 48
    max_tree(A, M_, list(range(SX, SX + 16)) + list(range(SM, SM + 4)))
    xhalf(A, "v_max_f32", M_, 52)
    I("v_mul_f32 %s, %s, %s" % (v(M_), s(sSC), v(M_)))
    for r in list(range(SX, SX + 16)) + list(range(SM, SM + 4)):
        I("v_fma_f32 %s, %s, %s, -%s" % (v(r), v(r), s(sSC), v(M_)))
        I("v_exp_f32 %s, %s" % (v(r), v(r)))
    P0, PM = 16, 24
    for jj in range(2):
        for m in range(4): I("v_cvt_pk_bf16_f32 %s, %s, %s" % (v(P0 + 4 * jj + m), v(SX + 8 * jj + 2 * m), v(SX + 8 * jj + 2 * m + 1)))
    for m in range(2): I("v_cvt_pk_bf16_f32 %s, %s, %s" % (v(PM + m), v(SM + 2 * m), v(SM + 2 * m + 1)))
    OAc = 96
    for tau in range(4):
        mf32(A, OAc + 16 * tau, a(VA + 4 * (2 * tau), 4), v(P0, 4), "0")
        mf32(A, OAc + 16 * tau, a(VA + 4 * (2 * tau + 1), 4), v(P0 + 4, 4), v(OAc + 16 * tau, 16))
        mf8(A, OAc + 16 * tau, a(MVA + 2 * tau, 2), v(PM, 2), v(OAc + 16 * tau, 16))
        if tau == 0:
            regs = list(range(SX, SX + 16)) + list(range(SM, SM + 4))
            for c in range(4):
                p = regs[c::4]
                I("v_add_f32 %s, %s, %s" % (v(28 + c), v(p[0]), v(p[1])))
            for k in range(2, 5):
                for c in range(4): I("v_add_f32 %s, %s, %s" % (v(28 + c), v(28 + c), v(regs[c::4][k])))
            I("v_add_f32 v28, v28, v29"); I("v_add_f32 v30, v30, v31"); I("v_add_f32 v28, v28, v30")
            xhalf(A, "v_add_f32", 28, 29)
            I("v_rcp_f32 v28, v28")
            I("v_mov_b32 v29, v28")
    units = [((2 * tau + jj) * 1024, [(OAc + 16 * tau + 8 * jj + i, None) for i in range(8)]) for tau in range(4) for jj in range(2)]
    for tau in range(4):
        for i in range(0, 16, 2): I("v_pk_mul_f32 %s, %s, v[28:29]" % (v(OAc + 16 * tau + i, 2), v(OAc + 16 * tau + i, 2)))
        store_units(A, units[2 * tau:2 * tau + 2], sO, L16, tmp=32 + 8 * (tau & 1))
    I("s_mov_b32 %s, %s" % (s(sPS), s(sFS)))
    for dst, (c0, cl, cs, e) in ex: I("s_add_u32 %s, %s, 0x%x" % (s(dst), s(dst), 2 * cs))
    task_next(A, fw, fs, xb, ob, "L_qa_top")

def role_aa(A, naa):
    I = A.I
    worker_setup(A)
    causal_masks(A)
    NW = 2 * naa
    NEG, VA0, U1, U2, XOF, TOK16 = 5, 6, 7, 8, 9, 10
    I("v_mov_b32 %s, 0x%x" % (v(NEG), NEGINF))
    I("v_and_b32 v11, 31, %s" % v(LANE))
    I("v_lshrrev_b32 v12, 5, %s" % v(LANE))
    I("v_lshlrev_b32 %s, 4, v11" % v(TOK16))
    I("s_mov_b32 s3, 0x%x" % OOB)
    I("v_mul_lo_u32 v13, v12, s3")
    I("v_add_u32 %s, v13, %s" % (v(XOF), v(TOK16)))
    I("v_and_b32 v13, 3, v11"); I("v_lshlrev_b32 v13, 11, v13")
    I("v_lshrrev_b32 v14, 2, v11"); I("v_lshl_add_u32 v14, v12, 5, v14")
    I("v_lshl_add_u32 v13, v14, 4, v13")
    I("v_add_u32 v13, 65536, v13")
    I("v_subrev_u32 v14, 16, v11"); I("v_lshlrev_b32 v14, 11, v14")
    I("v_lshl_add_u32 v14, v12, 9, v14")
    I("v_add_u32 v14, %d, v14" % (98304 + 8192))
    I("v_add_u32 v15, %d, %s" % (98304 + 8192 + 4096, v(L16)))
    I("v_cmp_gt_u32 vcc, 16, v11")
    I("v_cndmask_b32 %s, 0, 1, vcc" % v(U1)) if False else None
    I("v_cndmask_b32_e64 %s, 0, 1, vcc" % v(U1))
    I("v_cmp_gt_u32_e64 s[90:91], 18, v11")
    I("v_cndmask_b32_e64 v15, v15, v14, s[90:91]")
    I("v_cndmask_b32_e64 %s, v15, v13, vcc" % v(VA0))
    I("v_cndmask_b32_e64 %s, 0, 1, s[90:91]" % v(U2))
    I("v_sub_u32 %s, %s, %s" % (v(U2), v(U2), v(U1)))
    KA, KX, VV = 0, 36, 64
    I("v_mov_b32 v21, 0")
    for k in range(9): I("v_accvgpr_write_b32 %s, 0" % a(KX + 2 * k + 1))
    sTK, sHead, sFQ = 62, 63, 80
    SB = 81
    I("s_lshl_b32 %s, s60, 2" % s(sTK))
    I("s_add_u32 %s, %s, %s" % (s(sTK), s(sTK), s(S_WAVE)))
    I("s_and_b32 %s, %s, 1" % (s(sLy), s(sTK)))
    I("s_lshr_b32 %s, %s, 1" % (s(sTK), s(sTK)))
    start_sync(A)
    A.label("L_aa_top")
    I("s_lshr_b32 %s, %s, 5" % (s(sSeg), s(sTK)))
    I("s_and_b32 %s, %s, 31" % (s(sHead), s(sTK)))
    I("s_lshl_b32 %s, %s, 6" % (s(sT), s(sLy)))
    I("s_add_u32 %s, %s, %s" % (s(sT), s(sT), s(sSeg)))
    I("s_lshl_b32 %s, %s, 6" % (s(sFQ), s(sT)))
    I("s_add_u32 %s, %s, %d" % (s(sFS), s(sFQ), F_OA * FSTR))
    I("s_add_u32 %s, %s, %d" % (s(sFQ), s(sFQ), F_QKVA * FSTR))
    I("s_lshl_b32 %s, %s, 6" % (s(sT2), s(sLy)))
    for k in range(9):
        I("s_sub_i32 s3, %s, %d" % (s(sSeg), 8 - k))
        I("s_max_i32 s3, s3, 0")
        I("s_add_u32 s3, s3, %s" % s(sT2))
        I("s_lshl_b32 s3, s3, 17")
        I("s_add_u32 %s, s3, 0x%x" % (s(SB + k), W_QKVA))
    I("s_mul_i32 %s, %s, %d" % (s(sO), s(sT), SEGB))
    I("s_add_u32 %s, %s, 0x%x" % (s(sO), s(sO), W_OA))
    I("s_lshl_b32 s91, %s, 10" % s(sHead))
    I("v_add_u32 v22, s91, %s" % v(L16))
    I("v_add_u32 v23, 32768, v22")
    I("s_lshr_b32 s92, %s, 3" % s(sHead)); I("s_lshl_b32 s93, s92, 10")
    I("s_bfe_u32 s94, %s, 0x10002" % s(sHead)); I("s_lshl_b32 s94, s94, 9"); I("s_add_u32 s93, s93, s94")
    I("s_and_b32 s94, %s, 3" % s(sHead)); I("s_lshl_b32 s94, s94, 2"); I("s_add_u32 s93, s93, s94")
    I("s_add_u32 s94, s93, 98304")
    I("v_add_u32 v24, s94, %s" % v(XOF))
    I("v_add_u32 v25, 4096, v24")
    I("s_add_u32 s94, s93, 32768")
    I("v_add_u32 v27, s94, %s" % v(XOF))
    I("s_lshl_b32 s92, s92, 13"); I("s_and_b32 s94, %s, 7" % s(sHead)); I("s_lshl_b32 s94, s94, 6"); I("s_add_u32 s92, s92, s94")
    I("s_lshl_b32 s94, %s, 4" % s(sHead))
    I("v_mad_u32_u24 v26, %s, s92, %s" % (v(U1), v(VA0)))
    I("v_mad_u32_u24 v26, %s, s94, v26" % v(U2))
    I("s_cmp_eq_u32 %s, 0" % s(sSeg))
    I("s_cselect_b32 s3, 0, %d" % FSTR)
    I("s_sub_u32 %s, %s, s3" % (s(sFQ), s(sFQ)))
    I("v_lshrrev_b32 v14, 5, %s" % v(LANE))
    I("v_mul_u32_u24 v14, s3, v14")
    spin_flag_sig(A, sFQ, 15, sPS, voff=14)
    if TL.get("tl2"): tl_mark(A, 13)
    qt = I(("buffer_load_dwordx4 v[16:19], v22, s[4:7], %s offen" + LD) % s(SB + 8))
    qt = I(("buffer_load_dword v20, v24, s[4:7], %s offen" + LD) % s(SB + 8))
    kt = {}
    for k in range(8, -1, -1):
        I(("buffer_load_dwordx4 %s, v23, s[4:7], %s offen" + LD) % (a(KA + 4 * k, 4), s(SB + k)))
        kt[k] = I(("buffer_load_dword %s, v25, s[4:7], %s offen" + LD) % (a(KX + 2 * k), s(SB + k)))
    vt = {}
    for k in range(8, -1, -1):
        I(("buffer_load_dwordx4 %s, v26, s[4:7], %s offen" + LD) % (a(VV + 8 * k, 4), s(SB + k)))
        vt[k] = I(("buffer_load_dwordx4 %s, v26, s[4:7], %s offen offset:1024" + LD) % (a(VV + 8 * k + 4, 4), s(SB + k)))
    S0 = 64
    tqa = lambda: tl_mark(A, 13) if TL.get("tlq") else None
    tqa()
    for k in range(8, -1, -1):
        A.wait_vm(kt[k])
        mf32(A, S0 + 16 * k, a(KA + 4 * k, 4), v(16, 4), "0")
        mf8(A, S0 + 16 * k, a(KX + 2 * k, 2), v(20, 2), v(S0 + 16 * k, 16))
        if k == 6:
            for i in range(16): I("v_cndmask_b32_e64 %s, %s, %s, %s" % (v(S0 + 128 + i), v(NEG), v(S0 + 128 + i), s(MSK[i], 2)))
    for i in range(16): I("v_cndmask_b32_e64 %s, %s, %s, %s" % (v(S0 + i), v(S0 + i), v(NEG), s(MSK[i], 2)))
    Lfix = A.newlabel("L_aa_fix"); Lback = A.newlabel("L_aa_back")
    I("s_cmp_lt_u32 %s, 8" % s(sSeg))
    I("s_cbranch_scc1 %s" % Lfix)
    A.label(Lback)
    tqa()
    M_ = 28
    max_tree(A, M_, range(S0, S0 + 144))
    xhalf(A, "v_max_f32", M_, 32)
    I("v_sub_f32 v32, 0, %s" % v(M_))
    I("v_mov_b32 v33, v32")
    tqa()
    OA_ = 40
    first = True
    for k in range(8, -1, -1):
        b = S0 + 16 * k
        for i in range(0, 16, 2): I("v_pk_add_f32 %s, %s, v[32:33]" % (v(b + i, 2), v(b + i, 2)))
        for i in range(16): I("v_exp_f32 %s, %s" % (v(b + i), v(b + i)))
        for jj in range(2):
            for m in range(4): I("v_cvt_pk_bf16_f32 %s, %s, %s" % (v(b + 8 * jj + m), v(b + 8 * jj + 2 * m), v(b + 8 * jj + 2 * m + 1)))
        A.wait_vm(vt[k])
        for jj in range(2):
            mf32(A, OA_, a(VV + 8 * k + 4 * jj, 4), v(b + 8 * jj, 4), "0" if first else v(OA_, 16))
            first = False
    I("v_rcp_f32 v34, %s" % v(OA_ + 10))
    for i in range(10): I("v_mul_f32 %s, %s, v34" % (v(OA_ + i), v(OA_ + i)))
    for m in range(4): I("v_cvt_pk_bf16_f32 %s, %s, %s" % (v(36 + m), v(OA_ + 2 * m), v(OA_ + 2 * m + 1)))
    I("v_cvt_pk_bf16_f32 v35, %s, %s" % (v(OA_ + 8), v(OA_ + 9)))
    I("buffer_store_dwordx4 v[36:39], v22, s[4:7], %s offen sc1" % s(sO))
    I("buffer_store_dword v35, v27, s[4:7], %s offen sc1" % s(sO))
    I("s_mov_b32 %s, %s" % (s(sPS), s(sFS)))
    tl_mark(A)
    I("s_add_u32 %s, %s, %d" % (s(sTK), s(sTK), NW))
    I("s_cmp_lt_u32 %s, 2048" % s(sTK))
    I("s_cbranch_scc1 L_aa_top")
    final_signal(A)
    A.label(Lfix)
    for k in range(8):
        Ls = A.newlabel("L_aa_fs")
        I("s_add_u32 s3, %s, %d" % (s(sSeg), k))
        I("s_cmp_ge_u32 s3, 8")
        I("s_cbranch_scc1 %s" % Ls)
        for i in range(16): I("v_mov_b32 %s, %s" % (v(S0 + 16 * k + i), v(NEG)))
        A.label(Ls)
    I("s_branch %s" % Lback)
```

```python
from g_common import *
import g_chain as G1
from g_chain import (WO, STG, QX, KXM, KXL, IDX, L16S, XW, TR, KOFF, VOFF, OW, RSO, PUB, KX, VX, wreg, widx, OOB)
import struct
JUNK = 9
import os
DBP = os.environ.get("DBP", "0") == "1"
WACK = os.environ.get("WACK", "r")
sL, sHEAD, sSTEP = 22, 23, 28
sAG = 29
sGODD = 30
sKV, sKV2 = 32, 33
sMKV = 34
sFKVN = 36
sFMKV = 37
sFCUR = 38
sRW = 39
sRR = 40
sPUB, sPI, sRSO, sW1024, sDMAO = 44, 45, 46, 47, 48
sNC = 49; sC = 50
sMLO = 52
sSEL = 54
sODD = 62
sONE_LO, sONE_HI = 64, 65
sPF, sCNT, sG0, sPF1 = 66, 67, 68, 69
sPLO, sPHI = 70, 71
sRB, sTMP, sT2 = 72, 73, 74
sMPF = 75
sPFD = 76
sRWH = 77
sDMAL = 11
sONES = 78
assert (G1.sL, G1.sHEAD, G1.sTMP, G1.sT2, G1.sW1024, G1.sPLO, G1.sPHI) == (sL, sHEAD, sTMP, sT2, sW1024, sPLO, sPHI)
sAGW, sRWH8, sRW8 = 8, 9, 10
sTAG, sRW2 = 35, 41
RWO = RSO
F_DUMMY = 15000
STAMP = [80, 82, 84, 86, 88, 92, 94, 96, 98]

def scalars(A):
    I = A.I
    I("s_mov_b32 %s, 0" % s(sSTEP))
    I("s_mul_i32 s3, %s, %d" % (s(sL), M_L))
    I("s_add_u32 s3, s3, %d" % (W_M - STG))
    I("s_lshl_b32 %s, %s, 11" % (s(sAGW), s(S_WAVE)))
    I("s_min_u32 %s, %s, 1" % (s(sTMP), s(S_WAVE))); I("s_lshl_b32 %s, %s, 10" % (s(sTMP), s(sTMP)))
    I("s_add_u32 %s, %s, %s" % (s(sAGW), s(sAGW), s(sTMP)))
    I("s_add_u32 %s, s3, %s" % (s(sAG), s(sAGW)))
    I("s_mul_i32 s3, %s, %d" % (s(sL), M_L))
    I("s_add_u32 %s, s3, %d" % (s(sMPF), W_M + M_S))
    I("s_lshl_b32 s3, %s, 11" % s(sL))
    I("s_add_u32 s3, s3, %s" % s(sHEAD))
    I("s_lshl_b32 %s, s3, 14" % s(sKV)); I("s_add_u32 %s, %s, %d" % (s(sKV), s(sKV), W_KV))
    I("s_add_u32 %s, %s, 4096" % (s(sKV2), s(sKV)))
    I("s_lshl_b32 %s, s3, 12" % s(sMKV)); I("s_add_u32 %s, %s, %d" % (s(sMKV), s(sMKV), W_MKV))
    I("s_lshl_b32 %s, s3, 6" % s(sFKVN))
    I("s_add_u32 %s, %s, %d" % (s(sFCUR), s(sFKVN), F_MKV * FSTR))
    I("s_add_u32 %s, %s, %d" % (s(sFKVN), s(sFKVN), F_KV * FSTR))
    I("s_mov_b32 %s, %d" % (s(sFMKV), F_DUMMY * FSTR))
    I("s_lshl_b32 %s, %s, 15" % (s(sG0), s(S_WAVE)))
    I("s_lshl_b32 %s, %s, 7" % (s(sRWH), s(sHEAD)))
    I("s_add_u32 %s, %s, %d" % (s(sRWH8), s(sRWH), 64 * 4096))
    I("s_cmp_eq_u32 %s, 3" % s(S_WAVE))
    I("s_cselect_b32 s3, 64, 0")
    I("s_add_u32 %s, %s, s3" % (s(sRWH8), s(sRWH8)))
    I("s_lshl_b32 s3, %s, 16" % s(S_WAVE))
    I("s_add_u32 %s, %s, s3" % (s(sRWH), s(sRWH)))
    I("s_sub_u32 s3, %s, 1" % s(S_WAVE))
    I("s_lshl_b32 s3, s3, 5")
    I("s_add_u32 %s, s3, %s" % (s(sPI), s(sHEAD)))
    I("s_cmp_eq_u32 %s, 0" % s(S_WAVE))
    I("s_cselect_b32 %s, 1000, %s" % (s(sPI), s(sPI)))
    I("s_lshl_b32 %s, %s, 12" % (s(sRSO), s(sPI)))
    I("s_sub_u32 %s, %s, %d" % (s(sRSO), s(sRSO), STG))
    I("s_mul_i32 s3, %s, %d" % (s(sL), M_L))
    I("s_add_u32 s3, s3, %d" % (W_M + M_S))
    I("s_lshl_b32 %s, %s, 7" % (s(sPUB), s(sPI)))
    I("s_add_u32 %s, %s, s3" % (s(sPUB), s(sPUB)))
    I("s_lshl_b32 s3, %s, 7" % s(S_WAVE))
    I("s_cmp_ge_u32 %s, 2" % s(S_WAVE))
    I("s_cselect_b32 %s, 2048, s3" % s(sDMAO))
    I("s_min_u32 s3, %s, 2" % s(S_WAVE))
    I("s_lshl_b32 s3, s3, 10")
    I("s_add_u32 %s, s3, %d" % (s(sDMAL), KXL))
    c = 128 ** -0.5 * 1.4426950408889634
    fb = lambda x: struct.unpack("<I", struct.pack("<f", x))[0]
    I("s_mov_b32 %s, 0x%x" % (s(sC), fb(c))); I("s_mov_b32 %s, 0x%x" % (s(sC + 1), fb(c)))
    I("s_mov_b32 %s, 0x%x" % (s(sNC), fb(-c)))
    I("s_mov_b32 %s, -1" % s(sMLO)); I("s_mov_b32 %s, 0" % s(sMLO + 1))
    I("s_mov_b32 %s, 0xffff0000" % s(sGODD)); I("s_mov_b32 %s, 0xffff0000" % s(sGODD + 1))
    for j in range(4):
        m = (3 << (2 * j)) * 0x01010101
        I("s_mov_b32 %s, 0x%x" % (s(sSEL + 2 * j), m)); I("s_mov_b32 %s, 0x%x" % (s(sSEL + 2 * j + 1), m))
    I("s_mov_b32 %s, 0xaaaaaaaa" % s(sODD)); I("s_mov_b32 %s, 0xaaaaaaaa" % s(sODD + 1))
    I("s_mov_b32 %s, 0x3f80" % s(sONE_LO)); I("s_mov_b32 %s, 0x3f800000" % s(sONE_HI))
    I("s_mov_b32 %s, 0x3f803f80" % s(sONES)); I("s_mov_b32 %s, 0x3f803f80" % s(sONES + 1))
    I("s_mov_b32 %s, 0" % s(sPFD))


def lane_consts(A):
    G1.lane_consts(A)
    I = A.I
    t1, t2 = 41, 42
    I("s_lshr_b32 s3, %s, 1" % s(S_WAVE)); I("s_lshl_b32 s3, s3, 10")
    I("s_and_b32 %s, %s, 1" % (s(sTMP), s(S_WAVE))); I("s_lshl_b32 %s, %s, 8" % (s(sT2), s(sTMP)))
    I("s_add_u32 s3, s3, %s" % s(sT2)); I("s_add_u32 s3, s3, %d" % QX)
    I("v_and_b32 v41, 15, v40"); I("v_lshlrev_b32 v41, 4, v41")
    I("v_lshrrev_b32 v42, 4, v40"); I("v_lshl_add_u32 v41, v42, 2, v41")
    I("v_add_u32 %s, s3, v41" % v(XW))
    I("v_lshrrev_b32 v41, 5, v40"); I("v_lshlrev_b32 v41, 8, v41")
    I("v_bfe_u32 v42, v40, 4, 1"); I("v_lshl_add_u32 v41, v42, 6, v41")
    I("v_bfe_u32 v42, v40, 2, 2"); I("v_lshl_add_u32 v41, v42, 4, v41")
    I("v_bfe_u32 v42, v40, 1, 1"); I("v_lshl_add_u32 v41, v42, 3, v41")
    I("v_add_u32 %s, %d, v41" % (v(TR), QX))
    I("s_lshr_b32 s3, %s, 1" % s(S_WAVE)); I("s_lshl_b32 s3, s3, 10")
    I("s_lshl_b32 %s, %s, 5" % (s(sT2), s(sTMP)))
    I("s_add_u32 s3, s3, %s" % s(sT2)); I("s_add_u32 s3, s3, %d" % STG)
    I("v_lshrrev_b32 v41, 4, v40"); I("v_lshlrev_b32 v41, 8, v41")
    I("v_bfe_u32 v42, v40, 3, 1"); I("v_lshl_add_u32 v41, v42, 7, v41")
    I("v_bfe_u32 v42, v40, 1, 1"); I("v_lshl_add_u32 v41, v42, 6, v41")
    I("v_and_b32 v42, 1, v40"); I("v_lshl_add_u32 v41, v42, 4, v41")
    I("v_add_u32 %s, s3, v41" % v(OW))
    I("v_mov_b32 v41, 0x44444444"); I("v_mov_b32 v42, 0xeeeeeeee")
    I("v_and_b32 v43, 2, v40")
    I("v_cmp_eq_u32 vcc, 0, v43")
    I("v_cndmask_b32 %s, v42, v41, vcc" % v(IDX))

def lane_consts2(A):
    I = A.I
    I("v_and_b32 v41, 3, v40"); I("v_lshlrev_b32 v41, 4, v41")
    I("v_bfe_u32 v42, v40, 2, 2"); I("v_lshl_add_u32 v41, v42, 13, v41")
    I("v_bfe_u32 v42, v40, 5, 1"); I("v_lshl_add_u32 v41, v42, 12, v41")
    I("v_bfe_u32 v42, v40, 4, 1"); I("v_lshl_add_u32 %s, v42, 6, v41" % v(RWO))
    I("v_bfe_u32 v41, v40, 1, 1"); I("v_lshlrev_b32 v41, 6, v41")
    I("v_bfe_u32 v42, v40, 2, 1"); I("v_lshl_add_u32 v41, v42, 5, v41")
    I("v_bfe_u32 v42, v40, 3, 1"); I("v_lshl_add_u32 v41, v42, 4, v41")
    I("v_and_b32 v42, 1, v40"); I("v_lshl_add_u32 v41, v42, 3, v41")
    I("v_bfe_u32 v42, v40, 4, 1"); I("v_lshl_add_u32 v41, v42, 2, v41")
    I("s_cmp_eq_u32 %s, 3" % s(S_WAVE))
    I("s_cselect_b64 vcc, -1, 0")
    I("v_cndmask_b32 %s, %s, v41, vcc" % (v(PUB), v(PUB)))

MKO, TRW, AGW = 78, 79, 77
def shadow_init(A, cls, inloop=False):
    I = A.I
    for r in range(50, 74, 2): I("v_mov_b64 %s, 0" % v(r, 2))
    I("v_subrev_u32 v76, %d, %s" % (STG, v(L16S)))
    I("v_and_b32 %s, 0x30, v76" % v(MKO))
    I("v_bfe_u32 v75, v76, 7, 1")
    I("v_lshl_add_u32 %s, v75, 6, %s" % (v(MKO), v(MKO)))
    I("v_lshrrev_b32 v76, 8, v76")
    I("v_lshl_add_u32 %s, v76, 7, %s" % (v(MKO), v(MKO)))
    I("v_lshl_add_u32 %s, %s, 9, %s" % (v(MKO), s(S_WAVE), v(MKO)))
    I("s_lshl_b32 s3, %s, 9" % s(S_WAVE))
    I("v_add_u32 %s, s3, %s" % (v(TRW), v(TR)))
    I("v_add_u32 %s, %s, %s" % (v(AGW), s(sAGW), v(L16S)))

FLG = PUB
def w0_spin(A):
    I = A.I
    I("v_subrev_u32 v75, %d, %s" % (STG, v(L16S)))
    I("v_and_b32 v75, 16, v75")
    I("v_lshlrev_b32 v75, 7, v75")
    I("s_mov_b32 %s, 0" % s(sCNT))
    L = A.newlabel("L_w0f")
    A.label(L)
    I("buffer_load_dword %s, v75, s[4:7], %s offen sc1" % (v(FLG), s(sFKVN)))
    I("s_add_u32 %s, %s, 1" % (s(sCNT), s(sCNT)))
    I("s_cmp_gt_u32 %s, %d" % (s(sCNT), SPIN_MAX))
    I("s_cbranch_scc1 L_FAIL", noflush=True)
    I("s_waitcnt vmcnt(0)")
    I("v_readlane_b32 s3, %s, 0" % v(FLG))
    I("s_cmp_ge_u32 s3, 2")
    I("s_cbranch_scc0 %s" % L)

def w0_check(A):
    I = A.I
    Lok = A.newlabel("L_w0ok")
    I("v_readlane_b32 s3, %s, 0" % v(FLG))
    I("s_cmp_ge_u32 s3, 2")
    I("s_cbranch_scc1 %s" % Lok)
    w0_spin(A)
    A.label(Lok)
    w0_next(A)

def w0_next(A):
    I = A.I
    I("v_readlane_b32 s3, %s, 1" % v(FLG))
    I("s_add_u32 %s, %s, 0x80000" % (s(sPF), s(sKV)))
    I("s_cmp_ge_u32 s3, 2")
    I("s_cselect_b32 %s, %s, 0x%x" % (s(sPF), s(sPF), OOB - 8192))

def w0_early(A):
    I = A.I
    L = []
    L.append(lambda: I("v_subrev_u32 v76, %d, %s" % (STG, v(L16S))))
    L.append(lambda: I("v_lshlrev_b32 v76, 3, v76"))
    L.append(lambda: I("buffer_load_dword %s, v76, s[4:7], %s offen sc1" % (v(JUNK), s(sPF))))
    L.append(lambda: I("s_add_u32 s3, %s, 8192" % s(sPF)))
    L.append(lambda: I("buffer_load_dword %s, v76, s[4:7], s3 offen sc1" % v(JUNK)))
    L.append(lambda: I("buffer_load_dword %s, v76, s[4:7], %s offen sc1" % (v(JUNK), s(sMPF))))
    L.append(lambda: (I("v_and_b32 v75, 0x380, v76"), I("s_add_u32 s3, %s, 8192" % s(sMPF))))
    L.append(lambda: I("buffer_load_dword %s, v75, s[4:7], s3 offen sc1" % v(JUNK)))
    L.append(lambda: (I("v_and_b32 v75, 0x80, v76"), I("v_lshlrev_b32 v75, 4, v75")))
    L.append(lambda: I("buffer_load_dword %s, v75, s[4:7], %s offen offset:2048 sc1" % (v(FLG), s(sFKVN))))
    return L

def advance(A):
    I = A.I
    I("s_add_u32 %s, %s, %d" % (s(sAG), s(sAG), M_S))
    I("s_add_u32 %s, %s, %d" % (s(sMPF), s(sMPF), M_S))
    I("s_add_u32 %s, %s, 0x80000" % (s(sKV), s(sKV)))
    I("s_add_u32 %s, %s, 0x80000" % (s(sKV2), s(sKV2)))
    I("s_add_u32 %s, %s, %d" % (s(sFKVN), s(sFKVN), 32 * FSTR))
    I("s_mov_b32 %s, %s" % (s(sFMKV), s(sFCUR)))
    I("s_add_u32 %s, %s, %d" % (s(sFCUR), s(sFCUR), 32 * FSTR))
    I("s_add_u32 %s, %s, 0x20000" % (s(sMKV), s(sMKV)))
    I("s_add_u32 %s, %s, 1" % (s(sSTEP), s(sSTEP)))

def step_loop(A, opt, sc1, cls):
    I = A.I
    prof = opt.get("prof")
    def ts(k):
        if prof: I("s_memtime %s" % s(STAMP[k], 2), notok=True)
    def ts_store():
        if prof:
            Lp = A.newlabel("L_prof")
            I("s_waitcnt lgkmcnt(0)")
            I("s_cmp_lg_u32 %s, %d" % (s(sHEAD), opt.get("prof_head", 0)))
            I("s_cbranch_scc1 %s" % Lp)
            I("s_and_b32 s3, %s, 3" % s(sSTEP))
            I("s_cmp_lg_u32 s3, 0")
            I("s_cbranch_scc1 %s" % Lp)
            I("s_lshl_b32 s3, %s, 6" % s(sL))
            I("s_add_u32 s3, s3, %s" % s(sSTEP))
            I("s_lshl_b32 s3, s3, 2")
            I("s_add_u32 s3, s3, %s" % s(S_WAVE))
            I("s_lshl_b32 s3, s3, 6")
            I("s_add_u32 s3, s3, 0xF000000")
            for k in range(9):
                I("v_mov_b32 v74, %s" % s(STAMP[k]))
                I("buffer_store_dword v74, off, s[4:7], s3 offset:%d" % (4 * k))
            I("v_mov_b32 v74, %s" % s(sCNT))
            I("buffer_store_dword v74, off, s[4:7], s3 offset:36")
            I("v_mov_b32 v74, s13")
            I("buffer_store_dword v74, off, s[4:7], s3 offset:40")
            I("v_mov_b32 v74, s12")
            I("buffer_store_dword v74, off, s[4:7], s3 offset:44")
            I("v_mov_b32 v74, s14")
            I("buffer_store_dword v74, off, s[4:7], s3 offset:48")
            A.label(Lp)
    def dump(k, reg):
        if not opt.get("dump"): return
        I("s_lshl_b32 s14, %s, 5" % s(sL)); I("s_add_u32 s14, s14, %s" % s(sHEAD))
        I("s_lshl_b32 s14, s14, 2"); I("s_add_u32 s14, s14, %s" % s(S_WAVE))
        I("s_lshl_b32 s14, s14, 14"); I("s_add_u32 s14, s14, %d" % (0xF400000 + k * 1024 - STG))
        I("s_cmp_eq_u32 %s, 0" % s(sSTEP)); I("s_cselect_b32 s14, s14, 0x%x" % OOB)
        I("s_nop 7"); I("s_nop 7")
        I("buffer_store_dwordx4 %s, %s, s[4:7], s14 offen" % (v(reg, 4), v(L16S)))
    ST = " sc1" if sc1 else ""
    w0 = cls == "0"
    tag = ("s" if sc1 else "p") + cls
    LB1 = "L_ch_b1_" + tag; LEND = "L_ch_end_" + tag; LTOP = "L_ch_top_" + tag
    I("s_branch %s" % LB1)
    A.label(LTOP)
    OWN = 10
    T0 = 0 if w0 else 2 * int(cls) + 1
    NO = 3 if w0 else 2
    I("s_barrier")
    I("s_mov_b32 %s, 0" % s(sCNT))
    if "a" in WACK: I("s_waitcnt vmcnt(0)")
    LP = A.newlabel("L_ag")
    A.label(LP)
    t = [I("buffer_load_dwordx4 %s, %s, s[4:7], %s offen offset:%d sc1" % (v(OWN + 4 * i, 4), v(L16S), s(sAG), 1024 * i)) for i in range(NO)]
    I("s_add_u32 %s, %s, 1" % (s(sCNT), s(sCNT)))
    I("s_cmp_gt_u32 %s, %d" % (s(sCNT), SPIN_MAX))
    I("s_cbranch_scc1 L_FAIL", noflush=True)
    for i in range(NO):
        A.wait_vm(t[i])
        I("ds_write_b128 %s, %s offset:%d" % (v(AGW), v(OWN + 4 * i, 4), 1024 * i))
    I("v_max3_u32 v74, v10, v11, v12")
    I("v_max3_u32 v75, v13, v14, v15")
    if NO == 3:
        I("v_max3_u32 v76, v16, v17, v18")
        I("v_max3_u32 v74, v74, v19, v20")
        I("v_max3_u32 v75, v75, v76, v21")
        I("v_max_u32 v74, v74, v75")
    else:
        I("v_max3_u32 v74, v74, v16, v17")
        I("v_max3_u32 v74, v74, v75, v75")
    I("v_cmp_eq_u32 vcc, -1, v74")
    I("s_cbranch_vccnz %s" % LP, noflush=True)
    I("s_waitcnt lgkmcnt(0)")
    A.label(LB1)
    ts(0)
    I("s_barrier")
    AB = [38, 42, 46]
    at = {}
    own = list(range(T0, T0 + NO)); rest = [T for T in range(9) if T not in own]
    ring = rest + list(range(9)); NR = len(rest)
    def aread(j):
        if j < len(ring): at[j] = I("ds_read_b128 %s, %s offset:%d" % (v(AB[j % 3], 4), v(L16S), ring[j] * 1024))
    for j in range(3): aread(j)
    I("s_mov_b32 m0, %s" % s(sDMAL))
    I("s_add_u32 s3, %s, %s" % (s(sKV), s(sDMAO)))
    I("buffer_load_dwordx4 %s, s[4:7], s3 offen sc1 lds" % v(KOFF))
    dma_mark = ("vm", A.vm_issued)
    kt = {}
    def ld(name, dst, addr, so, off):
        def f(): kt[name] = I("buffer_load_dwordx4 %s, %s, s[4:7], %s offen offset:%d sc1" % (v(dst, 4), v(addr), s(so), off))
        return f
    ld("3A", KX + 12, KOFF, sKV2, 2048)(); ld("3B", KX + 16, KOFF, sKV2, 2176)()
    fill = [(0, ld("V0", VX, VOFF, sKV, 0)), (0, ld("V1", VX + 4, VOFF, sKV, 2048))]
    if NO == 2: fill.append((0, ld("2B", KX + 8, KOFF, sKV2, 128)))
    fill += [(1, ld("1B", KX, KOFF, sKV, 2176)), (2, ld("2A", KX + 4, KOFF, sKV2, 0))]
    if NO == 3: fill.append((3, ld("2B", KX + 8, KOFF, sKV2, 128)))
    if w0:
        def sig():
            I("s_mov_b64 exec, 1")
            I("v_mov_b32 v77, 4")
            I("buffer_atomic_add v77, off, s[4:7], %s sc1" % s(sFMKV))
            I("s_mov_b64 exec, -1")
        fill.append((3, sig))
        fill += [(3, f) for f in w0_early(A)]
    QA_, QB_, KA_, KB_ = 50, 54, 58, 62
    def smf(acc, buf, f): I("v_smfmac_f32_16x16x64_bf16 %s, %s, %s, %s" % (v(acc, 4), v(buf, 4), f if isinstance(f, str) else wreg(f), v(IDX)))
    order = [(T, OWN + 4 * i, None) for i, T in enumerate(own)] + [(T, AB[j % 3], j) for j, T in enumerate(rest)]
    for pos, (T, buf, j) in enumerate(order):
        if j is not None: A.wait_lgkm(at[j])
        for acc, f in ((QA_, widx(0, 0, T)), (QB_, widx(0, 1, T)), (KA_, widx(1, 0, T)), (KB_, widx(1, 1, T))):
            smf(acc, buf, f)
            if fill and acc != KB_ and fill[0][0] <= pos: fill.pop(0)[1]()
        if j is not None: aread(j + 3)
    assert not fill
    ts(1)
    VA_, VB_ = 66, 70
    def vs(T, half):
        j = NR + T
        buf = AB[j % 3]
        if half == 0:
            A.wait_lgkm(at[j])
            smf(VA_, buf, widx(2, 0, T))
        else:
            smf(VB_, buf, widx(2, 1, T))
            aread(j + 3)
    ad = lambda d, a_, b_: I("v_add_f32 %s, %s, %s" % (v(d), v(a_), v(b_)))
    cvt = lambda d, a_, b_: I("v_cvt_pk_bf16_f32 %s, %s, %s" % (v(d), v(a_), v(b_)))
    vs(0, 0); vs(0, 1)
    ad(QA_, QA_, QA_ + 2); ad(QA_ + 1, QA_ + 1, QA_ + 3); ad(QB_, QB_, QB_ + 2); ad(QB_ + 1, QB_ + 1, QB_ + 3)
    cvt(74, QA_, QA_ + 1); cvt(75, QB_, QB_ + 1)
    I("ds_write2_b32 %s, v74, v75 offset0:0 offset1:128" % v(XW))
    ad(KA_, KA_, KA_ + 2); ad(KA_ + 1, KA_ + 1, KA_ + 3); ad(KB_, KB_, KB_ + 2); ad(KB_ + 1, KB_ + 1, KB_ + 3)
    cvt(76, KA_, KA_ + 1); cvt(77, KB_, KB_ + 1)
    I("ds_write_b32 %s, v76 offset:2048" % v(XW))
    wtok = I("ds_write_b32 %s, v77 offset:2560" % v(XW))
    vs(1, 0); vs(1, 1); vs(2, 0); vs(2, 1)
    A.wait_lgkm(wtok)
    A.wait_vm(dma_mark)
    I("s_barrier")
    ts(2)
    def trq(Tp, dst):
        I("ds_read_b64_tr_b16 %s, %s offset:%d" % (v(dst, 2), v(TR), Tp * 512))
        return I("ds_read_b64_tr_b16 %s, %s offset:%d" % (v(dst + 2, 2), v(TR), Tp * 512 + 128))
    def trk(Tp, dst):
        I("ds_read_b64_tr_b16 %s, %s offset:%d" % (v(dst, 2), v(TR), 2048 + Tp * 512))
        return I("ds_read_b64_tr_b16 %s, %s offset:%d" % (v(dst + 2, 2), v(TR), 2048 + Tp * 512 + 128))
    tq3 = trq(3, 50); tk3 = trk(3, 54)
    vs(3, 0); tq2 = trq(2, 58); vs(3, 1); tk2 = trk(2, 62)
    vs(4, 0); tq1 = trq(1, 74); vs(4, 1)
    for T in range(5, 9): vs(T, 0); vs(T, 1)
    S0, SA, SB = 38, 42, 46
    def mf(d, x, y, c): I("v_mfma_f32_16x16x32_bf16 %s, %s, %s, %s" % (v(d, 4), v(x, 4), v(y, 4), c))
    later = lambda *n: max((kt[x] for x in n), key=lambda k: k[1])
    A.wait_lgkm(tk3); A.wait_vm(later("3A", "3B"))
    mf(SA, KX + 12, 50, "0"); mf(SB, KX + 16, 50, "0"); mf(S0, 54, 50, "0")
    tk1 = trk(1, 54)
    t1A = I("ds_read_b128 %s, %s offset:%d" % (v(KX + 12, 4), v(L16S), KXL - STG + 2 * 1024))
    tq0 = trq(0, 50)
    t0A = I("ds_read_b128 %s, %s offset:%d" % (v(KX + 16, 4), v(L16S), KXL - STG + 0 * 1024))
    A.wait_lgkm(tk2); A.wait_vm(later("2A", "2B"))
    mf(SA, KX + 4, 58, v(SA, 4)); mf(SB, KX + 8, 58, v(SB, 4)); mf(S0, 62, 58, v(S0, 4))
    tk0 = trk(0, 58)
    t0B = I("ds_read_b128 %s, %s offset:%d" % (v(KX + 4, 4), v(L16S), KXL - STG + 1 * 1024))
    I("ds_read_b64_tr_b16 v[62:63], %s offset:2048" % v(TRW))
    tmk = I("ds_read_b64_tr_b16 v[64:65], %s offset:2176" % v(TRW))
    A.wait_vm(kt["1B"]); A.wait_lgkm(tq1)
    mf(SB, KX, 74, v(SB, 4))
    ad(70, 70, 72); ad(71, 71, 73)
    A.wait_lgkm(t1A)
    mf(SA, KX + 12, 74, v(SA, 4))
    ad(66, 66, 68); ad(67, 67, 69)
    A.wait_lgkm(tk1)
    mf(S0, 54, 74, v(S0, 4))
    cvt(70, 70, 71); cvt(72, 66, 67)
    A.wait_lgkm(t0A)
    mf(SA, KX + 16, 50, v(SA, 4))
    I("v_mov_b32 v71, 0"); I("v_mov_b32 v73, 0")
    A.wait_lgkm(tk0)
    mf(S0, 58, 50, v(S0, 4))
    I("v_mov_b64 v[74:75], %s" % s(sONES, 2)); I("v_mov_b64 v[76:77], %s" % s(sONES, 2))
    A.wait_lgkm(t0B)
    mf(SB, KX + 4, 50, v(SB, 4))
    I("s_add_u32 s3, %s, %d" % (s(sMKV), 2048 - QX))
    I("buffer_store_dword v72, %s, s[4:7], s3 offen sc1" % v(XW))
    I("buffer_store_dword v70, %s, s[4:7], s3 offen offset:512 sc1" % v(XW))
    A.wait_lgkm(tmk)
    I("buffer_store_dwordx4 v[62:65], %s, s[4:7], %s offen sc1" % (v(MKO), s(sMKV)))
    I("s_cmp_eq_u32 %s, 63" % s(sSTEP))
    I("s_cbranch_scc1 %s" % LEND, noflush=True)
    ts(3)
    pass
    ONES, PM, AA_, AB_, DEN = 74, 64, 72, 70, 42
    I("v_cndmask_b32_e64 v38, v38, v40, %s" % s(sGODD, 2))
    I("v_cndmask_b32_e64 v39, v39, v41, %s" % s(sGODD, 2))
    I("v_max3_f32 v50, v42, v43, v44")
    I("v_max3_f32 v51, v45, v46, v47")
    I("v_max3_f32 v52, v48, v49, v38")
    I("v_max3_f32 v50, v50, v51, v39")
    I("v_max_f32 v50, v50, v52")
    I("v_mov_b32 v51, v50")
    I("v_mov_b64 v[66:67], 0")
    I("v_mov_b32 v65, 0")
    I("v_permlane16_swap_b32 v50, v51")
    I("v_max_f32 v50, v50, v51")
    I("v_mov_b32 v51, v50")
    WA, WA2 = 41, 40
    WA, WA2 = 47, 46
    I("v_subrev_u32 v40, %d, %s" % (STG, v(L16S)))
    I("s_nop 0")
    I("v_permlane32_swap_b32 v50, v51")
    I("v_max_f32 v50, v50, v51")
    I("v_mul_f32 v50, %s, v50" % s(sNC))
    for r in list(range(42, 50, 2)) + [38]:
        I("v_pk_fma_f32 %s, %s, %s, v[50:51] op_sel_hi:[1,0,0]" % (v(r, 2), v(r, 2), s(sC, 2)))
    for r in range(42, 50): I("v_exp_f32 %s, %s" % (v(r), v(r)))
    for i in range(4): cvt(52 + i, 42 + 2 * i, 43 + 2 * i)
    OA_, OB_ = 56, 60
    A.wait_vm(later("V0", "V1"))
    mf(DEN, ONES, 52, "0")
    I("v_exp_f32 v38, v38")
    mf(OA_, VX, 52, "0")
    I("v_exp_f32 v39, v39")
    mf(OB_, VX + 4, 52, "0")
    I("v_add_u32 %s, %s, v40" % (v(WA), s(sG0)))
    cvt(64, 38, 39)
    extra = cls in ("0", "3")
    if extra: I("v_add_u32 %s, 0x%x, v40" % (v(WA2), 8 * 16384))
    seq = []
    for gi in range(2):
        for hb in range(2):
            for T in range(2):
                for par in range(2): seq.append((gi, hb + 2 * par, T))
    if extra:
        hb = 0 if cls == "0" else 1
        for T in range(2):
            for par in range(2): seq.append((8, hb + 2 * par, T))
    NK = len(seq)
    BB = [10, 18, 26, 48, 64]
    bt = {}
    def bread(k):
        if k >= NK: return
        gi, x, T = seq[k]
        b = BB[k % 5]
        adr = WA2 if gi == 8 else WA
        off = (0 if gi == 8 else gi * 16384) + x * 4096 + T * 2048
        I("ds_read_b128 %s, %s offset:%d" % (v(b, 4), v(adr), off))
        bt[k] = I("ds_read_b128 %s, %s offset:%d" % (v(b + 4, 4), v(adr), off + 1024))
    mf(DEN, ONES, PM, v(DEN, 4))
    mf(OA_, AA_, PM, v(OA_, 4))
    mf(OB_, AB_, PM, v(OB_, 4))
    bread(0); bread(1)
    I("v_rcp_f32 v42, v42")
    for r in range(0, 8, 2):
        I("v_pk_mul_f32 %s, %s, v[42:43] op_sel_hi:[1,0]" % (v(OA_ + r, 2), v(OA_ + r, 2)))
    for r in range(4): cvt(OA_ + r, OA_ + r, OB_ + r)
    otok = I("ds_write_b128 %s, %s" % (v(OW), v(OA_, 4)))
    ts(4)
    OF = [34, 38]
    P = (56, 60); Q = (72, 42); O = 76
    def zero(u):
        I("v_mov_b64 %s, 0" % v(u, 2)); I("v_mov_b64 %s, 0" % v(u + 2, 2))
    bread(2)
    zero(Q[0]); zero(Q[1]); zero(P[1])
    bread(3)
    A.wait_lgkm(otok)
    I("s_barrier")
    of = [I("ds_read_b128 %s, %s" % (v(OF[0], 4), v(L16S))), I("ds_read_b128 %s, %s offset:1024" % (v(OF[1], 4), v(L16S)))]
    bread(4)
    zero(P[0])
    I("s_mul_i32 s3, %s, %d" % (s(sL), R_L))
    I("s_and_b32 %s, %s, 1" % (s(sTMP), s(sSTEP)))
    I("s_mul_i32 %s, %s, %d" % (s(sTMP), s(sTMP), R_B))
    I("s_add_u32 %s, s3, %s" % (s(sRB), s(sTMP)))
    I("s_add_u32 %s, %s, %d" % (s(sRB), s(sRB), W_R))
    I("s_add_u32 %s, %s, %s" % (s(sRW), s(sRB), s(sRWH)))
    I("s_add_u32 %s, %s, 32768" % (s(sRW2), s(sRW)))
    I("s_bfe_u32 %s, %s, 0x10001" % (s(sTAG), s(sSTEP)))
    if extra:
        I("s_add_u32 %s, %s, %s" % (s(sRW8), s(sRB), s(sRWH8)))
    NH = NK // 4
    fillers = []
    def epi(h):
        ua, ub = (P, Q)[h & 1]
        L_ = []
        for u in (ua, ub):
            L_.append(lambda u=u: ad(u, u, u + 2)); L_.append(lambda u=u: ad(u + 1, u + 1, u + 3))
        o = O + 2 * (h & 1)
        L_.append(lambda: cvt(o, ua, ub)); L_.append(lambda: cvt(o + 1, ua + 1, ub + 1))
        if h >= 4:
            L_.append(lambda: I("v_bfi_b32 %s, 1, %s, %s" % (v(O + 1), s(sTAG), v(O + 1))))
            L_.append(lambda: I("buffer_store_dwordx2 %s, %s, s[4:7], %s offen%s" % (v(O, 2), v(WA2), s(sRW8), ST)))
        elif h & 1:
            L_.append(lambda: I("v_bfi_b32 %s, 1, %s, %s" % (v(O + 3), s(sTAG), v(O + 3))))
            L_.append(lambda: I("buffer_store_dwordx4 %s, %s, s[4:7], %s offen%s" % (v(O, 4), v(RWO), s(sRW2 if h >> 1 else sRW), ST)))
        if h + 2 < NH:
            for u in (ua, ub):
                L_.append(lambda u=u: I("v_mov_b64 %s, 0" % v(u, 2))); L_.append(lambda u=u: I("v_mov_b64 %s, 0" % v(u + 2, 2)))
        return L_
    pend = []
    for k in range(NK):
        h = k // 4
        gi, x, T = seq[k]
        if k == 0: A.wait_lgkm(of[0])
        if k == 2: A.wait_lgkm(of[1])
        if k % 4 == 0 and h >= 2:
            while pend and pend[0][0] <= h - 2: pend.pop(0)[1]()
        if k % 2 == 0: A.wait_lgkm(bt[min(k + 1, NK - 1)])
        u = (P, Q)[h & 1][0 if x < 2 else 1]
        smf(u, OF[T], v(BB[k % 5], 8))
        bread(k + 5)
        if k % 4 == 1 and h >= 1:
            pend += [(h - 1, f) for f in epi(h - 1)]
        if k == 16:
            pend += [(h - 1, lambda: I("v_and_b32 %s, 0x70, %s" % (v(WA2), v(RWO)))),
                     (h - 1, lambda: I("v_lshrrev_b32 %s, 1, %s" % (v(WA2), v(WA2)))),
                     (h - 1, lambda: I("v_sub_u32 %s, %s, %s" % (v(WA2), v(RWO), v(WA2))))]
        n = 3 if k % 4 else 0
        while pend and n > 0:
            pend.pop(0)[1](); n -= 1
    while pend: pend.pop(0)[1]()
    for f in epi(NH - 1): f()
    ts(5)
    advance(A)
    Lnors = A.newlabel("L_nors")
    if cls == "3":
        I("s_cmp_ge_u32 %s, 72" % s(sPI))
        I("s_cbranch_scc1 %s" % Lnors)
    if not w0:
        I("s_add_u32 %s, %s, %s" % (s(sRR), s(sRB), s(sRSO)))
        I("v_mov_b32 v42, %s" % s(sONE_LO))
        I("v_mov_b32 v43, %s" % s(sONE_HI))
        I("v_cndmask_b32_e64 v42, v42, v43, %s" % s(sODD, 2))
        for j in range(4): I("v_cndmask_b32_e64 %s, 0, v42, %s" % (v(38 + j), s(sSEL + 2 * j, 2)))
        I("s_mov_b32 s90, 0xff00ff00"); I("s_mov_b32 s91, 0xff00ff00")
        I("s_mov_b32 s13, 0")
        LR = A.newlabel("L_rs"); LRD = A.newlabel("L_rsd")
        ne = lambda d, a_, b_: I("v_bitop3_b32 %s, %s, %s, %s bitop3:0x7e" % (v(d), v(a_), v(b_), s(sTAG)))
        RB = [[10, 14, 18, 22], [26, 30, 34, 48]] if DBP else [[48, 52, 56, 60]]
        def rs_issue(b):
            for i in range(4):
                I("buffer_load_dwordx4 %s, %s, s[4:7], %s offen offset:%d sc1" % (v(RB[b][i], 4), v(L16S), s(sRR), 1024 * i))
        def rs_check(b):
            r = RB[b]
            mf(64, 38, r[0], "0")
            if cls == "3": ne(44, r[0] + 1, r[0] + 3); ne(45, r[1] + 1, r[1] + 3)
            else: ne(44, r[0] + 3, r[1] + 3)
            mf(64, 38, r[1], v(64, 4))
            if cls == "3": ne(46, r[2] + 1, r[2] + 3); ne(47, r[3] + 1, r[3] + 3)
            else: ne(45, r[2] + 3, r[3] + 3)
            mf(64, 38, r[2], v(64, 4))
            if cls == "3": I("v_or3_b32 v44, v44, v46, v47")
            I("v_bitop3_b32 v44, v44, v45, 1 bitop3:0xa8")
            mf(64, 38, r[3], v(64, 4))
            I("v_cmp_ne_u32 vcc, 0, v44")
        def rs_cnt():
            I("s_add_u32 s13, s13, 1")
            I("s_cmp_gt_u32 s13, %d" % SPIN_MAX)
            I("s_cbranch_scc1 L_FAIL", noflush=True)
        if DBP:
            rs_issue(0)
            A.label(LR)
            rs_issue(1)
            rs_cnt()
            I("s_waitcnt vmcnt(4)")
            rs_check(0)
            I("s_cbranch_vccz %s" % LRD, noflush=True)
            rs_issue(0)
            if prof: I("s_add_u32 s13, s13, 1")
            I("s_waitcnt vmcnt(4)")
            rs_check(1)
            I("s_cbranch_vccnz %s" % LR, noflush=True)
            A.label(LRD)
        else:
            if "r" in WACK: I("s_waitcnt vmcnt(0)")
            A.label(LR)
            rs_issue(0)
            rs_cnt()
            I("s_waitcnt vmcnt(0)")
            rs_check(0)
            I("s_cbranch_vccnz %s" % LR, noflush=True)
        ts(6)
        for r in range(4):
            I("v_add_f32_dpp %s, %s, %s row_ror:8 row_mask:0xf bank_mask:0xf" % (v(68 + r), v(64 + r), v(64 + r)))
        cvt(72, 68, 69); cvt(73, 70, 71)
        I("v_cndmask_b32_e64 v72, v72, v73, s[90:91]")
        I("s_mov_b64 exec, %s" % s(sMLO, 2))
        I("buffer_store_dword v72, %s, s[4:7], %s offen%s" % (v(PUB), s(sPUB), ST))
        I("s_mov_b64 exec, -1")
        ts(7)
        I("s_add_u32 %s, %s, %d" % (s(sPUB), s(sPUB), M_S))
    if cls == "3": A.label(Lnors)
    if w0:
        I("s_waitcnt vmcnt(3)")
        w0_check(A)
    shadow_init(A, cls, True)
    if prof: I("s_mov_b32 s12, %s" % s(STAMP[8]))
    ts(8)
    ts_store()
    tl_mark(A, 74)
    I("s_branch %s" % LTOP)
    A.label(LEND)
    I("s_nop 7"); I("s_nop 7")
    I("s_waitcnt vmcnt(0)")
    I("s_mov_b32 %s, %s" % (s(sFMKV), s(sFCUR)))
    signal(A, sFMKV, 44)
    tl_mark(A, 74)
    tl_end(A, 74)
    I("s_branch L_END")

def mem0_issue(A):
    I = A.I
    load_srd(A, S_W2, 32, 9216)
    I("v_subrev_u32 v60, %d, %s" % (STG, v(L16S)))
    I("v_lshrrev_b32 v61, 4, v60")
    I("v_bfe_u32 v62, v61, 2, 2"); I("v_lshlrev_b32 v62, 1, v62")
    I("v_and_b32 v63, 1, v61"); I("v_add_u32 v62, v62, v63")
    I("v_mul_u32_u24 v62, 1152, v62")
    I("v_lshrrev_b32 v63, 4, v61")
    I("v_lshl_add_u32 v62, v63, 4, v62")
    I("v_bfe_u32 v63, v61, 1, 1")
    I("v_lshl_add_u32 v62, v63, 6, v62")
    I("s_lshl_b32 s3, %s, 7" % s(S_WAVE))
    I("buffer_load_dwordx4 v[64:67], v62, s[12:15], s3 offen")
    I("buffer_load_dwordx4 v[68:71], v62, s[12:15], s3 offen offset:512")
    return I("buffer_load_dwordx4 v[72:75], v62, s[12:15], 0 offen offset:1024")

def mem0_finish(A, tok):
    I = A.I
    A.wait_vm(tok)
    I("v_add_u32 v79, %s, %s" % (s(sW1024), v(L16S)))
    I("ds_write_b128 v79, v[64:67]")
    I("ds_write_b128 v79, v[68:71] offset:4096")
    I("ds_write_b128 %s, v[72:75] offset:8192" % v(L16S))
    I("s_waitcnt lgkmcnt(0)")

def chain_role(A, opt):
    G1.setup(A, opt)
    lane_consts(A)
    lane_consts2(A)
    I = A.I
    mtok = mem0_issue(A)
    def sw2a():
        I("s_lshl_b32 s96, %s, 2" % s(sL)); I("s_add_u32 s96, s96, 128")
        I("buffer_load_dword v38, off, s[16:19], 0 sc1")
        I("buffer_load_dword v39, off, s[16:19], s96 sc1")
    def sw2b():
        L = A.newlabel("L_carr"); Lok = A.newlabel("L_carrok")
        I("s_mov_b32 s95, 0")
        A.label(L)
        I("v_min_u32 v38, v38, v39")
        I("v_cmp_gt_u32 vcc, %d, v38" % NARR)
        I("s_cbranch_vccz %s" % Lok)
        I("s_add_u32 s95, s95, 1")
        I("s_cmp_gt_u32 s95, %d" % SPIN_MAX)
        I("s_cbranch_scc1 L_FAIL")
        I("s_sleep 4")
        I("buffer_load_dword v38, off, s[16:19], 0 sc1")
        I("buffer_load_dword v39, off, s[16:19], s96 sc1")
        I("s_waitcnt vmcnt(0)")
        I("s_branch %s" % L)
        A.label(Lok)
    def last():
        I("s_add_u32 s96, s96, 8")
        I("buffer_load_dword v38, off, s[16:19], s96 sc1")
    def lastb():
        I("s_waitcnt vmcnt(0)")
        I("v_readfirstlane_b32 s97, v38")
    G1.load_weights(A, {"first": lambda: mem0_finish(A, mtok), "sw2a": sw2a, "sw2b": sw2b, "last": last, "lastb": lastb})
    scalars(A)
    tl_mark(A, 44)
    I("s_barrier")
    tl_mark(A, 44)
    I = A.I
    mode = opt.get("chain_mode", "auto")
    def classes(sc1):
        tag = "s" if sc1 else "p"
        I("s_cmp_eq_u32 %s, 0" % s(S_WAVE)); I("s_cbranch_scc1 L_cls0%s" % tag)
        I("s_cmp_eq_u32 %s, 2" % s(S_WAVE)); I("s_cbranch_scc1 L_cls2%s" % tag)
        I("s_cmp_eq_u32 %s, 3" % s(S_WAVE)); I("s_cbranch_scc1 L_cls3%s" % tag)
        for cls in ("1", "0", "2", "3"):
            if cls != "1": A.label("L_cls%s%s" % (cls, tag))
            if cls == "0":
                w0_spin(A)
                w0_next(A)
            shadow_init(A, cls)
            for i in range(3 if cls == "0" else 2):
                I("ds_read_b128 %s, %s offset:%d" % (v(10 + 4 * i, 4), v(AGW), 1024 * i))
            I("s_waitcnt lgkmcnt(0)")
            step_loop(A, opt, sc1, cls)
    if mode == "auto":
        I("s_bcnt1_i32_b32 s90, s97")
        I("s_cmp_eq_u32 s90, 1")
        I("s_cbranch_scc0 L_ch_slow")
        classes(False)
        A.label("L_ch_slow")
        classes(True)
    else:
        classes(mode == "sc1")
```

```python
from g_common import *
import g_chain as G1
from g_chain import (WO, STG, QX, KXM, KXL, IDX, L16S, XW, TR, KOFF, VOFF, OW, RSO, PUB, KX, VX, wreg, widx, OOB)
import struct
JUNK = 9
import os
DBP = os.environ.get("DBP", "0") == "1"
WACK = os.environ.get("WACK", "r")
sL, sHEAD, sSTEP = 22, 23, 28
sAG = 29
sGODD = 30
sKV, sKV2 = 32, 33
sMKV = 34
sFKVN = 36
sFMKV = 37
sFCUR = 38
sRW = 39
sRR = 40
sPUB, sPI, sRSO, sW1024, sDMAO = 44, 45, 46, 47, 48
sNC = 49; sC = 50
sMLO = 52
sSEL = 54
sODD = 62
sONE_LO, sONE_HI = 64, 65
sPF, sCNT, sG0, sPF1 = 66, 67, 68, 69
sPLO, sPHI = 70, 71
sRB, sTMP, sT2 = 72, 73, 74
sMPF = 75
sPFD = 76
sRWH = 77
sDMAL = 11
sONES = 78
assert (G1.sL, G1.sHEAD, G1.sTMP, G1.sT2, G1.sW1024, G1.sPLO, G1.sPHI) == (sL, sHEAD, sTMP, sT2, sW1024, sPLO, sPHI)
sAGW, sRWH8, sRW8 = 8, 9, 10
sTAG, sRW2 = 35, 41
RWO = RSO
F_DUMMY = 15000
STAMP = [80, 82, 84, 86, 88, 92, 94, 96, 98]

def scalars(A):
    I = A.I
    I("s_mov_b32 %s, 0" % s(sSTEP))
    I("s_mul_i32 s3, %s, %d" % (s(sL), M_L))
    I("s_add_u32 s3, s3, %d" % (W_M - STG))
    I("s_lshl_b32 %s, %s, 11" % (s(sAGW), s(S_WAVE)))
    I("s_min_u32 %s, %s, 1" % (s(sTMP), s(S_WAVE))); I("s_lshl_b32 %s, %s, 10" % (s(sTMP), s(sTMP)))
    I("s_add_u32 %s, %s, %s" % (s(sAGW), s(sAGW), s(sTMP)))
    I("s_add_u32 %s, s3, %s" % (s(sAG), s(sAGW)))
    I("s_mul_i32 s3, %s, %d" % (s(sL), M_L))
    I("s_add_u32 %s, s3, %d" % (s(sMPF), W_M + M_S))
    I("s_lshl_b32 s3, %s, 11" % s(sL))
    I("s_add_u32 s3, s3, %s" % s(sHEAD))
    I("s_lshl_b32 %s, s3, 14" % s(sKV)); I("s_add_u32 %s, %s, %d" % (s(sKV), s(sKV), W_KV))
    I("s_add_u32 %s, %s, 4096" % (s(sKV2), s(sKV)))
    I("s_lshl_b32 %s, s3, 12" % s(sMKV)); I("s_add_u32 %s, %s, %d" % (s(sMKV), s(sMKV), W_MKV))
    I("s_lshl_b32 %s, s3, 6" % s(sFKVN))
    I("s_add_u32 %s, %s, %d" % (s(sFCUR), s(sFKVN), F_MKV * FSTR))
    I("s_add_u32 %s, %s, %d" % (s(sFKVN), s(sFKVN), F_KV * FSTR))
    I("s_mov_b32 %s, %d" % (s(sFMKV), F_DUMMY * FSTR))
    I("s_lshl_b32 %s, %s, 15" % (s(sG0), s(S_WAVE)))
    I("s_lshl_b32 %s, %s, 7" % (s(sRWH), s(sHEAD)))
    I("s_add_u32 %s, %s, %d" % (s(sRWH8), s(sRWH), 64 * 4096))
    I("s_cmp_eq_u32 %s, 3" % s(S_WAVE))
    I("s_cselect_b32 s3, 64, 0")
    I("s_add_u32 %s, %s, s3" % (s(sRWH8), s(sRWH8)))
    I("s_lshl_b32 s3, %s, 16" % s(S_WAVE))
    I("s_add_u32 %s, %s, s3" % (s(sRWH), s(sRWH)))
    I("s_sub_u32 s3, %s, 1" % s(S_WAVE))
    I("s_lshl_b32 s3, s3, 5")
    I("s_add_u32 %s, s3, %s" % (s(sPI), s(sHEAD)))
    I("s_cmp_eq_u32 %s, 0" % s(S_WAVE))
    I("s_cselect_b32 %s, 1000, %s" % (s(sPI), s(sPI)))
    I("s_lshl_b32 %s, %s, 12" % (s(sRSO), s(sPI)))
    I("s_sub_u32 %s, %s, %d" % (s(sRSO), s(sRSO), STG))
    I("s_mul_i32 s3, %s, %d" % (s(sL), M_L))
    I("s_add_u32 s3, s3, %d" % (W_M + M_S))
    I("s_lshl_b32 %s, %s, 7" % (s(sPUB), s(sPI)))
    I("s_add_u32 %s, %s, s3" % (s(sPUB), s(sPUB)))
    I("s_lshl_b32 s3, %s, 7" % s(S_WAVE))
    I("s_cmp_ge_u32 %s, 2" % s(S_WAVE))
    I("s_cselect_b32 %s, 2048, s3" % s(sDMAO))
    I("s_min_u32 s3, %s, 2" % s(S_WAVE))
    I("s_lshl_b32 s3, s3, 10")
    I("s_add_u32 %s, s3, %d" % (s(sDMAL), KXL))
    c = 128 ** -0.5 * 1.4426950408889634
    fb = lambda x: struct.unpack("<I", struct.pack("<f", x))[0]
    I("s_mov_b32 %s, 0x%x" % (s(sC), fb(c))); I("s_mov_b32 %s, 0x%x" % (s(sC + 1), fb(c)))
    I("s_mov_b32 %s, 0x%x" % (s(sNC), fb(-c)))
    I("s_mov_b32 %s, -1" % s(sMLO)); I("s_mov_b32 %s, 0" % s(sMLO + 1))
    I("s_mov_b32 %s, 0xffff0000" % s(sGODD)); I("s_mov_b32 %s, 0xffff0000" % s(sGODD + 1))
    for j in range(4):
        m = (3 << (2 * j)) * 0x01010101
        I("s_mov_b32 %s, 0x%x" % (s(sSEL + 2 * j), m)); I("s_mov_b32 %s, 0x%x" % (s(sSEL + 2 * j + 1), m))
    I("s_mov_b32 %s, 0xaaaaaaaa" % s(sODD)); I("s_mov_b32 %s, 0xaaaaaaaa" % s(sODD + 1))
    I("s_mov_b32 %s, 0x3f80" % s(sONE_LO)); I("s_mov_b32 %s, 0x3f800000" % s(sONE_HI))
    I("s_mov_b32 %s, 0x3f803f80" % s(sONES)); I("s_mov_b32 %s, 0x3f803f80" % s(sONES + 1))
    I("s_mov_b32 %s, 0" % s(sPFD))


def lane_consts(A):
    G1.lane_consts(A)
    I = A.I
    t1, t2 = 41, 42
    I("s_lshr_b32 s3, %s, 1" % s(S_WAVE)); I("s_lshl_b32 s3, s3, 10")
    I("s_and_b32 %s, %s, 1" % (s(sTMP), s(S_WAVE))); I("s_lshl_b32 %s, %s, 8" % (s(sT2), s(sTMP)))
    I("s_add_u32 s3, s3, %s" % s(sT2)); I("s_add_u32 s3, s3, %d" % QX)
    I("v_and_b32 v41, 15, v40"); I("v_lshlrev_b32 v41, 4, v41")
    I("v_lshrrev_b32 v42, 4, v40"); I("v_lshl_add_u32 v41, v42, 2, v41")
    I("v_add_u32 %s, s3, v41" % v(XW))
    I("v_lshrrev_b32 v41, 5, v40"); I("v_lshlrev_b32 v41, 8, v41")
    I("v_bfe_u32 v42, v40, 4, 1"); I("v_lshl_add_u32 v41, v42, 6, v41")
    I("v_bfe_u32 v42, v40, 2, 2"); I("v_lshl_add_u32 v41, v42, 4, v41")
    I("v_bfe_u32 v42, v40, 1, 1"); I("v_lshl_add_u32 v41, v42, 3, v41")
    I("v_add_u32 %s, %d, v41" % (v(TR), QX))
    I("s_lshr_b32 s3, %s, 1" % s(S_WAVE)); I("s_lshl_b32 s3, s3, 10")
    I("s_lshl_b32 %s, %s, 5" % (s(sT2), s(sTMP)))
    I("s_add_u32 s3, s3, %s" % s(sT2)); I("s_add_u32 s3, s3, %d" % STG)
    I("v_lshrrev_b32 v41, 4, v40"); I("v_lshlrev_b32 v41, 8, v41")
    I("v_bfe_u32 v42, v40, 3, 1"); I("v_lshl_add_u32 v41, v42, 7, v41")
    I("v_bfe_u32 v42, v40, 1, 1"); I("v_lshl_add_u32 v41, v42, 6, v41")
    I("v_and_b32 v42, 1, v40"); I("v_lshl_add_u32 v41, v42, 4, v41")
    I("v_add_u32 %s, s3, v41" % v(OW))
    I("v_mov_b32 v41, 0x44444444"); I("v_mov_b32 v42, 0xeeeeeeee")
    I("v_and_b32 v43, 2, v40")
    I("v_cmp_eq_u32 vcc, 0, v43")
    I("v_cndmask_b32 %s, v42, v41, vcc" % v(IDX))

def lane_consts2(A):
    I = A.I
    I("v_and_b32 v41, 3, v40"); I("v_lshlrev_b32 v41, 4, v41")
    I("v_bfe_u32 v42, v40, 2, 2"); I("v_lshl_add_u32 v41, v42, 13, v41")
    I("v_bfe_u32 v42, v40, 5, 1"); I("v_lshl_add_u32 v41, v42, 12, v41")
    I("v_bfe_u32 v42, v40, 4, 1"); I("v_lshl_add_u32 %s, v42, 6, v41" % v(RWO))
    I("v_bfe_u32 v41, v40, 1, 1"); I("v_lshlrev_b32 v41, 6, v41")
    I("v_bfe_u32 v42, v40, 2, 1"); I("v_lshl_add_u32 v41, v42, 5, v41")
    I("v_bfe_u32 v42, v40, 3, 1"); I("v_lshl_add_u32 v41, v42, 4, v41")
    I("v_and_b32 v42, 1, v40"); I("v_lshl_add_u32 v41, v42, 3, v41")
    I("v_bfe_u32 v42, v40, 4, 1"); I("v_lshl_add_u32 v41, v42, 2, v41")
    I("s_cmp_eq_u32 %s, 3" % s(S_WAVE))
    I("s_cselect_b64 vcc, -1, 0")
    I("v_cndmask_b32 %s, %s, v41, vcc" % (v(PUB), v(PUB)))

MKO, TRW, AGW = 78, 79, 77
def shadow_init(A, cls, inloop=False):
    I = A.I
    for r in range(50, 74, 2): I("v_mov_b64 %s, 0" % v(r, 2))
    I("v_subrev_u32 v76, %d, %s" % (STG, v(L16S)))
    I("v_and_b32 %s, 0x30, v76" % v(MKO))
    I("v_bfe_u32 v75, v76, 7, 1")
    I("v_lshl_add_u32 %s, v75, 6, %s" % (v(MKO), v(MKO)))
    I("v_lshrrev_b32 v76, 8, v76")
    I("v_lshl_add_u32 %s, v76, 7, %s" % (v(MKO), v(MKO)))
    I("v_lshl_add_u32 %s, %s, 9, %s" % (v(MKO), s(S_WAVE), v(MKO)))
    I("s_lshl_b32 s3, %s, 9" % s(S_WAVE))
    I("v_add_u32 %s, s3, %s" % (v(TRW), v(TR)))
    I("v_add_u32 %s, %s, %s" % (v(AGW), s(sAGW), v(L16S)))

FLG = PUB
def w0_spin(A):
    I = A.I
    I("v_subrev_u32 v75, %d, %s" % (STG, v(L16S)))
    I("v_and_b32 v75, 256, v75")
    I("v_lshlrev_b32 v75, 3, v75")
    I("s_mov_b32 %s, 0" % s(sCNT))
    L = A.newlabel("L_w0f")
    A.label(L)
    I("buffer_load_dword %s, v75, s[4:7], %s offen sc1" % (v(FLG), s(sFKVN)))
    I("s_add_u32 %s, %s, 1" % (s(sCNT), s(sCNT)))
    I("s_cmp_gt_u32 %s, %d" % (s(sCNT), SPIN_MAX))
    I("s_cbranch_scc1 L_FAIL", noflush=True)
    I("s_waitcnt vmcnt(0)")
    I("v_readlane_b32 s3, %s, 0" % v(FLG))
    I("s_cmp_ge_u32 s3, 2")
    I("s_cbranch_scc0 %s" % L)

def w0_check(A):
    I = A.I
    Lok = A.newlabel("L_w0ok")
    I("v_readlane_b32 s3, %s, 0" % v(FLG))
    I("s_cmp_ge_u32 s3, 2")
    I("s_cbranch_scc1 %s" % Lok)
    w0_spin(A)
    A.label(Lok)
    w0_next(A)

def w0_next(A):
    I = A.I
    I("v_readlane_b32 s3, %s, 16" % v(FLG))
    I("s_add_u32 %s, %s, 0x80000" % (s(sPF), s(sKV)))
    I("s_cmp_ge_u32 s3, 2")
    I("s_cselect_b32 %s, %s, 0x%x" % (s(sPF), s(sPF), OOB - 8192))

def w0_early(A):
    I = A.I
    L = []
    L.append(lambda: I("v_subrev_u32 v76, %d, %s" % (STG, v(L16S))))
    L.append(lambda: I("v_lshlrev_b32 v76, 3, v76"))
    L.append(lambda: I("buffer_load_dword %s, v76, s[4:7], %s offen sc1" % (v(JUNK), s(sPF))))
    L.append(lambda: I("s_add_u32 s3, %s, 8192" % s(sPF)))
    L.append(lambda: I("buffer_load_dword %s, v76, s[4:7], s3 offen sc1" % v(JUNK)))
    L.append(lambda: I("buffer_load_dword %s, v76, s[4:7], %s offen sc1" % (v(JUNK), s(sMPF))))
    L.append(lambda: (I("v_and_b32 v75, 0x380, v76"), I("s_add_u32 s3, %s, 8192" % s(sMPF))))
    L.append(lambda: I("buffer_load_dword %s, v75, s[4:7], s3 offen sc1" % v(JUNK)))
    L.append(lambda: (I("v_and_b32 v75, 0x80, v76"), I("v_lshlrev_b32 v75, 4, v75")))
    L.append(lambda: I("buffer_load_dword %s, v75, s[4:7], %s offen offset:2048 sc1" % (v(FLG), s(sFKVN))))
    return L

def advance(A):
    I = A.I
    I("s_add_u32 %s, %s, %d" % (s(sAG), s(sAG), M_S))
    I("s_add_u32 %s, %s, %d" % (s(sMPF), s(sMPF), M_S))
    I("s_add_u32 %s, %s, 0x80000" % (s(sKV), s(sKV)))
    I("s_add_u32 %s, %s, 0x80000" % (s(sKV2), s(sKV2)))
    I("s_add_u32 %s, %s, %d" % (s(sFKVN), s(sFKVN), 32 * FSTR))
    I("s_mov_b32 %s, %s" % (s(sFMKV), s(sFCUR)))
    I("s_add_u32 %s, %s, %d" % (s(sFCUR), s(sFCUR), 32 * FSTR))
    I("s_add_u32 %s, %s, 0x20000" % (s(sMKV), s(sMKV)))
    I("s_add_u32 %s, %s, 1" % (s(sSTEP), s(sSTEP)))

def step_loop(A, opt, sc1, cls):
    I = A.I
    prof = opt.get("prof")
    def ts(k):
        if prof: I("s_memtime %s" % s(STAMP[k], 2), notok=True)
    def ts_store():
        if prof:
            Lp = A.newlabel("L_prof")
            I("s_waitcnt lgkmcnt(0)")
            I("s_cmp_lg_u32 %s, %d" % (s(sHEAD), opt.get("prof_head", 0)))
            I("s_cbranch_scc1 %s" % Lp)
            I("s_and_b32 s3, %s, 3" % s(sSTEP))
            I("s_cmp_lg_u32 s3, 0")
            I("s_cbranch_scc1 %s" % Lp)
            I("s_lshl_b32 s3, %s, 6" % s(sL))
            I("s_add_u32 s3, s3, %s" % s(sSTEP))
            I("s_lshl_b32 s3, s3, 2")
            I("s_add_u32 s3, s3, %s" % s(S_WAVE))
            I("s_lshl_b32 s3, s3, 6")
            I("s_add_u32 s3, s3, 0xF000000")
            for k in range(9):
                I("v_mov_b32 v74, %s" % s(STAMP[k]))
                I("buffer_store_dword v74, off, s[4:7], s3 offset:%d" % (4 * k))
            I("v_mov_b32 v74, %s" % s(sCNT))
            I("buffer_store_dword v74, off, s[4:7], s3 offset:36")
            I("v_mov_b32 v74, s13")
            I("buffer_store_dword v74, off, s[4:7], s3 offset:40")
            I("v_mov_b32 v74, s12")
            I("buffer_store_dword v74, off, s[4:7], s3 offset:44")
            I("v_mov_b32 v74, s14")
            I("buffer_store_dword v74, off, s[4:7], s3 offset:48")
            A.label(Lp)
    def dump(k, reg):
        if not opt.get("dump"): return
        I("s_lshl_b32 s14, %s, 5" % s(sL)); I("s_add_u32 s14, s14, %s" % s(sHEAD))
        I("s_lshl_b32 s14, s14, 2"); I("s_add_u32 s14, s14, %s" % s(S_WAVE))
        I("s_lshl_b32 s14, s14, 14"); I("s_add_u32 s14, s14, %d" % (0xF400000 + k * 1024 - STG))
        I("s_cmp_eq_u32 %s, 0" % s(sSTEP)); I("s_cselect_b32 s14, s14, 0x%x" % OOB)
        I("s_nop 7"); I("s_nop 7")
        I("buffer_store_dwordx4 %s, %s, s[4:7], s14 offen" % (v(reg, 4), v(L16S)))
    ST = " sc1" if sc1 else ""
    w0 = cls == "0"
    tag = ("s" if sc1 else "p") + cls
    LB1 = "L_ch_b1_" + tag; LEND = "L_ch_end_" + tag; LTOP = "L_ch_top_" + tag
    I("s_branch %s" % LB1)
    A.label(LTOP)
    OWN = 10
    T0 = 0 if w0 else 2 * int(cls) + 1
    NO = 3 if w0 else 2
    I("s_barrier")
    I("s_mov_b32 %s, 0" % s(sCNT))
    if "a" in WACK: I("s_waitcnt vmcnt(0)")
    LP = A.newlabel("L_ag")
    A.label(LP)
    t = [I("buffer_load_dwordx4 %s, %s, s[4:7], %s offen offset:%d sc1" % (v(OWN + 4 * i, 4), v(L16S), s(sAG), 1024 * i)) for i in range(NO)]
    I("s_add_u32 %s, %s, 1" % (s(sCNT), s(sCNT)))
    I("s_cmp_gt_u32 %s, %d" % (s(sCNT), SPIN_MAX))
    I("s_cbranch_scc1 L_FAIL", noflush=True)
    for i in range(NO):
        A.wait_vm(t[i])
        I("ds_write_b128 %s, %s offset:%d" % (v(AGW), v(OWN + 4 * i, 4), 1024 * i))
    I("v_max3_u32 v74, v10, v11, v12")
    I("v_max3_u32 v75, v13, v14, v15")
    if NO == 3:
        I("v_max3_u32 v76, v16, v17, v18")
        I("v_max3_u32 v74, v74, v19, v20")
        I("v_max3_u32 v75, v75, v76, v21")
        I("v_max_u32 v74, v74, v75")
    else:
        I("v_max3_u32 v74, v74, v16, v17")
        I("v_max3_u32 v74, v74, v75, v75")
    I("v_cmp_eq_u32 vcc, -1, v74")
    I("s_cbranch_vccnz %s" % LP, noflush=True)
    A.label(LB1)
    QA_, QB_, KA_, KB_, VA_, VB_ = 50, 54, 58, 62, 66, 70
    def smf(acc, buf, f): I("v_smfmac_f32_16x16x64_bf16 %s, %s, %s, %s" % (v(acc, 4), v(buf, 4), f if isinstance(f, str) else wreg(f), v(IDX)))
    own = list(range(T0, T0 + NO)); rest = [T for T in range(9) if T not in own]
    qk = lambda T, buf: [(QA_, buf, widx(0, 0, T)), (QB_, buf, widx(0, 1, T)), (KA_, buf, widx(1, 0, T)), (KB_, buf, widx(1, 1, T))]
    for it in qk(own[0], OWN): smf(*it)
    I("s_waitcnt lgkmcnt(0)")
    ts(0)
    I("s_barrier")
    AB = [38, 42, 46]
    at = {}
    OWNV = NO == 2
    vlist = rest if OWNV else list(range(9))
    ring = rest + vlist; NR = len(rest)
    def aread(j):
        if j < len(ring): at[j] = I("ds_read_b128 %s, %s offset:%d" % (v(AB[j % 3], 4), v(L16S), ring[j] * 1024))
    kt = {}
    def dma():
        I("buffer_load_dwordx4 %s, s[4:7], s3 offen sc1 lds" % v(KOFF))
        kt["dma"] = ("vm", A.vm_issued)
    def ld(name, dst, addr, so, off):
        def f(): kt[name] = I("buffer_load_dwordx4 %s, %s, s[4:7], %s offen offset:%d sc1" % (v(dst, 4), v(addr), s(so), off))
        return f
    items = []
    for i in range(1, NO): items += qk(own[i], OWN + 4 * i)
    vdone = []
    for i in range(NO):
        if OWNV: items += [(VA_, OWN + 4 * i, widx(2, 0, own[i])), (VB_, OWN + 4 * i, widx(2, 1, own[i]))]
        vdone.append(len(items) - 1 if OWNV else max(4 * i - 1, 0))
    nown = len(items)
    for j, T in enumerate(rest): items += qk(T, AB[j % 3])
    gaps = {k: [] for k in range(len(items))}
    for k in range(3): gaps[k].append(lambda k=k: aread(k))
    gaps[3].append(lambda: (I("s_mov_b32 m0, %s" % s(sDMAL)), I("s_add_u32 s3, %s, %s" % (s(sKV), s(sDMAO)))))
    L3A, L3B = ld("3A", KX + 12, KOFF, sKV2, 2048), ld("3B", KX + 16, KOFF, sKV2, 2176)
    L2A, L2B, L1B = ld("2A", KX + 4, KOFF, sKV2, 0), ld("2B", KX + 8, KOFF, sKV2, 128), ld("1B", KX, KOFF, sKV, 2176)
    LV0, LV1 = ld("V0", VX, VOFF, sKV, 0), ld("V1", VX + 4, VOFF, sKV, 2048)
    PAT = eval(os.environ.get("VPAT", "[0,3,6,9,12,14,16,18]"))
    if NO == 2:
        vm = [dma, L3A, L3B, L2B, L1B, L2A, LV0, LV1]
        ks = [4 + int(cls) - 1 + x for x in PAT]
        assert ks[4] >= vdone[0] and ks[5] >= vdone[1]
    else:
        vm = [dma, L3A, L3B, L1B, L2A, L2B, LV0, LV1]
        ks = [4 + x for x in eval(os.environ.get("VPAT0", "[0,3,6,9,12,14,16,18]"))]
        ks[3] = max(ks[3], vdone[0]); ks[4] = max(ks[4], vdone[1], ks[3] + 1); ks[5] = max(ks[5], vdone[2], ks[4] + 1)
        ks[6] = max(ks[6], ks[5] + 1); ks[7] = max(ks[7], ks[6] + 1)
    for k, f in zip(ks, vm): gaps[k].append(f)
    late = []
    if w0:
        PF0 = int(os.environ.get("PF0", "27"))
        gaps[5].append(lambda: (I("v_subrev_u32 v76, %d, %s" % (STG, v(L16S))), I("v_lshlrev_b32 v76, 3, v76")))
        gaps[6].append(lambda: (I("v_and_b32 v74, 0x380, v76"), I("v_and_b32 v75, 0x800, v76")))
        gaps[PF0].append(lambda: I("buffer_load_dword %s, v76, s[4:7], %s offen sc1" % (v(JUNK), s(sPF))))
        gaps[PF0 + 1].append(lambda: (I("s_add_u32 s3, %s, 8192" % s(sPF)), I("buffer_load_dword %s, v76, s[4:7], s3 offen sc1" % v(JUNK))))
        gaps[PF0 + 2].append(lambda: I("buffer_load_dword %s, v76, s[4:7], %s offen sc1" % (v(JUNK), s(sMPF))))
        gaps[PF0 + 3].append(lambda: (I("s_add_u32 s3, %s, 8192" % s(sMPF)), I("buffer_load_dword %s, v74, s[4:7], s3 offen sc1" % v(JUNK))))
        def last():
            I("buffer_load_dword %s, v75, s[4:7], %s offen offset:2048 sc1" % (v(FLG), s(sFKVN)))
            I("s_mov_b64 exec, 1")
            I("v_mov_b32 v77, 4")
            I("buffer_atomic_add v77, off, s[4:7], %s sc1" % s(sFMKV))
            I("s_mov_b64 exec, -1")
        gaps[PF0 + 4].append(last)
        assert PF0 > ks[7]
    for k, it in enumerate(items):
        j = (k - nown) // 4 if k >= nown else None
        if j is not None and (k - nown) % 4 == 0: A.wait_lgkm(at[j])
        smf(*it)
        if j is not None and (k - nown) % 4 == 3: aread(j + 3)
        for f in gaps[k]: f()
    dma_mark = kt["dma"]
    ts(1)
    def vs(i, half):
        if i >= len(vlist): return
        j = NR + i
        buf = AB[j % 3]
        if half == 0:
            A.wait_lgkm(at[j])
            smf(VA_, buf, widx(2, 0, vlist[i]))
        else:
            smf(VB_, buf, widx(2, 1, vlist[i]))
            aread(j + 3)
    ad = lambda d, a_, b_: I("v_add_f32 %s, %s, %s" % (v(d), v(a_), v(b_)))
    cvt = lambda d, a_, b_: I("v_cvt_pk_bf16_f32 %s, %s, %s" % (v(d), v(a_), v(b_)))
    vs(0, 0); vs(0, 1)
    ad(QA_, QA_, QA_ + 2); ad(QA_ + 1, QA_ + 1, QA_ + 3); ad(QB_, QB_, QB_ + 2); ad(QB_ + 1, QB_ + 1, QB_ + 3)
    cvt(74, QA_, QA_ + 1); cvt(75, QB_, QB_ + 1)
    I("ds_write2_b32 %s, v74, v75 offset0:0 offset1:128" % v(XW))
    ad(KA_, KA_, KA_ + 2); ad(KA_ + 1, KA_ + 1, KA_ + 3); ad(KB_, KB_, KB_ + 2); ad(KB_ + 1, KB_ + 1, KB_ + 3)
    cvt(76, KA_, KA_ + 1); cvt(77, KB_, KB_ + 1)
    I("ds_write_b32 %s, v76 offset:2048" % v(XW))
    wtok = I("ds_write_b32 %s, v77 offset:2560" % v(XW))
    vs(1, 0); vs(1, 1); vs(2, 0); vs(2, 1)
    A.wait_lgkm(wtok)
    A.wait_vm(dma_mark)
    I("s_barrier")
    ts(2)
    def trq(Tp, dst):
        I("ds_read_b64_tr_b16 %s, %s offset:%d" % (v(dst, 2), v(TR), Tp * 512))
        return I("ds_read_b64_tr_b16 %s, %s offset:%d" % (v(dst + 2, 2), v(TR), Tp * 512 + 128))
    def trk(Tp, dst):
        I("ds_read_b64_tr_b16 %s, %s offset:%d" % (v(dst, 2), v(TR), 2048 + Tp * 512))
        return I("ds_read_b64_tr_b16 %s, %s offset:%d" % (v(dst + 2, 2), v(TR), 2048 + Tp * 512 + 128))
    tq3 = trq(3, 50); tk3 = trk(3, 54)
    vs(3, 0); tq2 = trq(2, 58); vs(3, 1); tk2 = trk(2, 62)
    vs(4, 0); tq1 = trq(1, 74); vs(4, 1)
    for T in range(5, len(vlist)):
        for hf in range(2):
            vs(T, hf)
            if late: late.pop(0)()
    assert not late
    S0, SA, SB = 38, 42, 46
    def mf(d, x, y, c): I("v_mfma_f32_16x16x32_bf16 %s, %s, %s, %s" % (v(d, 4), v(x, 4), v(y, 4), c))
    later = lambda *n: max((kt[x] for x in n), key=lambda k: k[1])
    A.wait_lgkm(tk3); A.wait_vm(later("3A", "3B"))
    mf(SA, KX + 12, 50, "0"); mf(SB, KX + 16, 50, "0"); mf(S0, 54, 50, "0")
    tk1 = trk(1, 54)
    t1A = I("ds_read_b128 %s, %s offset:%d" % (v(KX + 12, 4), v(L16S), KXL - STG + 2 * 1024))
    tq0 = trq(0, 50)
    t0A = I("ds_read_b128 %s, %s offset:%d" % (v(KX + 16, 4), v(L16S), KXL - STG + 0 * 1024))
    A.wait_lgkm(tk2); A.wait_vm(later("2A", "2B"))
    mf(SA, KX + 4, 58, v(SA, 4)); mf(SB, KX + 8, 58, v(SB, 4)); mf(S0, 62, 58, v(S0, 4))
    tk0 = trk(0, 58)
    t0B = I("ds_read_b128 %s, %s offset:%d" % (v(KX + 4, 4), v(L16S), KXL - STG + 1 * 1024))
    I("ds_read_b64_tr_b16 v[62:63], %s offset:2048" % v(TRW))
    tmk = I("ds_read_b64_tr_b16 v[64:65], %s offset:2176" % v(TRW))
    A.wait_vm(kt["1B"]); A.wait_lgkm(tq1)
    mf(SB, KX, 74, v(SB, 4))
    ad(70, 70, 72); ad(71, 71, 73)
    A.wait_lgkm(t1A)
    mf(SA, KX + 12, 74, v(SA, 4))
    ad(66, 66, 68); ad(67, 67, 69)
    A.wait_lgkm(tk1)
    mf(S0, 54, 74, v(S0, 4))
    cvt(70, 70, 71); cvt(72, 66, 67)
    A.wait_lgkm(t0A)
    mf(SA, KX + 16, 50, v(SA, 4))
    I("v_mov_b32 v71, 0"); I("v_mov_b32 v73, 0")
    A.wait_lgkm(tk0)
    mf(S0, 58, 50, v(S0, 4))
    I("v_mov_b64 v[74:75], %s" % s(sONES, 2)); I("v_mov_b64 v[76:77], %s" % s(sONES, 2))
    A.wait_lgkm(t0B)
    mf(SB, KX + 4, 50, v(SB, 4))
    I("s_add_u32 s3, %s, %d" % (s(sMKV), 2048 - QX))
    I("buffer_store_dword v72, %s, s[4:7], s3 offen sc1" % v(XW))
    I("buffer_store_dword v70, %s, s[4:7], s3 offen offset:512 sc1" % v(XW))
    A.wait_lgkm(tmk)
    I("buffer_store_dwordx4 v[62:65], %s, s[4:7], %s offen sc1" % (v(MKO), s(sMKV)))
    I("s_cmp_eq_u32 %s, 63" % s(sSTEP))
    I("s_cbranch_scc1 %s" % LEND, noflush=True)
    ts(3)
    pass
    ONES, PM, AA_, AB_, DEN = 74, 64, 72, 70, 42
    I("v_cndmask_b32_e64 v38, v38, v40, %s" % s(sGODD, 2))
    I("v_cndmask_b32_e64 v39, v39, v41, %s" % s(sGODD, 2))
    I("v_max3_f32 v50, v42, v43, v44")
    I("v_max3_f32 v51, v45, v46, v47")
    I("v_max3_f32 v52, v48, v49, v38")
    I("v_max3_f32 v50, v50, v51, v39")
    I("v_max_f32 v50, v50, v52")
    I("v_mov_b32 v51, v50")
    I("v_mov_b64 v[66:67], 0")
    I("v_mov_b32 v65, 0")
    I("v_permlane16_swap_b32 v50, v51")
    I("v_max_f32 v50, v50, v51")
    I("v_mov_b32 v51, v50")
    WA, WA2 = 41, 40
    WA, WA2 = 47, 46
    I("v_subrev_u32 v40, %d, %s" % (STG, v(L16S)))
    I("s_nop 0")
    I("v_permlane32_swap_b32 v50, v51")
    I("v_max_f32 v50, v50, v51")
    I("v_mul_f32 v50, %s, v50" % s(sNC))
    for r in list(range(42, 50, 2)) + [38]:
        I("v_pk_fma_f32 %s, %s, %s, v[50:51] op_sel_hi:[1,0,0]" % (v(r, 2), v(r, 2), s(sC, 2)))
    for r in range(42, 50): I("v_exp_f32 %s, %s" % (v(r), v(r)))
    for i in range(4): cvt(52 + i, 42 + 2 * i, 43 + 2 * i)
    OA_, OB_ = 56, 60
    A.wait_vm(later("V0", "V1"))
    mf(DEN, ONES, 52, "0")
    I("v_exp_f32 v38, v38")
    mf(OA_, VX, 52, "0")
    I("v_exp_f32 v39, v39")
    mf(OB_, VX + 4, 52, "0")
    I("v_add_u32 %s, %s, v40" % (v(WA), s(sG0)))
    cvt(64, 38, 39)
    extra = cls in ("0", "3")
    if extra: I("v_add_u32 %s, 0x%x, v40" % (v(WA2), 8 * 16384))
    seq = []
    for gi in range(2):
        for hb in range(2):
            for T in range(2):
                for par in range(2): seq.append((gi, hb + 2 * par, T))
    if extra:
        hb = 0 if cls == "0" else 1
        for T in range(2):
            for par in range(2): seq.append((8, hb + 2 * par, T))
    NK = len(seq)
    BB = [10, 18, 26, 48, 64]
    bt = {}
    def bread(k):
        if k >= NK: return
        gi, x, T = seq[k]
        b = BB[k % 5]
        adr = WA2 if gi == 8 else WA
        off = (0 if gi == 8 else gi * 16384) + x * 4096 + T * 2048
        I("ds_read_b128 %s, %s offset:%d" % (v(b, 4), v(adr), off))
        bt[k] = I("ds_read_b128 %s, %s offset:%d" % (v(b + 4, 4), v(adr), off + 1024))
    mf(DEN, ONES, PM, v(DEN, 4))
    mf(OA_, AA_, PM, v(OA_, 4))
    mf(OB_, AB_, PM, v(OB_, 4))
    bread(0); bread(1)
    I("v_rcp_f32 v42, v42")
    for r in range(0, 8, 2):
        I("v_pk_mul_f32 %s, %s, v[42:43] op_sel_hi:[1,0]" % (v(OA_ + r, 2), v(OA_ + r, 2)))
    for r in range(4): cvt(OA_ + r, OA_ + r, OB_ + r)
    otok = I("ds_write_b128 %s, %s" % (v(OW), v(OA_, 4)))
    ts(4)
    OF = [34, 38]
    P = (56, 60); Q = (72, 42); O = 76
    def zero(u):
        I("v_mov_b64 %s, 0" % v(u, 2)); I("v_mov_b64 %s, 0" % v(u + 2, 2))
    bread(2)
    zero(Q[0]); zero(Q[1]); zero(P[1])
    bread(3)
    A.wait_lgkm(otok)
    I("s_barrier")
    of = [I("ds_read_b128 %s, %s" % (v(OF[0], 4), v(L16S))), I("ds_read_b128 %s, %s offset:1024" % (v(OF[1], 4), v(L16S)))]
    bread(4)
    zero(P[0])
    I("s_mul_i32 s3, %s, %d" % (s(sL), R_L))
    I("s_and_b32 %s, %s, 1" % (s(sTMP), s(sSTEP)))
    I("s_mul_i32 %s, %s, %d" % (s(sTMP), s(sTMP), R_B))
    I("s_add_u32 %s, s3, %s" % (s(sRB), s(sTMP)))
    I("s_add_u32 %s, %s, %d" % (s(sRB), s(sRB), W_R))
    I("s_add_u32 %s, %s, %s" % (s(sRW), s(sRB), s(sRWH)))
    I("s_add_u32 %s, %s, 32768" % (s(sRW2), s(sRW)))
    I("s_bfe_u32 %s, %s, 0x10001" % (s(sTAG), s(sSTEP)))
    if extra:
        I("s_add_u32 %s, %s, %s" % (s(sRW8), s(sRB), s(sRWH8)))
    NH = NK // 4
    fillers = []
    def epi(h):
        ua, ub = (P, Q)[h & 1]
        L_ = []
        for u in (ua, ub):
            L_.append(lambda u=u: ad(u, u, u + 2)); L_.append(lambda u=u: ad(u + 1, u + 1, u + 3))
        o = O + 2 * (h & 1)
        L_.append(lambda: cvt(o, ua, ub)); L_.append(lambda: cvt(o + 1, ua + 1, ub + 1))
        if h >= 4:
            L_.append(lambda: I("v_bfi_b32 %s, 1, %s, %s" % (v(O + 1), s(sTAG), v(O + 1))))
            L_.append(lambda: I("buffer_store_dwordx2 %s, %s, s[4:7], %s offen%s" % (v(O, 2), v(WA2), s(sRW8), ST)))
        elif h & 1:
            L_.append(lambda: I("v_bfi_b32 %s, 1, %s, %s" % (v(O + 3), s(sTAG), v(O + 3))))
            L_.append(lambda: I("buffer_store_dwordx4 %s, %s, s[4:7], %s offen%s" % (v(O, 4), v(RWO), s(sRW2 if h >> 1 else sRW), ST)))
        if h + 2 < NH:
            for u in (ua, ub):
                L_.append(lambda u=u: I("v_mov_b64 %s, 0" % v(u, 2))); L_.append(lambda u=u: I("v_mov_b64 %s, 0" % v(u + 2, 2)))
        return L_
    pend = []
    for k in range(NK):
        h = k // 4
        gi, x, T = seq[k]
        if k == 0: A.wait_lgkm(of[0])
        if k == 2: A.wait_lgkm(of[1])
        if k % 4 == 0 and h >= 2:
            while pend and pend[0][0] <= h - 2: pend.pop(0)[1]()
        if k % 2 == 0: A.wait_lgkm(bt[min(k + 1, NK - 1)])
        u = (P, Q)[h & 1][0 if x < 2 else 1]
        smf(u, OF[T], v(BB[k % 5], 8))
        bread(k + 5)
        if k % 4 == 1 and h >= 1:
            pend += [(h - 1, f) for f in epi(h - 1)]
        if k == 16:
            pend += [(h - 1, lambda: I("v_and_b32 %s, 0x70, %s" % (v(WA2), v(RWO)))),
                     (h - 1, lambda: I("v_lshrrev_b32 %s, 1, %s" % (v(WA2), v(WA2)))),
                     (h - 1, lambda: I("v_sub_u32 %s, %s, %s" % (v(WA2), v(RWO), v(WA2))))]
        n = 3 if k % 4 else 0
        while pend and n > 0:
            pend.pop(0)[1](); n -= 1
    while pend: pend.pop(0)[1]()
    for f in epi(NH - 1): f()
    ts(5)
    advance(A)
    Lnors = A.newlabel("L_nors")
    if cls == "3":
        I("s_cmp_ge_u32 %s, 72" % s(sPI))
        I("s_cbranch_scc1 %s" % Lnors)
    if not w0:
        I("s_add_u32 %s, %s, %s" % (s(sRR), s(sRB), s(sRSO)))
        I("v_mov_b32 v42, %s" % s(sONE_LO))
        I("v_mov_b32 v43, %s" % s(sONE_HI))
        I("v_cndmask_b32_e64 v42, v42, v43, %s" % s(sODD, 2))
        for j in range(4): I("v_cndmask_b32_e64 %s, 0, v42, %s" % (v(38 + j), s(sSEL + 2 * j, 2)))
        I("s_mov_b32 s90, 0xff00ff00"); I("s_mov_b32 s91, 0xff00ff00")
        I("s_mov_b32 s13, 0")
        LR = A.newlabel("L_rs"); LRD = A.newlabel("L_rsd")
        ne = lambda d, a_, b_: I("v_bitop3_b32 %s, %s, %s, %s bitop3:0x7e" % (v(d), v(a_), v(b_), s(sTAG)))
        RB = [[10, 14, 18, 22], [26, 30, 34, 48]] if DBP else [[48, 52, 56, 60]]
        def rs_issue(b):
            for i in range(4):
                I("buffer_load_dwordx4 %s, %s, s[4:7], %s offen offset:%d sc1" % (v(RB[b][i], 4), v(L16S), s(sRR), 1024 * i))
        def rs_check(b):
            r = RB[b]
            mf(64, 38, r[0], "0")
            if cls == "3": ne(44, r[0] + 1, r[0] + 3); ne(45, r[1] + 1, r[1] + 3)
            else: ne(44, r[0] + 3, r[1] + 3)
            mf(64, 38, r[1], v(64, 4))
            if cls == "3": ne(46, r[2] + 1, r[2] + 3); ne(47, r[3] + 1, r[3] + 3)
            else: ne(45, r[2] + 3, r[3] + 3)
            mf(64, 38, r[2], v(64, 4))
            if cls == "3": I("v_or3_b32 v44, v44, v46, v47")
            I("v_bitop3_b32 v44, v44, v45, 1 bitop3:0xa8")
            mf(64, 38, r[3], v(64, 4))
            I("v_cmp_ne_u32 vcc, 0, v44")
        def rs_cnt():
            I("s_add_u32 s13, s13, 1")
            I("s_cmp_gt_u32 s13, %d" % SPIN_MAX)
            I("s_cbranch_scc1 L_FAIL", noflush=True)
        if DBP:
            rs_issue(0)
            A.label(LR)
            rs_issue(1)
            rs_cnt()
            I("s_waitcnt vmcnt(4)")
            rs_check(0)
            I("s_cbranch_vccz %s" % LRD, noflush=True)
            rs_issue(0)
            if prof: I("s_add_u32 s13, s13, 1")
            I("s_waitcnt vmcnt(4)")
            rs_check(1)
            I("s_cbranch_vccnz %s" % LR, noflush=True)
            A.label(LRD)
        else:
            if "r" in WACK: I("s_waitcnt vmcnt(0)")
            A.label(LR)
            rs_issue(0)
            rs_cnt()
            I("s_waitcnt vmcnt(0)")
            rs_check(0)
            I("s_cbranch_vccnz %s" % LR, noflush=True)
        ts(6)
        for r in range(4):
            I("v_add_f32_dpp %s, %s, %s row_ror:8 row_mask:0xf bank_mask:0xf" % (v(68 + r), v(64 + r), v(64 + r)))
        cvt(72, 68, 69); cvt(73, 70, 71)
        I("v_cndmask_b32_e64 v72, v72, v73, s[90:91]")
        I("s_mov_b64 exec, %s" % s(sMLO, 2))
        I("buffer_store_dword v72, %s, s[4:7], %s offen%s" % (v(PUB), s(sPUB), ST))
        I("s_mov_b64 exec, -1")
        ts(7)
        I("s_add_u32 %s, %s, %d" % (s(sPUB), s(sPUB), M_S))
    if cls == "3": A.label(Lnors)
    if w0:
        I("s_waitcnt vmcnt(3)")
        w0_check(A)
    shadow_init(A, cls, True)
    if prof: I("s_mov_b32 s12, %s" % s(STAMP[8]))
    ts(8)
    ts_store()
    tl_mark(A, 74)
    I("s_branch %s" % LTOP)
    A.label(LEND)
    I("s_nop 7"); I("s_nop 7")
    I("s_waitcnt vmcnt(0)")
    I("s_mov_b32 %s, %s" % (s(sFMKV), s(sFCUR)))
    signal(A, sFMKV, 44)
    tl_mark(A, 74)
    tl_end(A, 74)
    I("s_branch L_END")

def mem0_issue(A):
    I = A.I
    load_srd(A, S_W2, 32, 9216)
    I("v_subrev_u32 v60, %d, %s" % (STG, v(L16S)))
    I("v_lshrrev_b32 v61, 4, v60")
    I("v_bfe_u32 v62, v61, 2, 2"); I("v_lshlrev_b32 v62, 1, v62")
    I("v_and_b32 v63, 1, v61"); I("v_add_u32 v62, v62, v63")
    I("v_mul_u32_u24 v62, 1152, v62")
    I("v_lshrrev_b32 v63, 4, v61")
    I("v_lshl_add_u32 v62, v63, 4, v62")
    I("v_bfe_u32 v63, v61, 1, 1")
    I("v_lshl_add_u32 v62, v63, 6, v62")
    I("s_lshl_b32 s3, %s, 7" % s(S_WAVE))
    I("buffer_load_dwordx4 v[64:67], v62, s[12:15], s3 offen")
    I("buffer_load_dwordx4 v[68:71], v62, s[12:15], s3 offen offset:512")
    return I("buffer_load_dwordx4 v[72:75], v62, s[12:15], 0 offen offset:1024")

def mem0_finish(A, tok):
    I = A.I
    A.wait_vm(tok)
    I("v_add_u32 v79, %s, %s" % (s(sW1024), v(L16S)))
    I("ds_write_b128 v79, v[64:67]")
    I("ds_write_b128 v79, v[68:71] offset:4096")
    I("ds_write_b128 %s, v[72:75] offset:8192" % v(L16S))
    I("s_waitcnt lgkmcnt(0)")

def chain_role(A, opt):
    G1.setup(A, opt)
    lane_consts(A)
    lane_consts2(A)
    I = A.I
    mtok = mem0_issue(A)
    def sw2a():
        I("s_lshl_b32 s96, %s, 2" % s(sL)); I("s_add_u32 s96, s96, 128")
        I("buffer_load_dword v38, off, s[16:19], 0 sc1")
        I("buffer_load_dword v39, off, s[16:19], s96 sc1")
    def sw2b():
        L = A.newlabel("L_carr"); Lok = A.newlabel("L_carrok")
        I("s_mov_b32 s95, 0")
        A.label(L)
        I("v_min_u32 v38, v38, v39")
        I("v_cmp_gt_u32 vcc, %d, v38" % NARR)
        I("s_cbranch_vccz %s" % Lok)
        I("s_add_u32 s95, s95, 1")
        I("s_cmp_gt_u32 s95, %d" % SPIN_MAX)
        I("s_cbranch_scc1 L_FAIL")
        I("s_sleep 4")
        I("buffer_load_dword v38, off, s[16:19], 0 sc1")
        I("buffer_load_dword v39, off, s[16:19], s96 sc1")
        I("s_waitcnt vmcnt(0)")
        I("s_branch %s" % L)
        A.label(Lok)
    def last():
        I("s_add_u32 s96, s96, 8")
        I("buffer_load_dword v38, off, s[16:19], s96 sc1")
    def lastb():
        I("s_waitcnt vmcnt(0)")
        I("v_readfirstlane_b32 s97, v38")
    G1.load_weights(A, {"first": lambda: mem0_finish(A, mtok), "sw2a": sw2a, "sw2b": sw2b, "last": last, "lastb": lastb})
    scalars(A)
    tl_mark(A, 44)
    I("s_barrier")
    tl_mark(A, 44)
    I = A.I
    mode = opt.get("chain_mode", "auto")
    def classes(sc1):
        tag = "s" if sc1 else "p"
        I("s_cmp_eq_u32 %s, 0" % s(S_WAVE)); I("s_cbranch_scc1 L_cls0%s" % tag)
        I("s_cmp_eq_u32 %s, 2" % s(S_WAVE)); I("s_cbranch_scc1 L_cls2%s" % tag)
        I("s_cmp_eq_u32 %s, 3" % s(S_WAVE)); I("s_cbranch_scc1 L_cls3%s" % tag)
        for cls in ("1", "0", "2", "3"):
            if cls != "1": A.label("L_cls%s%s" % (cls, tag))
            if cls == "0":
                w0_spin(A)
                w0_next(A)
            shadow_init(A, cls)
            for i in range(3 if cls == "0" else 2):
                I("ds_read_b128 %s, %s offset:%d" % (v(10 + 4 * i, 4), v(AGW), 1024 * i))
            I("s_waitcnt lgkmcnt(0)")
            step_loop(A, opt, sc1, cls)
    if mode == "auto":
        I("s_bcnt1_i32_b32 s90, s97")
        I("s_cmp_eq_u32 s90, 1")
        I("s_cbranch_scc0 L_ch_slow")
        classes(False)
        A.label("L_ch_slow")
        classes(True)
    else:
        classes(mode == "sc1")
```

```python
from g_work import *

NEGINF = 0xff800000
def mf32(A, d, x, y, c): A.I("v_mfma_f32_32x32x16_bf16 %s, %s, %s, %s" % (v(d, 16), x, y, c))
def mf8(A, d, x, y, c): A.I("v_mfma_f32_32x32x8bf16_1k %s, %s, %s, %s" % (v(d, 16), x, y, c))

def xhalf(A, op, r, tmp):
    A.I("v_mov_b32 %s, %s" % (v(tmp), v(r)))
    A.I("v_permlane32_swap_b32 %s, %s" % (v(r), v(tmp)))
    A.I("%s %s, %s, %s" % (op, v(r), v(r), v(tmp)))

def max_tree(A, dst, regs):
    I = A.I
    regs = list(regs)
    if len(regs) >= 12:
        nch = 4
        parts = [regs[i::nch] for i in range(nch)]
        st = [None] * nch
        done = False
        idx = [0] * nch
        while not done:
            done = True
            for c in range(nch):
                p = parts[c]; i = idx[c]
                if i >= len(p): continue
                done = False
                if st[c] is None:
                    if len(p) - i >= 3:
                        I("v_max3_f32 %s, %s, %s, %s" % (v(dst + c), v(p[i]), v(p[i + 1]), v(p[i + 2]))); idx[c] += 3
                    else:
                        I("v_max_f32 %s, %s, %s" % (v(dst + c), v(p[i]), v(p[i + 1]))); idx[c] += 2
                    st[c] = 1
                elif len(p) - i >= 2:
                    I("v_max3_f32 %s, %s, %s, %s" % (v(dst + c), v(dst + c), v(p[i]), v(p[i + 1]))); idx[c] += 2
                else:
                    I("v_max_f32 %s, %s, %s" % (v(dst + c), v(dst + c), v(p[i]))); idx[c] += 1
        I("v_max3_f32 %s, %s, %s, %s" % (v(dst), v(dst), v(dst + 1), v(dst + 2)))
        I("v_max_f32 %s, %s, %s" % (v(dst), v(dst), v(dst + 3)))
    else:
        raise NotImplementedError

MSK = [40 + 2 * i for i in range(8)] + [64 + 2 * i for i in range(8)]
def causal_masks(A):
    I = A.I
    I("v_and_b32 v8, 31, %s" % v(LANE))
    I("v_lshrrev_b32 v9, 5, %s" % v(LANE))
    I("v_lshlrev_b32 v9, 2, v9")
    I("v_sub_u32 v8, v8, v9")
    for j in range(4):
        for r in range(4):
            I("v_cmp_le_i32_e64 %s, %d, v8" % (s(MSK[4 * j + r], 2), 8 * j + r))

BSC = 128 ** -0.5 * 1.4426950408889634
def role_qa(A):
    I = A.I
    worker_setup(A)
    bw_load(A, 40)
    causal_masks(A)
    NEG = 5; MKO = 6; MVO = 7
    I("v_mov_b32 %s, 0x%x" % (v(NEG), NEGINF))
    I("v_lshrrev_b32 v9, 5, %s" % v(LANE))
    I("v_and_b32 v8, 7, %s" % v(LANE))
    I("v_lshlrev_b32 v8, 4, v8")
    I("v_lshl_add_u32 %s, v9, 7, v8" % v(MKO))
    I("v_and_b32 v8, 31, %s" % v(LANE))
    I("v_lshlrev_b32 v8, 4, v8")
    I("v_lshl_add_u32 v8, v9, 3, v8")
    I("v_add_u32 %s, 2048, v8" % v(MVO))
    I("s_mov_b32 %s, 0x%x" % (s(sSC), fb(BSC)))
    fw = ((F_XN + 64) * FSTR, 128 * FSTR, FSTR, [])
    fs = (F_OB * FSTR, 64 * 4 * FSTR, 4 * FSTR, [(62, FSTR)])
    xb = (W_XN + XN_K, 2 * XN_K, SEGB, [])
    ob = (W_OB, 64 * OB_S, OB_S, [(S_IDX, 8192)])
    I("s_lshr_b32 s62, %s, 3" % s(S_IDX))
    task_init(A, fw, fs, xb, ob)
    sFK, sFM, sKV, sMK = 80, 81, 82, 83
    ex = ((sFK, (F_KV * FSTR, 64 * 32 * FSTR, 32 * FSTR, [(S_IDX, FSTR)])),
          (sFM, (F_MKV * FSTR, 64 * 32 * FSTR, 32 * FSTR, [(S_IDX, FSTR)])),
          (sKV, (W_KV, 64 * 32 * KV_H, 32 * KV_H, [(S_IDX, KV_H)])),
          (sMK, (W_MKV, 64 * 32 * MKV_H, 32 * MKV_H, [(S_IDX, MKV_H)])))
    for dst, (c0, cl, cs, e) in ex: lin(A, dst, c0, [(sLy, cl), (sSeg, cs)] + e)
    I("v_cmp_eq_u32 vcc, 1, %s" % v(LANE))
    I("v_mov_b32 v11, 2"); I("v_mov_b32 v12, %d" % (2 * 32 * FSTR))
    I("v_mov_b32 v8, 4"); I("v_mov_b32 v9, 0x%x" % ((F_MKV - F_KV) * FSTR))
    I("v_cndmask_b32 v11, v11, v8, vcc"); I("v_cndmask_b32 v12, v12, v9, vcc")
    start_sync(A)
    A.label("L_qa_top")
    task_head(A, sFK, 2)
    KA, VA, MKA, MVA = 144, 176, 208, 240
    def kvl(t):
        def f():
            if t % 4 == 0 and t: I("s_add_u32 %s, %s, %d" % (s(sT), s(sKV), t * 1024))
            return I(("buffer_load_dwordx4 %s, %s, s[4:7], %s offen offset:%d" + LD) % (a(KA + 4 * t, 4), v(L16), s(sKV if t < 4 else sT), (t % 4) * 1024))
        return f
    toks = XL(A, 36, sX, extra=[kvl(t) for t in range(16)], nup="pre")
    def mloads():
        mt = []
        for t in range(8):
            mt.append(I(("buffer_load_dwordx4 %s, %s, s[4:7], %s offen offset:%d" + LD) % (a(MKA + 4 * t, 4), v(MKO), s(sMK), t * 256)))
        for tau in range(4):
            mvt = I(("buffer_load_dwordx2 %s, %s, s[4:7], %s offen offset:%d" + LD) % (a(MVA + 2 * tau, 2), v(MVO), s(sMK), tau * 512))
        return mt, mvt
    sHV = 84
    TP, TC = 22, 29
    def poll(): I("buffer_load_dword v14, v12, s[4:7], %s offen sc1" % s(sFK))
    def check(): I("v_cmp_le_u32 vcc, v11, v14")
    def more(pend):
        I("s_bfe_u32 %s, vcc_lo, 0x10001" % s(sHV))
        I("s_cmp_lg_u32 %s, 0" % s(sHV))
        I("s_cselect_b32 s88, %s, 0x%x" % (s(sMK), OOB))
        for t in range(8):
            pend.append(lambda t=t: I(("buffer_load_dwordx4 %s, %s, s[4:7], s88 offen offset:%d" + LD) % (a(MKA + 4 * t, 4), v(MKO), t * 256)))
        for tau in range(4):
            pend.append(lambda tau=tau: I(("buffer_load_dwordx2 %s, %s, s[4:7], s88 offen offset:%d" + LD) % (a(MVA + 2 * tau, 2), v(MVO), tau * 512)))
    gemm_core(A, 36, 4, False, xtoks=toks, fill=look_fill(A, None, None, None, 2 * SEGB, TP, TC, more=more, poll=poll, check=check))
    if TL.get("tlq"): tl_mark(A, 13)
    QF = 16
    def qcv(f):
        for m in range(4):
            x0 = ACC + 8 * f + 2 * m
            I("v_cvt_pk_bf16_f32 %s, %s, %s" % (v(QF + 4 * f + m), v(x0), v(x0 + 1)))
    SX, SM = 64, 80
    qcv(0); qcv(1)
    for t in range(8):
        mf32(A, SX, a(KA + 4 * t, 4), v(QF + 4 * t, 4), "0" if t == 0 else v(SX, 16))
        if t + 2 < 8: qcv(t + 2)
    if TL.get("tlq"): tl_mark(A, 13)
    Lh = A.newlabel("L_qa_hv")
    I("s_cmp_eq_u32 %s, 1" % s(sHV))
    I("s_cbranch_scc1 %s" % Lh, noflush=True)
    A.flush_hazards()
    spin_flag(A, sFM, 4)
    mloads()
    A.label(Lh)
    I("s_waitcnt vmcnt(0)")
    k = 0
    for t in range(8):
        mf32(A, SM, a(MKA + 4 * t, 4), v(QF + 4 * t, 4), "0" if t == 0 else v(SM, 16))
        if t >= 2:
            for _ in range(3):
                if k < 16: I("v_cndmask_b32_e64 %s, %s, %s, %s" % (v(SX + k), v(NEG), v(SX + k), s(MSK[k], 2))); k += 1
    assert k == 16
    if TL.get("tlq"): tl_mark(A, 13)
    M_ = 48
    max_tree(A, M_, list(range(SX, SX + 16)) + list(range(SM, SM + 4)))
    xhalf(A, "v_max_f32", M_, 52)
    I("v_mul_f32 %s, %s, %s" % (v(M_), s(sSC), v(M_)))
    for r in list(range(SX, SX + 16)) + list(range(SM, SM + 4)):
        I("v_fma_f32 %s, %s, %s, -%s" % (v(r), v(r), s(sSC), v(M_)))
        I("v_exp_f32 %s, %s" % (v(r), v(r)))
    P0, PM = 16, 24
    for jj in range(2):
        for m in range(4): I("v_cvt_pk_bf16_f32 %s, %s, %s" % (v(P0 + 4 * jj + m), v(SX + 8 * jj + 2 * m), v(SX + 8 * jj + 2 * m + 1)))
    for m in range(2): I("v_cvt_pk_bf16_f32 %s, %s, %s" % (v(PM + m), v(SM + 2 * m), v(SM + 2 * m + 1)))
    OAc = 96
    regs = list(range(SX, SX + 16)) + list(range(SM, SM + 4))
    fl = []
    for c in range(4): fl.append((0, lambda c=c: I("v_add_f32 %s, %s, %s" % (v(28 + c), v(regs[c::4][0]), v(regs[c::4][1])))))
    for k in range(2, 5):
        for c in range(4): fl.append((0, lambda c=c, k=k: I("v_add_f32 %s, %s, %s" % (v(28 + c), v(28 + c), v(regs[c::4][k])))))
    fl.append((0, lambda: I("v_add_f32 v28, v28, v29"))); fl.append((0, lambda: I("v_add_f32 v30, v30, v31"))); fl.append((0, lambda: I("v_add_f32 v28, v28, v30")))
    fl.append((0, lambda: xhalf(A, "v_add_f32", 28, 29)))
    fl.append((0, lambda: (I("v_rcp_f32 v28, v28"), I("v_mov_b32 v29, v28"))))
    units = [((2 * tau + jj) * 1024, [(OAc + 16 * tau + 8 * jj + i, None) for i in range(8)]) for tau in range(4) for jj in range(2)]
    for tau in range(4):
        for jj in range(2):
            for i in range(8 * jj, 8 * jj + 8, 2):
                fl.append((3 * tau + 3, lambda tau=tau, i=i: I("v_pk_mul_f32 %s, %s, v[28:29]" % (v(OAc + 16 * tau + i, 2), v(OAc + 16 * tau + i, 2)))))
            fl.append((3 * tau + 3, lambda tau=tau, jj=jj: store_units(A, units[2 * tau + jj:2 * tau + jj + 1], sO, L16, tmp=32 + 8 * (tau & 1) + 4 * jj)))
    mi = 0
    for tau in range(4):
        for j3 in range(3):
            if j3 == 0: mf32(A, OAc + 16 * tau, a(VA + 4 * (2 * tau), 4), v(P0, 4), "0")
            elif j3 == 1: mf32(A, OAc + 16 * tau, a(VA + 4 * (2 * tau + 1), 4), v(P0 + 4, 4), v(OAc + 16 * tau, 16))
            else: mf8(A, OAc + 16 * tau, a(MVA + 2 * tau, 2), v(PM, 2), v(OAc + 16 * tau, 16))
            n = 3 if j3 == 2 else 6
            while n > 0 and fl and fl[0][0] <= mi - 0 and not (fl[0][0] and fl[0][0] == mi):
                fl.pop(0)[1](); n -= 1
            mi += 1
    while fl: fl.pop(0)[1]()
    I("s_mov_b32 %s, %s" % (s(sPS), s(sFS)))
    for dst, (c0, cl, cs, e) in ex: I("s_add_u32 %s, %s, 0x%x" % (s(dst), s(dst), 2 * cs))
    task_next(A, fw, fs, xb, ob, "L_qa_top")

def role_aa(A, naa):
    I = A.I
    worker_setup(A)
    causal_masks(A)
    NW = 2 * naa
    NEG, VA0, U1, U2, XOF, TOK16 = 5, 6, 7, 8, 9, 10
    I("v_mov_b32 %s, 0x%x" % (v(NEG), NEGINF))
    I("v_and_b32 v11, 31, %s" % v(LANE))
    I("v_lshrrev_b32 v12, 5, %s" % v(LANE))
    I("v_lshlrev_b32 %s, 4, v11" % v(TOK16))
    I("s_mov_b32 s3, 0x%x" % OOB)
    I("v_mul_lo_u32 v13, v12, s3")
    I("v_add_u32 %s, v13, %s" % (v(XOF), v(TOK16)))
    I("v_and_b32 v13, 3, v11"); I("v_lshlrev_b32 v13, 11, v13")
    I("v_lshrrev_b32 v14, 2, v11"); I("v_lshl_add_u32 v14, v12, 5, v14")
    I("v_lshl_add_u32 v13, v14, 4, v13")
    I("v_add_u32 v13, 65536, v13")
    I("v_subrev_u32 v14, 16, v11"); I("v_lshlrev_b32 v14, 11, v14")
    I("v_lshl_add_u32 v14, v12, 9, v14")
    I("v_add_u32 v14, %d, v14" % (98304 + 8192))
    I("v_add_u32 v15, %d, %s" % (98304 + 8192 + 4096, v(L16)))
    I("v_cmp_gt_u32 vcc, 16, v11")
    I("v_cndmask_b32 %s, 0, 1, vcc" % v(U1)) if False else None
    I("v_cndmask_b32_e64 %s, 0, 1, vcc" % v(U1))
    I("v_cmp_gt_u32_e64 s[90:91], 18, v11")
    I("v_cndmask_b32_e64 v15, v15, v14, s[90:91]")
    I("v_cndmask_b32_e64 %s, v15, v13, vcc" % v(VA0))
    I("v_cndmask_b32_e64 %s, 0, 1, s[90:91]" % v(U2))
    I("v_sub_u32 %s, %s, %s" % (v(U2), v(U2), v(U1)))
    KA, KX, VV = 0, 36, 64
    I("v_mov_b32 v21, 0")
    for k in range(9): I("v_accvgpr_write_b32 %s, 0" % a(KX + 2 * k + 1))
    sTK, sHead, sFQ = 62, 63, 80
    SB = 81
    I("s_lshl_b32 %s, s60, 2" % s(sTK))
    I("s_add_u32 %s, %s, %s" % (s(sTK), s(sTK), s(S_WAVE)))
    I("s_and_b32 %s, %s, 1" % (s(sLy), s(sTK)))
    I("s_lshr_b32 %s, %s, 1" % (s(sTK), s(sTK)))
    start_sync(A)
    A.label("L_aa_top")
    I("s_lshr_b32 %s, %s, 5" % (s(sSeg), s(sTK)))
    I("s_and_b32 %s, %s, 31" % (s(sHead), s(sTK)))
    I("s_lshl_b32 %s, %s, 6" % (s(sT), s(sLy)))
    I("s_add_u32 %s, %s, %s" % (s(sT), s(sT), s(sSeg)))
    I("s_lshl_b32 %s, %s, 6" % (s(sFQ), s(sT)))
    I("s_add_u32 %s, %s, %d" % (s(sFS), s(sFQ), F_OA * FSTR))
    I("s_add_u32 %s, %s, %d" % (s(sFQ), s(sFQ), F_QKVA * FSTR))
    I("s_lshl_b32 %s, %s, 6" % (s(sT2), s(sLy)))
    for k in range(9):
        I("s_sub_i32 s3, %s, %d" % (s(sSeg), 8 - k))
        I("s_max_i32 s3, s3, 0")
        I("s_add_u32 s3, s3, %s" % s(sT2))
        I("s_lshl_b32 s3, s3, 17")
        I("s_add_u32 %s, s3, 0x%x" % (s(SB + k), W_QKVA))
    I("s_mul_i32 %s, %s, %d" % (s(sO), s(sT), SEGB))
    I("s_add_u32 %s, %s, 0x%x" % (s(sO), s(sO), W_OA))
    I("s_lshl_b32 s91, %s, 10" % s(sHead))
    I("v_add_u32 v22, s91, %s" % v(L16))
    I("v_add_u32 v23, 32768, v22")
    I("s_lshr_b32 s92, %s, 3" % s(sHead)); I("s_lshl_b32 s93, s92, 10")
    I("s_bfe_u32 s94, %s, 0x10002" % s(sHead)); I("s_lshl_b32 s94, s94, 9"); I("s_add_u32 s93, s93, s94")
    I("s_and_b32 s94, %s, 3" % s(sHead)); I("s_lshl_b32 s94, s94, 2"); I("s_add_u32 s93, s93, s94")
    I("s_add_u32 s94, s93, 98304")
    I("v_add_u32 v24, s94, %s" % v(XOF))
    I("v_add_u32 v25, 4096, v24")
    I("s_add_u32 s94, s93, 32768")
    I("v_add_u32 v27, s94, %s" % v(XOF))
    I("s_lshl_b32 s92, s92, 13"); I("s_and_b32 s94, %s, 7" % s(sHead)); I("s_lshl_b32 s94, s94, 6"); I("s_add_u32 s92, s92, s94")
    I("s_lshl_b32 s94, %s, 4" % s(sHead))
    I("v_mad_u32_u24 v26, %s, s92, %s" % (v(U1), v(VA0)))
    I("v_mad_u32_u24 v26, %s, s94, v26" % v(U2))
    I("s_cmp_eq_u32 %s, 0" % s(sSeg))
    I("s_cselect_b32 s3, 0, %d" % FSTR)
    I("s_sub_u32 %s, %s, s3" % (s(sFQ), s(sFQ)))
    I("v_lshrrev_b32 v14, 5, %s" % v(LANE))
    I("v_mul_u32_u24 v14, s3, v14")
    spin_flag_sig(A, sFQ, 15, sPS, voff=14)
    if TL.get("tl2"): tl_mark(A, 13)
    qt = I(("buffer_load_dwordx4 v[16:19], v22, s[4:7], %s offen" + LD) % s(SB + 8))
    qt = I(("buffer_load_dword v20, v24, s[4:7], %s offen" + LD) % s(SB + 8))
    kt = {}
    for k in range(8, -1, -1):
        I(("buffer_load_dwordx4 %s, v23, s[4:7], %s offen" + LD) % (a(KA + 4 * k, 4), s(SB + k)))
        kt[k] = I(("buffer_load_dword %s, v25, s[4:7], %s offen" + LD) % (a(KX + 2 * k), s(SB + k)))
    vt = {}
    for k in range(8, -1, -1):
        I(("buffer_load_dwordx4 %s, v26, s[4:7], %s offen" + LD) % (a(VV + 8 * k, 4), s(SB + k)))
        vt[k] = I(("buffer_load_dwordx4 %s, v26, s[4:7], %s offen offset:1024" + LD) % (a(VV + 8 * k + 4, 4), s(SB + k)))
    S0 = 64
    tqa = lambda: tl_mark(A, 13) if TL.get("tlq") else None
    tqa()
    for k in range(8, -1, -1):
        A.wait_vm(kt[k])
        mf32(A, S0 + 16 * k, a(KA + 4 * k, 4), v(16, 4), "0")
        mf8(A, S0 + 16 * k, a(KX + 2 * k, 2), v(20, 2), v(S0 + 16 * k, 16))
        if k == 6:
            for i in range(16): I("v_cndmask_b32_e64 %s, %s, %s, %s" % (v(S0 + 128 + i), v(NEG), v(S0 + 128 + i), s(MSK[i], 2)))
    for i in range(16): I("v_cndmask_b32_e64 %s, %s, %s, %s" % (v(S0 + i), v(S0 + i), v(NEG), s(MSK[i], 2)))
    Lfix = A.newlabel("L_aa_fix"); Lback = A.newlabel("L_aa_back")
    I("s_cmp_lt_u32 %s, 8" % s(sSeg))
    I("s_cbranch_scc1 %s" % Lfix)
    A.label(Lback)
    tqa()
    M_ = 28
    max_tree(A, M_, range(S0, S0 + 144))
    xhalf(A, "v_max_f32", M_, 32)
    I("v_sub_f32 v32, 0, %s" % v(M_))
    I("v_mov_b32 v33, v32")
    tqa()
    OA_ = 40
    first = True
    for k in range(8, -1, -1):
        b = S0 + 16 * k
        for i in range(0, 16, 2): I("v_pk_add_f32 %s, %s, v[32:33]" % (v(b + i, 2), v(b + i, 2)))
        for i in range(16): I("v_exp_f32 %s, %s" % (v(b + i), v(b + i)))
        for jj in range(2):
            for m in range(4): I("v_cvt_pk_bf16_f32 %s, %s, %s" % (v(b + 8 * jj + m), v(b + 8 * jj + 2 * m), v(b + 8 * jj + 2 * m + 1)))
        A.wait_vm(vt[k])
        for jj in range(2):
            mf32(A, OA_, a(VV + 8 * k + 4 * jj, 4), v(b + 8 * jj, 4), "0" if first else v(OA_, 16))
            first = False
    I("v_rcp_f32 v34, %s" % v(OA_ + 10))
    for i in range(10): I("v_mul_f32 %s, %s, v34" % (v(OA_ + i), v(OA_ + i)))
    for m in range(4): I("v_cvt_pk_bf16_f32 %s, %s, %s" % (v(36 + m), v(OA_ + 2 * m), v(OA_ + 2 * m + 1)))
    I("v_cvt_pk_bf16_f32 v35, %s, %s" % (v(OA_ + 8), v(OA_ + 9)))
    I("buffer_store_dwordx4 v[36:39], v22, s[4:7], %s offen sc1" % s(sO))
    I("buffer_store_dword v35, v27, s[4:7], %s offen sc1" % s(sO))
    I("s_mov_b32 %s, %s" % (s(sPS), s(sFS)))
    tl_mark(A)
    I("s_add_u32 %s, %s, %d" % (s(sTK), s(sTK), NW))
    I("s_cmp_lt_u32 %s, 2048" % s(sTK))
    I("s_cbranch_scc1 L_aa_top")
    final_signal(A)
    A.label(Lfix)
    for k in range(8):
        Ls = A.newlabel("L_aa_fs")
        I("s_add_u32 s3, %s, %d" % (s(sSeg), k))
        I("s_cmp_ge_u32 s3, 8")
        I("s_cbranch_scc1 %s" % Ls)
        for i in range(16): I("v_mov_b32 %s, %s" % (v(S0 + 16 * k + i), v(NEG)))
        A.label(Ls)
    I("s_branch %s" % Lback)
```

```python
from g_work import *

def role_fin(A):
    I = A.I
    worker_setup(A)
    VU, VR = 5, 6
    def fin_map(lo, NS):
        I("s_sub_u32 s3, s60, %d" % lo)
        I("s_mul_i32 %s, %s, %d" % (s(sSeg), s(S_WAVE), NS))
        I("s_add_u32 s3, s3, %s" % s(sSeg))
        if os.environ.get("FINOLD"):
            I("s_sub_u32 %s, s60, %d" % (s(sSeg), lo)); I("s_mov_b32 s3, %s" % s(S_WAVE))
        else:
            I("s_lshr_b32 %s, s3, 2" % s(sSeg))
            I("s_and_b32 s3, s3, 3")
        I("s_lshl_b32 s3, s3, 3")
        I("v_and_b32 v8, 7, %s" % v(LANE))
        I("v_add_u32 v8, s3, v8")
        I("v_lshrrev_b32 v9, 3, %s" % v(LANE))
        I("v_lshrrev_b32 v10, 1, v9"); I("v_lshlrev_b32 v10, 10, v10")
        I("v_and_b32 v11, 1, v9"); I("v_lshl_add_u32 v10, v11, 9, v10")
        I("v_lshl_add_u32 %s, v8, 4, v10" % v(VU))
        I("v_mul_u32_u24 v10, 1152, v8")
        I("v_lshl_add_u32 %s, v9, 4, v10" % v(VR))
    I("s_mov_b32 s64, 0x00003f80"); I("s_mov_b32 s65, 0x3f800000"); I("s_mov_b32 s66, 0x3f803f80")
    I("s_mov_b32 s67, 0xffff0000")
    I("s_mov_b32 s68, 0x%x" % fb(1.0 / 576)); I("s_mov_b32 s69, 0x%x" % fb(1e-5))
    load_srd(A, S_W1, 0, 2048 * 1152)
    load_srd(A, S_W2, 80, 2048 * 1152)
    I("s_mov_b32 %s, 0x%x" % (s(sPS), OOB))
    I("s_cmp_lt_u32 s60, 2")
    I("s_cbranch_scc1 L_fin_sync")
    fin_map(2, 8)
    fin_stage(A, 0, VU, VR, 8)
    I("s_branch L_fin_go")
    A.label("L_fin_sync")
    start_sync(A)
    A.label("L_fin_go")
    for st, lo, n in ((1, 0, 2), (2, 2, 3), (3, 5, 2), (4, 7, 3)):
        Ln = "L_fin_n%d" % st
        if st < 4:
            I("s_cmp_ge_u32 s60, %d" % (lo + n))
            I("s_cbranch_scc1 %s" % Ln)
        fin_map(lo, n)
        fin_stage(A, st, VU, VR, n)
        final_signal(A)
        A.label(Ln)

def fin_stage(A, st, VU, VR, NS):
    I = A.I
    npart = [0, 1, 4, 1, 4][st]
    lay = [0, 0, 0, 1, 1][st]
    sRes, sPar, sXo, sNo = 70, 71, 72, 73
    if st <= 1: lin(A, sRes, 0, [(sSeg, SEGB)])
    else: lin(A, sRes, W_X + (st - 2) * X_K, [(sSeg, SEGB)])
    if npart == 1:
        lin(A, sPar, W_PA + lay * PA_L, [(sSeg, SEGB)]); pst = SEGB
        lin(A, sFW, (F_PA + lay * 64) * FSTR, [(sSeg, FSTR)]); tgt = 5
    elif npart == 4:
        lin(A, sPar, W_PB + lay * 64 * 4 * SEGB, [(sSeg, 4 * SEGB)]); pst = 4 * SEGB
        lin(A, sFW, (F_PB + lay * 64) * FSTR, [(sSeg, FSTR)]); tgt = 36
    if st in (1, 2, 3): lin(A, sXo, W_X + (st - 1) * X_K, [(sSeg, SEGB)])
    if st == 4: lin(A, sXo, 0, [(sSeg, SEGB)])
    if st < 4:
        lin(A, sNo, W_XN + st * XN_K, [(sSeg, SEGB)])
        lin(A, sFS, (F_XN + st * 64) * FSTR, [(sSeg, FSTR)])
    LT = "L_fin_top%d" % st
    if st == 0: I("s_mov_b32 s62, 0")
    A.label(LT)
    if npart:
        spin_flag_sig(A, sFW, tgt, sPS)
        if TL.get("tl2"): tl_mark(A, 13)
    else:
        Lns = A.newlabel("L_fin_ns")
        I("s_cmp_lg_u32 s62, 1")
        I("s_cbranch_scc1 %s" % Lns)
        I("s_mov_b32 s63, %s" % s(sPS))
        start_sync(A)
        I("s_mov_b32 %s, s63" % s(sPS))
        A.label(Lns)
        I("s_add_u32 s62, s62, 1")
        I("s_waitcnt vmcnt(0)")
        signal(A, sPS, 13)
    X = 16
    P = 64
    F = 64
    xt = []
    for m in range(9):
        if st <= 1: xt.append(I("buffer_load_dwordx4 %s, %s, s[8:11], %s offen offset:%d" % (v(X + 4 * m, 4), v(VR), s(sRes), m * 128)))
        else:
            I("s_add_u32 %s, %s, %d" % (s(sT), s(sRes), m * 4096))
            xt.append(I(("buffer_load_dwordx4 %s, %s, s[4:7], %s offen" + LD) % (v(X + 4 * m, 4), v(VU), s(sT))))
    pt = {}
    for p in range(npart):
        for m in range(9):
            I("s_add_u32 %s, %s, %d" % (s(sT), s(sPar), p * SEGB + m * 4096))
            pt[(p, m)] = I(("buffer_load_dwordx4 %s, %s, s[4:7], %s offen" + LD) % (v(P + 36 * p + 4 * m, 4), v(VU), s(sT)))
    tq = lambda: tl_mark(A, 13) if TL.get("tlq") and st == 2 else None
    tq()
    if npart == 4:
        T = 208
        for m in range(9):
            A.wait_vm(pt[(3, m)])
            for d in range(4):
                r0 = P + 4 * m + d
                I("v_lshlrev_b32 %s, 16, %s" % (v(T + 2 * d), v(r0)))
                I("v_and_b32 %s, s67, %s" % (v(T + 2 * d + 1), v(r0)))
            for p in range(1, 4):
                for d in range(4):
                    r = P + 36 * p + 4 * m + d
                    I("v_dot2_f32_bf16 %s, %s, s64, %s" % (v(T + 2 * d), v(r), v(T + 2 * d)))
                    I("v_dot2_f32_bf16 %s, %s, s65, %s" % (v(T + 2 * d + 1), v(r), v(T + 2 * d + 1)))
            for d in range(4): I("v_cvt_pk_bf16_f32 %s, %s, %s" % (v(P + 4 * m + d), v(T + 2 * d), v(T + 2 * d + 1)))
    tq()
    F = 128
    for m in range(9):
        A.wait_vm(xt[m] if npart != 1 else pt[(0, m)])
        for d in range(4):
            r = X + 4 * m + d
            I("v_lshlrev_b32 %s, 16, %s" % (v(F + 8 * m + 2 * d), v(r)))
            I("v_and_b32 %s, s67, %s" % (v(F + 8 * m + 2 * d + 1), v(r)))
        if npart:
            for d in range(4):
                r = P + 4 * m + d
                I("v_dot2_f32_bf16 %s, %s, s64, %s" % (v(F + 8 * m + 2 * d), v(r), v(F + 8 * m + 2 * d)))
                I("v_dot2_f32_bf16 %s, %s, s65, %s" % (v(F + 8 * m + 2 * d + 1), v(r), v(F + 8 * m + 2 * d + 1)))
            for d in range(4):
                I("v_cvt_pk_bf16_f32 %s, %s, %s" % (v(X + 4 * m + d), v(F + 8 * m + 2 * d), v(F + 8 * m + 2 * d + 1)))
            if st == 4:
                I("buffer_store_dwordx4 %s, %s, s[12:15], %s offen offset:%d" % (v(X + 4 * m, 4), v(VR), s(sXo), m * 128))
            else:
                I("s_add_u32 %s, %s, %d" % (s(sT), s(sXo), m * 4096))
                I("buffer_store_dwordx4 %s, %s, s[4:7], %s offen sc1" % (v(X + 4 * m, 4), v(VU), s(sT)))
                for d in range(4):
                    r = X + 4 * m + d
                    I("v_lshlrev_b32 %s, 16, %s" % (v(F + 8 * m + 2 * d), v(r)))
                    I("v_and_b32 %s, s67, %s" % (v(F + 8 * m + 2 * d + 1), v(r)))
    tq()
    if st < 4:
        def red(r, tmp):
            I("v_add_f32_dpp %s, %s, %s row_ror:8 row_mask:0xf bank_mask:0xf" % (v(r), v(r), v(r)))
            I("v_mov_b32 %s, %s" % (v(tmp), v(r)))
            I("v_permlane16_swap_b32 %s, %s" % (v(r), v(tmp)))
            I("v_add_f32 %s, %s, %s" % (v(r), v(r), v(tmp)))
            I("v_mov_b32 %s, %s" % (v(tmp), v(r)))
            I("v_permlane32_swap_b32 %s, %s" % (v(r), v(tmp)))
            I("v_add_f32 %s, %s, %s" % (v(r), v(r), v(tmp)))
        S_ = 208
        for c in range(4): I("v_pk_add_f32 %s, %s, %s" % (v(S_ + 2 * c, 2), v(F + 2 * c, 2), v(F + 8 + 2 * c, 2)))
        for m in range(2, 9):
            for c in range(4): I("v_pk_add_f32 %s, %s, %s" % (v(S_ + 2 * c, 2), v(S_ + 2 * c, 2), v(F + 8 * m + 2 * c, 2)))
        I("v_pk_add_f32 v[208:209], v[208:209], v[210:211]"); I("v_pk_add_f32 v[212:213], v[212:213], v[214:215]")
        I("v_pk_add_f32 v[208:209], v[208:209], v[212:213]")
        I("v_add_f32 v208, v208, v209")
        red(208, 209)
        I("v_mul_f32 v208, s68, v208")
        I("v_sub_f32 v216, 0, v208"); I("v_mov_b32 v217, v216")
        for i in range(36): I("v_pk_add_f32 %s, %s, v[216:217]" % (v(F + 2 * i, 2), v(F + 2 * i, 2)))
        for c in range(4): I("v_pk_mul_f32 %s, %s, %s" % (v(S_ + 2 * c, 2), v(F + 2 * c, 2), v(F + 2 * c, 2)))
        for m in range(1, 9):
            for c in range(4):
                I("v_pk_fma_f32 %s, %s, %s, %s" % (v(S_ + 2 * c, 2), v(F + 8 * m + 2 * c, 2), v(F + 8 * m + 2 * c, 2), v(S_ + 2 * c, 2)))
        I("v_pk_add_f32 v[208:209], v[208:209], v[210:211]"); I("v_pk_add_f32 v[212:213], v[212:213], v[214:215]")
        I("v_pk_add_f32 v[208:209], v[208:209], v[212:213]")
        I("v_add_f32 v208, v208, v209")
        red(208, 209)
        I("v_mov_b32 v209, s69")
        I("v_fma_f32 v208, v208, s68, v209")
        I("v_rsq_f32 v216, v208")
        I("v_mov_b32 v217, v216")
        for m in range(9):
            for c in range(4): I("v_pk_mul_f32 %s, %s, v[216:217]" % (v(F + 8 * m + 2 * c, 2), v(F + 8 * m + 2 * c, 2)))
            for d in range(4): I("v_cvt_pk_bf16_f32 %s, %s, %s" % (v(64 + 4 * m + d), v(F + 8 * m + 2 * d), v(F + 8 * m + 2 * d + 1)))
            I("s_add_u32 %s, %s, %d" % (s(sT), s(sNo), m * 4096))
            I("buffer_store_dwordx4 %s, %s, s[4:7], %s offen sc1" % (v(64 + 4 * m, 4), v(VU), s(sT)))
        I("s_mov_b32 %s, %s" % (s(sPS), s(sFS)))
    tl_mark(A, 12)
    I("s_add_u32 %s, %s, %d" % (s(sRes), s(sRes), NS * SEGB))
    if npart:
        I("s_add_u32 %s, %s, %d" % (s(sPar), s(sPar), NS * pst))
        I("s_add_u32 %s, %s, %d" % (s(sFW), s(sFW), NS * FSTR))
    if st >= 1: I("s_add_u32 %s, %s, %d" % (s(sXo), s(sXo), NS * SEGB))
    if st < 4:
        I("s_add_u32 %s, %s, %d" % (s(sNo), s(sNo), NS * SEGB))
        I("s_add_u32 %s, %s, %d" % (s(sFS), s(sFS), NS * FSTR))
    I("s_add_u32 %s, %s, %d" % (s(sSeg), s(sSeg), NS))
    I("s_cmp_lt_u32 %s, 64" % s(sSeg))
    I("s_cbranch_scc1 %s" % LT)
    if st == 0:
        I("s_waitcnt vmcnt(0)")
        signal(A, sPS, 13)
        I("s_mov_b32 %s, 0x%x" % (s(sPS), OOB))
```

```python
from g_common import *
import struct
fb = lambda x: struct.unpack("<I", struct.pack("<f", x))[0]
OOB = 0x7FFF0000
import os
LD = ' sc1' if os.environ.get('LDSC1') else ''
LANE, L16, LB1, LB2 = 1, 2, 3, 4
sLy, sSeg = 22, 23
sFW, sFS, sX, sO = 28, 29, 30, 31
sPLO, sPHI = 32, 33
sT, sT2, sT3 = 34, 35, 36
sXS = 40
sO2 = 37
sSC = 38
sPS = 39

def wait2(A, vtok=None, ltok=None):
    parts = []
    if vtok is not None: parts.append("vmcnt(%d)" % min(A.vm_issued - vtok[1], 63))
    if ltok is not None: parts.append("lgkmcnt(%d)" % min(A.lgkm_issued - ltok[1], 15))
    A.I("s_waitcnt " + " ".join(parts))

def lds_ref(off):
    if off < 61440: return L16, off
    if off < 122880: return LB1, off - 61440
    return LB2, off - 122880

def worker_setup(A):
    I = A.I
    I("v_and_b32 %s, 63, v0" % v(LANE))
    I("v_lshlrev_b32 %s, 4, %s" % (v(L16), v(LANE)))
    I("v_add_u32 %s, 61440, %s" % (v(LB1), v(L16)))
    I("v_add_u32 %s, 122880, %s" % (v(LB2), v(L16)))
    I("s_mov_b32 %s, 0x05040100" % s(sPLO))
    I("s_mov_b32 %s, 0x07060302" % s(sPHI))

def lin(A, dst, c0, terms):
    I = A.I
    I("s_mov_b32 %s, 0x%x" % (s(dst), c0 & 0xffffffff))
    for (r, m) in terms:
        if m == 0: continue
        I("s_mul_i32 s3, %s, 0x%x" % (s(r), m))
        I("s_add_u32 %s, %s, s3" % (s(dst), s(dst)))

def load_w(A, ld, nt, groups, width, iters, per, base_fn, deltas, t_fn):
    I = A.I
    RB = 16
    nreg = 8 * width * len(groups)
    assert RB + per * nreg + 4 * nt <= 250
    TB = RB + per * nreg
    I("s_mov_b32 s90, 0")
    L = A.newlabel("L_w")
    A.label(L)
    toks = []
    for u in range(per):
        t_fn(u)
        I("s_mov_b32 %s, %s" % (s(64 + u), s(sT)))
        base_fn()
        for i in range(8):
            I("s_add_u32 %s, %s, %d" % (s(sT3), s(sT2), deltas[i] * ld))
            for g, vo in enumerate(groups):
                r = RB + u * nreg + (g * 8 + i) * width
                op = "buffer_load_dwordx2" if width == 2 else "buffer_load_dword"
                tok = I("%s %s, %s, s[8:11], %s offen" % (op, v(r, width), v(vo), s(sT3)))
        toks.append(tok)
    for u in range(per):
        A.wait_vm(toks[u])
        I("s_mul_i32 s3, %s, %d" % (s(64 + u), nt * 1024))
        I("v_add_u32 v15, s3, %s" % v(L16))
        for tile in range(nt):
            for m in range(4):
                if width == 2:
                    lo = RB + u * nreg + (2 * m) * 2 + (tile >> 1); hi = lo + 2
                else:
                    lo = RB + u * nreg + (tile >> 1) * 8 + 2 * m; hi = lo + 1
                I("v_perm_b32 %s, %s, %s, %s" % (v(TB + 4 * tile + m), v(hi), v(lo), s(sPHI if tile & 1 else sPLO)))
            I("ds_write_b128 v15, %s offset:%d" % (v(TB + 4 * tile, 4), tile * 1024))
        I("s_waitcnt lgkmcnt(0)")
    I("s_add_u32 s90, s90, 1")
    I("s_cmp_lt_u32 s90, %d" % iters)
    I("s_cbranch_scc1 %s" % L)

ACC = 64; WB = 128
def gemm_core(A, nk, nt, swapped, xreg=lambda t: a(4 * t, 4), xtoks=None, wbuf=WB, acc=ACC, ldsbase=0, fill=None):
    I = A.I
    wt = {}
    def wread(t, tile):
        r, o = lds_ref(ldsbase + (t * nt + tile) * 1024)
        return I("ds_read_b128 %s, %s offset:%d" % (v(wbuf + ((t % 3) * nt + tile) * 4, 4), v(r), o))
    for t in range(2):
        for tile in range(nt): wt[(t, tile)] = wread(t, tile)
    for t in range(nk):
        wait2(A, xtoks[t] if xtoks else None, wt[(t, nt - 1)])
        if fill and t == NUP: assert xtoks[t] is not None
        for tile in range(nt):
            w = v(wbuf + ((t % 3) * nt + tile) * 4, 4)
            c = "0" if t == 0 else v(acc + 16 * tile, 16)
            x, y = (xreg(t), w) if swapped else (w, xreg(t))
            I("v_mfma_f32_32x32x16_bf16 %s, %s, %s, %s" % (v(acc + 16 * tile, 16), x, y, c))
            if t + 2 < nk: wt[(t + 2, tile)] = wread(t + 2, tile)
            if isinstance(xtoks, XL): xtoks.step(t, tile, nt)
            if fill: fill(t, tile, nt)
    if fill: assert not getattr(fill, "pend", None)

class XL:
    def __init__(s_, A, nk, sbase, extra=(), xreg=lambda t: a(4 * t, 4), nup=None):
        s_.A, s_.nk, s_.sbase, s_.xreg, s_.toks, s_.extra, s_.etoks = A, nk, sbase, xreg, {}, list(extra), []
        s_.n = 0
        if nup == "pre":
            s_.n = NUP
            for t in range(NUP): s_.toks[t] = None
        else:
            for _ in range(min(nk, NUP if nup is None else nup)): s_.one()
    def one(s_):
        A = s_.A; t = s_.n
        if t < s_.nk:
            if (t % 4 == 0 and t) or (t == NUP and t >= 4): A.I("s_add_u32 %s, %s, %d" % (s(sXT), s(s_.sbase), (t // 4) * 4096))
            sr = s_.sbase if t < 4 else sXT
            s_.toks[t] = A.I(("buffer_load_dwordx4 %s, %s, s[4:7], %s offen offset:%d" + LD) % (s_.xreg(t), v(L16), s(sr), (t % 4) * 1024))
            s_.n += 1
        elif s_.extra:
            s_.etoks.append(s_.extra.pop(0)())
    def __getitem__(s_, t): return s_.toks[t]
    def step(s_, t, tile, nt):
        per = XPER
        if tile < per or (nt < per and tile == nt - 1):
            for _ in range(1 if tile < nt - 1 or nt >= per else per - nt + 1): s_.one()
import os
NUP = int(os.environ.get("NUP", 8)); XPER = int(os.environ.get("XPER", 2)); sXT = 27

def load_x(A, nk, sbase, xreg=lambda t: a(4 * t, 4)):
    return XL(A, nk, sbase, xreg=xreg)

sNX = 85
def first_x(A, sbase, extra_off=0):
    I = A.I
    for t in range(NUP):
        if t % 4 == 0: I("s_add_u32 %s, %s, 0x%x" % (s(sXT), s(sbase), extra_off + t * 1024))
        I(("buffer_load_dwordx4 %s, %s, s[4:7], %s offen offset:%d" + LD) % (a(4 * t, 4), v(L16), s(sXT), (t % 4) * 1024))

def task_head(A, sflag, target, voff=None, vsig=13):
    I = A.I
    Lw = A.newlabel("L_warm")
    I("s_cmp_lg_u32 %s, 0" % s(sNX))
    I("s_cbranch_scc1 %s" % Lw)
    spin_flag_sig(A, sflag, target, sPS, voff=voff, vsig=vsig)
    I("s_mov_b32 %s, 0x%x" % (s(sPS), OOB))
    first_x(A, sX)
    I("s_waitcnt vmcnt(0)")
    A.label(Lw)
    if TL.get("tl2w"): tl_mark(A, vsig)

sPB = 86
def look_fill(A, sflag, fstride, target, xstride, TP, TC, vsig=13, more=None, poll=None, check=None):
    I = A.I
    pend = []
    def fill(t, tile, nt):
        if t == NUP and tile == 0: signal(A, sPS, vsig)
        if t > TC and pend: pend.pop(0)()
        if tile != nt - 1: return
        if t == TP:
            if poll: poll()
            else:
                I("s_add_u32 s3, %s, 0x%x" % (s(sflag), fstride))
                I("buffer_load_dword v14, off, s[4:7], s3 sc1")
        if t == TC:
            I("s_waitcnt vmcnt(0)")
            if check: check()
            else: I("v_cmp_le_u32 vcc, %d, v14" % target)
            I("s_nop 3")
            I("s_and_b32 %s, vcc_lo, 1" % s(sNX))
            if more: more(pend)
            I("s_cmp_lt_u32 %s, 62" % s(sSeg))
            I("s_cselect_b32 %s, %s, 0" % (s(sNX), s(sNX)))
            I("s_add_u32 %s, %s, 0x%x" % (s(sPB), s(sX), xstride))
            I("s_cmp_lg_u32 %s, 0" % s(sNX))
            I("s_cselect_b32 %s, %s, 0x%x" % (s(sPB), s(sPB), OOB))
            I("s_add_u32 %s, %s, 4096" % (s(sPB + 1), s(sPB)))
            for k in range(NUP):
                pend.append(lambda k=k: I(("buffer_load_dwordx4 %s, %s, s[4:7], %s offen offset:%d" + LD) % (a(4 * k, 4), v(L16), s(sPB + k // 4), (k % 4) * 1024)))
    fill.pend = pend
    return fill

def load_x_old(A, nk, sbase, xreg=lambda t: a(4 * t, 4)):
    I = A.I
    toks = []
    for t in range(nk):
        if t % 4 == 0:
            if t: I("s_add_u32 %s, %s, %d" % (s(sT), s(sbase), t * 1024))
        sr = sbase if t < 4 else sT
        toks.append(I(("buffer_load_dwordx4 %s, %s, s[4:7], %s offen offset:%d" + LD) % (xreg(t), v(L16), s(sr), (t % 4) * 1024)))
    return toks

def store_units(A, units, sbase, vaddr=L16, tmp=16):
    I = A.I
    cur = None
    k = 0
    for off, srcs in units:
        d = tmp + 4 * (k % 4); k += 1
        for m in range(4):
            (x0, c0), (x1, c1) = srcs[2 * m], srcs[2 * m + 1]
            if c0 is not None:
                I("v_mul_f32 %s, %s, %s" % (v(x0), s(c0), v(x0)))
                I("v_mul_f32 %s, %s, %s" % (v(x1), s(c1), v(x1)))
            I("v_cvt_pk_bf16_f32 %s, %s, %s" % (v(d + m), v(x0), v(x1)))
        blk = off // 4096
        if blk == 0: sr = sbase
        else:
            if cur != blk:
                I("s_add_u32 %s, %s, %d" % (s(sO2), s(sbase), blk * 4096)); cur = blk
            sr = sO2
        I("buffer_store_dwordx4 %s, %s, s[4:7], %s offen offset:%d sc1" % (v(d, 4), v(vaddr), s(sr), off % 4096))

def ep_unit8(nt, acc=ACC):
    return [((2 * tau + jj) * 1024, [(acc + 16 * tau + 8 * jj + i, None) for i in range(8)]) for tau in range(nt) for jj in range(2)]
def ep_pair(ngroups, scale0=None, acc=ACC):
    u = []
    for b in range(ngroups):
        sc = scale0 if b == 0 else None
        for j in range(4):
            srcs = []
            for r in range(4):
                srcs += [(acc + 16 * (2 * b) + 4 * j + r, sc), (acc + 16 * (2 * b + 1) + 4 * j + r, sc)]
            u.append(((4 * b + j) * 1024, srcs))
    return u
def ep_qm(scale=None, acc=ACC):
    u = []
    for j in range(4):
        for hh in range(2):
            srcs = []
            for r in range(4):
                srcs += [(acc + 16 * (2 * hh) + 4 * j + r, scale), (acc + 16 * (2 * hh + 1) + 4 * j + r, scale)]
            u.append((j * 2048 + hh * 512, srcs))
    return u

def task_init(A, fw, fs, xb, ob):
    I = A.I
    I("s_lshr_b32 %s, %s, 1" % (s(sLy), s(S_WAVE)))
    I("s_and_b32 %s, %s, 1" % (s(sSeg), s(S_WAVE)))
    for dst, (c0, cl, cs, ex) in ((sFW, fw), (sFS, fs), (sX, xb), (sO, ob)):
        lin(A, dst, c0, [(sLy, cl), (sSeg, cs)] + list(ex))

def task_next(A, fw, fs, xb, ob, LTOP):
    I = A.I
    tl_mark(A)
    for dst, (c0, cl, cs, ex) in ((sFW, fw), (sFS, fs), (sX, xb), (sO, ob)):
        I("s_add_u32 %s, %s, 0x%x" % (s(dst), s(dst), 2 * cs))
    I("s_add_u32 %s, %s, 2" % (s(sSeg), s(sSeg)))
    I("s_cmp_lt_u32 %s, 64" % s(sSeg))
    I("s_cbranch_scc1 %s" % LTOP)
    final_signal(A)

def final_signal(A):
    A.I("s_waitcnt vmcnt(0)")
    signal(A, sPS, 13)
    A.I("s_waitcnt vmcnt(0)")
    tl_end(A)
    A.I("s_branch L_END")

def start_sync(A):
    A.I("s_mov_b32 %s, 0x%x" % (s(sPS), OOB))
    A.I("s_mov_b32 %s, 0" % s(sNX))
    A.I("s_waitcnt vmcnt(0) lgkmcnt(0)")
    tl_mark(A)
    wait_all_arrived(A)
    tl_mark(A)

def g32_role(A, name, nk, nt, swapped, fw, ftarget, fs, xb, ob, units, vaddr=L16, extra_ep=None):
    I = A.I
    task_init(A, fw, fs, xb, ob)
    start_sync(A)
    LTOP = "L_%s_top" % name
    A.label(LTOP)
    g32_body(A, nk, nt, swapped, fw, ftarget, xb)
    I("s_waitcnt vmcnt(0)")
    store_units(A, units, sO, vaddr)
    if extra_ep: extra_ep()
    I("s_mov_b32 %s, %s" % (s(sPS), s(sFS)))
    task_next(A, fw, fs, xb, ob, LTOP)

def g32_body(A, nk, nt, swapped, fw, ftarget, xb, vsig=13):
    task_head(A, sFW, ftarget, vsig=vsig)
    toks = XL(A, nk, sX, nup="pre")
    TP, TC = {(36, 4): (16, 25), (36, 2): (16, 30), (64, 2): (36, 54)}[(nk, nt)]
    gemm_core(A, nk, nt, swapped, xtoks=toks, fill=look_fill(A, sFW, 2 * fw[2], ftarget, 2 * xb[2], TP, TC, vsig))

def nat_t(A, per):
    def f(u):
        A.I("s_mul_i32 %s, s90, %d" % (s(sT), 4 * per))
        A.I("s_add_u32 %s, %s, %s" % (s(sT), s(sT), s(S_WAVE)))
        if u: A.I("s_add_u32 %s, %s, %d" % (s(sT), s(sT), 4 * u))
    return f

def col_regs(A):
    A.I("v_and_b32 v8, 31, %s" % v(LANE))
    A.I("v_lshrrev_b32 v9, 5, %s" % v(LANE))

def vmul_const(A, dst, src, c):
    A.I("s_mov_b32 s3, %d" % c)
    A.I("v_mul_lo_u32 %s, %s, s3" % (v(dst), v(src)))

def w_natural(A, ld, nt, groups, width):
    load_w(A, ld, nt, groups, width, 1, 9, lambda: A.I("s_mul_i32 %s, %s, %d" % (s(sT2), s(sT), 16 * ld)), list(range(8)), nat_t(A, 9))

def bw_load(A, karg):
    I = A.I
    load_srd(A, S_W1, karg, 576 * 8192)
    col_regs(A)
    I("v_lshlrev_b32 v10, 16, v9")
    I("v_lshl_add_u32 v10, v8, 3, v10")
    I("s_lshl_b32 s3, %s, 8" % s(S_IDX))
    I("v_add_u32 v10, s3, v10")
    w_natural(A, 8192, 4, [10], 2)

def role_bkv(A, isv):
    name = "bv" if isv else "bk"
    worker_setup(A)
    bw_load(A, 56 if isv else 48)
    fw = ((F_XN + 64) * FSTR, 128 * FSTR, FSTR, [])
    fs = (F_KV * FSTR, 64 * 32 * FSTR, 32 * FSTR, [(S_IDX, FSTR)])
    xb = (W_XN + XN_K, 2 * XN_K, SEGB, [])
    ob = (W_KV + (8192 if isv else 0), 64 * 32 * KV_H, 32 * KV_H, [(S_IDX, KV_H)])
    g32_role(A, name, 36, 4, isv, fw, 4, fs, xb, ob, ep_unit8(4))

QSC = 18 ** -0.5 * 1.4426950408889634
def role_aq(A):
    I = A.I
    worker_setup(A)
    load_srd(A, S_W1, 8, 576 * 3456)
    col_regs(A)
    fw = (F_XN * FSTR, 128 * FSTR, FSTR, [])
    fs = (F_QKVA * FSTR, 64 * FSTR, FSTR, [])
    xb = (W_XN, 2 * XN_K, SEGB, [])
    I("s_mov_b32 %s, 0x%x" % (s(sSC), fb(QSC)))
    vmul_const(A, 11, 9, 8 * 3456)
    I("s_cmp_ge_u32 %s, 12" % s(S_IDX))
    I("s_cbranch_scc1 L_aq_x")
    I("s_lshr_b32 s91, %s, 2" % s(S_IDX))
    I("s_and_b32 s92, %s, 3" % s(S_IDX))
    I("v_lshrrev_b32 v10, 2, v8")
    I("v_mul_u32_u24 v10, 36, v10")
    I("v_and_b32 v12, 3, v8")
    I("v_lshl_add_u32 v10, v12, 3, v10")
    I("v_add_u32 v10, v10, v11")
    I("s_mul_i32 s3, s91, 1152"); I("s_mul_i32 s93, s92, 288"); I("s_add_u32 s3, s3, s93")
    I("v_add_u32 v10, s3, v10")
    I("s_mov_b32 s60, s91"); I("s_mov_b32 s61, s92")
    w_natural(A, 3456, 4, [10], 2)
    I("s_cmp_eq_u32 s60, 2")
    I("s_cbranch_scc1 L_aq_v")
    I("s_cmp_eq_u32 s60, 0")
    I("s_cselect_b32 %s, %s, 1.0" % (s(sSC), s(sSC)))
    I("v_lshlrev_b32 v12, 10, v9")
    I("v_lshl_add_u32 v12, v8, 4, v12")
    ob = (W_QKVA, 64 * QKVA_S, QKVA_S, [(60, 32768), (61, 8192)])
    g32_role(A, "aqm", 36, 4, False, fw, 4, fs, xb, ob, ep_qm(sSC), vaddr=12)
    A.label("L_aq_v")
    ob = (W_QKVA + 65536, 64 * QKVA_S, QKVA_S, [(61, 8192)])
    g32_role(A, "aqv", 36, 4, True, fw, 4, fs, xb, ob, ep_unit8(4))
    A.label("L_aq_x")
    I("v_mul_u32_u24 v10, 36, v8")
    I("v_add_u32 v10, v10, v11")
    I("v_add_u32 v10, 32, v10")
    I("s_cmp_eq_u32 %s, 14" % s(S_IDX))
    I("s_cbranch_scc1 L_aq_xv")
    I("s_sub_u32 s60, %s, 12" % s(S_IDX))
    I("s_mul_i32 s3, s60, 1152")
    I("v_add_u32 v10, s3, v10")
    w_natural(A, 3456, 2, [10], 1)
    I("s_cmp_eq_u32 s60, 0")
    I("s_cselect_b32 %s, %s, 1.0" % (s(sSC), s(sSC)))
    ob = (W_QKVA + 98304, 64 * QKVA_S, QKVA_S, [(60, 4096)])
    g32_role(A, "aqx", 36, 2, False, fw, 4, fs, xb, ob, ep_pair(1, sSC))
    A.label("L_aq_xv")
    I("v_add_u32 v10, 2304, v10")
    w_natural(A, 3456, 2, [10], 1)
    ob = (W_QKVA + 98304 + 8192, 64 * QKVA_S, QKVA_S, [])
    def ones():
        for r in range(4): I("v_mov_b32 %s, 0x3f803f80" % v(40 + r))
        I("s_add_u32 %s, %s, 4096" % (s(sO2), s(sO)))
        I("buffer_store_dwordx4 v[40:43], %s, s[4:7], %s offen sc1" % (v(L16), s(sO2)))
        I("buffer_store_dwordx4 v[40:43], %s, s[4:7], %s offen offset:1024 sc1" % (v(L16), s(sO2)))
    g32_role(A, "aqxv", 36, 2, True, fw, 4, fs, xb, ob, ep_unit8(2), extra_ep=ones)

def role_aw(A):
    I = A.I
    worker_setup(A)
    load_srd(A, S_W1, 16, 576 * 1152)
    col_regs(A)
    I("s_lshl_b32 s3, %s, 8" % s(S_IDX))
    I("v_lshlrev_b32 v12, 2, v8")
    I("v_add_u32 v12, s3, v12")
    I("s_cmp_eq_u32 %s, 4" % s(S_IDX))
    I("s_mov_b32 s61, 128")
    I("s_cselect_b32 s61, 0x%x, s61" % OOB)
    vmul_const(A, 13, 9, 4 * 1152)
    I("v_add_u32 v10, v12, v13")
    I("v_add_u32 v11, s61, v10")
    d0 = [(i & 3) + 8 * (i >> 2) for i in range(8)]
    load_w(A, 1152, 4, [10, 11], 1, 1, 8, lambda: I("s_mul_i32 %s, %s, %d" % (s(sT2), s(sT), 18 * 1152)), d0, nat_t(A, 8))
    vmul_const(A, 13, 9, 72 * 1152)
    I("v_add_u32 v10, v12, v13")
    I("v_add_u32 v11, s61, v10")
    d1 = [18 * (i >> 1) + 16 + (i & 1) for i in range(8)]
    def base1():
        I("s_mul_i32 %s, %s, %d" % (s(sT2), s(S_WAVE), 144 * 1152))
    load_w(A, 1152, 4, [10, 11], 1, 1, 1, base1, d1, lambda u: I("s_add_u32 %s, %s, 32" % (s(sT), s(S_WAVE))))
    fw = (F_OA * FSTR, 64 * FSTR, FSTR, [])
    fs = (F_PA * FSTR, 64 * FSTR, FSTR, [])
    xb = (W_OA, OA_L, SEGB, [])
    ob = (W_PA, PA_L, SEGB, [(S_IDX, 8192)])
    units = ep_pair(2)
    I("s_cmp_eq_u32 %s, 4" % s(S_IDX))
    I("s_cselect_b32 s61, 0x%x, 0" % OOB)
    I("v_add_u32 v12, s61, %s" % v(L16))
    task_init(A, fw, fs, xb, ob)
    start_sync(A)
    A.label("L_aw_top")
    g32_body(A, 36, 4, False, fw, 32, xb)
    I("s_waitcnt vmcnt(0)")
    store_units(A, units[:4], sO, L16)
    store_units(A, units[4:], sO, 12)
    I("s_mov_b32 %s, %s" % (s(sPS), s(sFS)))
    task_next(A, fw, fs, xb, ob, "L_aw_top")

def role_op(A):
    I = A.I
    worker_setup(A)
    load_srd(A, S_W1, 64, 4096 * 1152)
    col_regs(A)
    I("v_lshlrev_b32 v10, 2, v8")
    vmul_const(A, 13, 9, 16 * 1152)
    I("v_add_u32 v10, v10, v13")
    I("s_lshl_b32 s3, s61, 7")
    I("v_add_u32 v10, s3, v10")
    d = [32 * (i >> 2) + 4 * (i & 3) for i in range(8)]
    def base():
        I("s_lshr_b32 s91, %s, 3" % s(sT))
        I("s_lshl_b32 s92, s60, 3"); I("s_add_u32 s91, s91, s92"); I("s_lshl_b32 s91, s91, 7")
        I("s_and_b32 s92, %s, 1" % s(sT)); I("s_lshl_b32 s92, s92, 6"); I("s_add_u32 s91, s91, s92")
        I("s_bfe_u32 s92, %s, 0x20001" % s(sT)); I("s_add_u32 s91, s91, s92")
        I("s_mul_i32 %s, s91, 1152" % s(sT2))
    load_w(A, 1152, 2, [10], 1, 1, 16, base, d, nat_t(A, 16))
    fw = (F_OB * FSTR, 64 * 4 * FSTR, 4 * FSTR, [(60, FSTR)])
    fs = (F_PB * FSTR, 64 * FSTR, FSTR, [])
    xb = (W_OB, 64 * OB_S, OB_S, [(60, 8 * 8192)])
    ob = (W_PB, 64 * 4 * SEGB, 4 * SEGB, [(60, SEGB), (61, 4096)])
    g32_role(A, "op", 64, 2, False, fw, 8, fs, xb, ob, ep_pair(1))
```

```python
import os
from g_work import *

NEGINF = 0xff800000
def mf32(A, d, x, y, c): A.I("v_mfma_f32_32x32x16_bf16 %s, %s, %s, %s" % (v(d, 16), x, y, c))
def mf8(A, d, x, y, c): A.I("v_mfma_f32_32x32x8bf16_1k %s, %s, %s, %s" % (v(d, 16), x, y, c))

def xhalf(A, op, r, tmp):
    A.I("v_mov_b32 %s, %s" % (v(tmp), v(r)))
    A.I("v_permlane32_swap_b32 %s, %s" % (v(r), v(tmp)))
    A.I("%s %s, %s, %s" % (op, v(r), v(r), v(tmp)))

def max_tree(A, dst, regs):
    I = A.I
    regs = list(regs)
    if len(regs) >= 12:
        nch = 4
        parts = [regs[i::nch] for i in range(nch)]
        st = [None] * nch
        done = False
        idx = [0] * nch
        while not done:
            done = True
            for c in range(nch):
                p = parts[c]; i = idx[c]
                if i >= len(p): continue
                done = False
                if st[c] is None:
                    if len(p) - i >= 3:
                        I("v_max3_f32 %s, %s, %s, %s" % (v(dst + c), v(p[i]), v(p[i + 1]), v(p[i + 2]))); idx[c] += 3
                    else:
                        I("v_max_f32 %s, %s, %s" % (v(dst + c), v(p[i]), v(p[i + 1]))); idx[c] += 2
                    st[c] = 1
                elif len(p) - i >= 2:
                    I("v_max3_f32 %s, %s, %s, %s" % (v(dst + c), v(dst + c), v(p[i]), v(p[i + 1]))); idx[c] += 2
                else:
                    I("v_max_f32 %s, %s, %s" % (v(dst + c), v(dst + c), v(p[i]))); idx[c] += 1
        I("v_max3_f32 %s, %s, %s, %s" % (v(dst), v(dst), v(dst + 1), v(dst + 2)))
        I("v_max_f32 %s, %s, %s" % (v(dst), v(dst), v(dst + 3)))
    else:
        raise NotImplementedError

MSK = [40 + 2 * i for i in range(8)] + [64 + 2 * i for i in range(8)]
def causal_masks(A):
    I = A.I
    I("v_and_b32 v8, 31, %s" % v(LANE))
    I("v_lshrrev_b32 v9, 5, %s" % v(LANE))
    I("v_lshlrev_b32 v9, 2, v9")
    I("v_sub_u32 v8, v8, v9")
    for j in range(4):
        for r in range(4):
            I("v_cmp_le_i32_e64 %s, %d, v8" % (s(MSK[4 * j + r], 2), 8 * j + r))

BSC = 128 ** -0.5 * 1.4426950408889634
def role_qa(A):
    I = A.I
    worker_setup(A)
    bw_load(A, 40)
    causal_masks(A)
    NEG = 5; MKO = 6; MVO = 7
    I("v_mov_b32 %s, 0x%x" % (v(NEG), NEGINF))
    I("v_lshrrev_b32 v9, 5, %s" % v(LANE))
    I("v_and_b32 v8, 7, %s" % v(LANE))
    I("v_lshlrev_b32 v8, 4, v8")
    I("v_lshl_add_u32 %s, v9, 7, v8" % v(MKO))
    I("v_and_b32 v8, 31, %s" % v(LANE))
    I("v_lshlrev_b32 v8, 4, v8")
    I("v_lshl_add_u32 v8, v9, 3, v8")
    I("v_add_u32 %s, 2048, v8" % v(MVO))
    I("s_mov_b32 %s, 0x%x" % (s(sSC), fb(BSC)))
    fw = ((F_XN + 64) * FSTR, 128 * FSTR, FSTR, [])
    fs = (F_OB * FSTR, 64 * 4 * FSTR, 4 * FSTR, [(62, FSTR)])
    xb = (W_XN + XN_K, 2 * XN_K, SEGB, [])
    ob = (W_OB, 64 * OB_S, OB_S, [(S_IDX, 8192)])
    I("s_lshr_b32 s62, %s, 3" % s(S_IDX))
    task_init(A, fw, fs, xb, ob)
    sFK, sFM, sKV, sMK = 80, 81, 82, 83
    ex = ((sFK, (F_KV * FSTR, 64 * 32 * FSTR, 32 * FSTR, [(S_IDX, FSTR)])),
          (sFM, (F_MKV * FSTR, 64 * 32 * FSTR, 32 * FSTR, [(S_IDX, FSTR)])),
          (sKV, (W_KV, 64 * 32 * KV_H, 32 * KV_H, [(S_IDX, KV_H)])),
          (sMK, (W_MKV, 64 * 32 * MKV_H, 32 * MKV_H, [(S_IDX, MKV_H)])))
    for dst, (c0, cl, cs, e) in ex: lin(A, dst, c0, [(sLy, cl), (sSeg, cs)] + e)
    I("v_cmp_eq_u32 vcc, 1, %s" % v(LANE))
    I("v_mov_b32 v11, 2"); I("v_mov_b32 v12, %d" % (2 * 32 * FSTR))
    I("v_mov_b32 v8, 4"); I("v_mov_b32 v9, 0x%x" % ((F_MKV - F_KV) * FSTR))
    I("v_cndmask_b32 v11, v11, v8, vcc"); I("v_cndmask_b32 v12, v12, v9, vcc")
    QDEF = int(os.environ.get("QDEF", "2"))
    OA = [96, 112, 128, 144][:4 - QDEF] + [176, 192, 208, 224][:QDEF]
    sOP = 92
    def dfr_ops():
        ops = []
        for tau in range(4 - QDEF, 4):
            for jj in range(2):
                o = OA[tau] + 8 * jj; d = 32 + 8 * (tau & 1) + 4 * jj
                for i in range(0, 8, 2): ops.append(lambda o=o, i=i: (I("v_pk_mul_f32 %s, %s, v[28:29]" % (v(o + i, 2), v(o + i, 2))), None)[1])
                for m in range(4): ops.append(lambda o=o, d=d, m=m: (I("v_cvt_pk_bf16_f32 %s, %s, %s" % (v(d + m), v(o + 2 * m), v(o + 2 * m + 1))), None)[1])
                off = (2 * (tau - (4 - QDEF)) + jj) * 1024
                ops.append(lambda d=d, off=off: I("buffer_store_dwordx4 %s, %s, s[4:7], %s offen offset:%d sc1" % (v(d, 4), v(L16), s(sOP + off // 4096), off % 4096)))
        return ops
    def dfr_now():
        A.flush_hazards(); I("s_nop 7"); I("s_nop 7")
        for f in dfr_ops(): f()
        I("s_mov_b32 %s, 0x%x" % (s(sOP), OOB)); I("s_mov_b32 %s, 0x%x" % (s(sOP + 1), OOB))
    if QDEF: I("s_mov_b32 %s, 0x%x" % (s(sOP), OOB)); I("s_mov_b32 %s, 0x%x" % (s(sOP + 1), OOB))
    start_sync(A)
    A.label("L_qa_top")
    task_head(A, sFK, 2, pre=dfr_now if QDEF else None)
    KA, VA, MKA, MVA = 144, 176, 208, 240
    def kvl(t):
        def f():
            if t % 4 == 0 and t: I("s_add_u32 %s, %s, %d" % (s(sT), s(sKV), t * 1024))
            return I(("buffer_load_dwordx4 %s, %s, s[4:7], %s offen offset:%d" + LD) % (a(KA + 4 * t, 4), v(L16), s(sKV if t < 4 else sT), (t % 4) * 1024))
        return f
    toks = XL(A, 36, sX, extra=[kvl(t) for t in range(16)], nup="pre")
    def mloads():
        mt = []
        for t in range(8):
            mt.append(I(("buffer_load_dwordx4 %s, %s, s[4:7], %s offen offset:%d" + LD) % (a(MKA + 4 * t, 4), v(MKO), s(sMK), t * 256)))
        for tau in range(4):
            mvt = I(("buffer_load_dwordx2 %s, %s, s[4:7], %s offen offset:%d" + LD) % (a(MVA + 2 * tau, 2), v(MVO), s(sMK), tau * 512))
        return mt, mvt
    sHV = 84
    TP, TC = 22, 29
    def poll(): I("buffer_load_dword v14, v12, s[4:7], %s offen sc1" % s(sFK))
    def check(): I("v_cmp_le_u32 vcc, v11, v14")
    def more(pend):
        I("s_bfe_u32 %s, vcc_lo, 0x10001" % s(sHV))
        I("s_cmp_lg_u32 %s, 0" % s(sHV))
        I("s_cselect_b32 s88, %s, 0x%x" % (s(sMK), OOB))
        for t in range(8):
            pend.append(lambda t=t: I(("buffer_load_dwordx4 %s, %s, s[4:7], s88 offen offset:%d" + LD) % (a(MKA + 4 * t, 4), v(MKO), t * 256)))
        for tau in range(4):
            pend.append(lambda tau=tau: I(("buffer_load_dwordx2 %s, %s, s[4:7], s88 offen offset:%d" + LD) % (a(MVA + 2 * tau, 2), v(MVO), tau * 512)))
    gemm_core(A, 36, 4, False, xtoks=toks, fill=look_fill(A, None, None, None, 2 * SEGB, TP, TC, more=more, poll=poll, check=check, dfr=dfr_ops() if QDEF else None,
                                                          dper=eval(os.environ.get("DPER", "(3,3,4,4)")), dlag=int(os.environ.get("DLAG", "5"))))
    if TL.get("tlq"): tl_mark(A, 13)
    QF = 16
    def qcv(f):
        for m in range(4):
            x0 = ACC + 8 * f + 2 * m
            I("v_cvt_pk_bf16_f32 %s, %s, %s" % (v(QF + 4 * f + m), v(x0), v(x0 + 1)))
    SX, SM = 64, 80
    qcv(0); qcv(1)
    for t in range(8):
        mf32(A, SX, a(KA + 4 * t, 4), v(QF + 4 * t, 4), "0" if t == 0 else v(SX, 16))
        if t + 2 < 8: qcv(t + 2)
    if TL.get("tlq"): tl_mark(A, 13)
    Lh = A.newlabel("L_qa_hv")
    I("s_cmp_eq_u32 %s, 1" % s(sHV))
    I("s_cbranch_scc1 %s" % Lh, noflush=True)
    A.flush_hazards()
    spin_flag(A, sFM, 4)
    mloads()
    A.label(Lh)
    I("s_waitcnt vmcnt(0)")
    k = 0
    for t in range(8):
        mf32(A, SM, a(MKA + 4 * t, 4), v(QF + 4 * t, 4), "0" if t == 0 else v(SM, 16))
        if t >= 2:
            for _ in range(3):
                if k < 16: I("v_cndmask_b32_e64 %s, %s, %s, %s" % (v(SX + k), v(NEG), v(SX + k), s(MSK[k], 2))); k += 1
    assert k == 16
    if TL.get("tlq"): tl_mark(A, 13)
    M_ = 48
    max_tree(A, M_, list(range(SX, SX + 16)) + list(range(SM, SM + 4)))
    xhalf(A, "v_max_f32", M_, 52)
    I("v_mul_f32 %s, %s, %s" % (v(M_), s(sSC), v(M_)))
    for r in list(range(SX, SX + 16)) + list(range(SM, SM + 4)):
        I("v_fma_f32 %s, %s, %s, -%s" % (v(r), v(r), s(sSC), v(M_)))
        I("v_exp_f32 %s, %s" % (v(r), v(r)))
    P0, PM = 16, 24
    for jj in range(2):
        for m in range(4): I("v_cvt_pk_bf16_f32 %s, %s, %s" % (v(P0 + 4 * jj + m), v(SX + 8 * jj + 2 * m), v(SX + 8 * jj + 2 * m + 1)))
    for m in range(2): I("v_cvt_pk_bf16_f32 %s, %s, %s" % (v(PM + m), v(SM + 2 * m), v(SM + 2 * m + 1)))
    OAc = 96
    regs = list(range(SX, SX + 16)) + list(range(SM, SM + 4))
    fl = []
    for c in range(4): fl.append((0, lambda c=c: I("v_add_f32 %s, %s, %s" % (v(28 + c), v(regs[c::4][0]), v(regs[c::4][1])))))
    for k in range(2, 5):
        for c in range(4): fl.append((0, lambda c=c, k=k: I("v_add_f32 %s, %s, %s" % (v(28 + c), v(28 + c), v(regs[c::4][k])))))
    fl.append((0, lambda: I("v_add_f32 v28, v28, v29"))); fl.append((0, lambda: I("v_add_f32 v30, v30, v31"))); fl.append((0, lambda: I("v_add_f32 v28, v28, v30")))
    fl.append((0, lambda: xhalf(A, "v_add_f32", 28, 29)))
    fl.append((0, lambda: (I("v_rcp_f32 v28, v28"), I("v_mov_b32 v29, v28"))))
    units = [((2 * tau + jj) * 1024, [(OA[tau] + 8 * jj + i, None) for i in range(8)]) for tau in range(4) for jj in range(2)]
    for tau in range(4 - QDEF):
        for jj in range(2):
            for i in range(8 * jj, 8 * jj + 8, 2):
                fl.append((3 * tau + 3, lambda tau=tau, i=i: I("v_pk_mul_f32 %s, %s, v[28:29]" % (v(OA[tau] + i, 2), v(OA[tau] + i, 2)))))
            fl.append((3 * tau + 3, lambda tau=tau, jj=jj: store_units(A, units[2 * tau + jj:2 * tau + jj + 1], sO, L16, tmp=32 + 8 * (tau & 1) + 4 * jj)))
    mi = 0
    for tau in range(4):
        for j3 in range(3):
            if j3 == 0: mf32(A, OA[tau], a(VA + 4 * (2 * tau), 4), v(P0, 4), "0")
            elif j3 == 1: mf32(A, OA[tau], a(VA + 4 * (2 * tau + 1), 4), v(P0 + 4, 4), v(OA[tau], 16))
            else: mf8(A, OA[tau], a(MVA + 2 * tau, 2), v(PM, 2), v(OA[tau], 16))
            n = 3 if j3 == 2 else 6
            while n > 0 and fl and fl[0][0] <= mi - 0 and not (fl[0][0] and fl[0][0] == mi):
                fl.pop(0)[1](); n -= 1
            mi += 1
    while fl: fl.pop(0)[1]()
    I("s_mov_b32 %s, %s" % (s(sPS), s(sFS)))
    if QDEF:
        I("s_add_u32 %s, %s, %d" % (s(sOP), s(sO), (4 - QDEF) * 2048)); I("s_add_u32 %s, %s, 4096" % (s(sOP + 1), s(sOP)))
    for dst, (c0, cl, cs, e) in ex: I("s_add_u32 %s, %s, 0x%x" % (s(dst), s(dst), 2 * cs))
    task_next(A, fw, fs, xb, ob, "L_qa_top", pre=dfr_now if QDEF else None)

def role_aa(A, naa):
    I = A.I
    worker_setup(A)
    causal_masks(A)
    NW = 2 * naa
    NEG, VA0, U1, U2, XOF, TOK16 = 5, 6, 7, 8, 9, 10
    I("v_mov_b32 %s, 0x%x" % (v(NEG), NEGINF))
    I("v_and_b32 v11, 31, %s" % v(LANE))
    I("v_lshrrev_b32 v12, 5, %s" % v(LANE))
    I("v_lshlrev_b32 %s, 4, v11" % v(TOK16))
    I("s_mov_b32 s3, 0x%x" % OOB)
    I("v_mul_lo_u32 v13, v12, s3")
    I("v_add_u32 %s, v13, %s" % (v(XOF), v(TOK16)))
    I("v_and_b32 v13, 3, v11"); I("v_lshlrev_b32 v13, 11, v13")
    I("v_lshrrev_b32 v14, 2, v11"); I("v_lshl_add_u32 v14, v12, 5, v14")
    I("v_lshl_add_u32 v13, v14, 4, v13")
    I("v_add_u32 v13, 65536, v13")
    I("v_subrev_u32 v14, 16, v11"); I("v_lshlrev_b32 v14, 11, v14")
    I("v_lshl_add_u32 v14, v12, 9, v14")
    I("v_add_u32 v14, %d, v14" % (98304 + 8192))
    I("v_add_u32 v15, %d, %s" % (98304 + 8192 + 4096, v(L16)))
    I("v_cmp_gt_u32 vcc, 16, v11")
    I("v_cndmask_b32 %s, 0, 1, vcc" % v(U1)) if False else None
    I("v_cndmask_b32_e64 %s, 0, 1, vcc" % v(U1))
    I("v_cmp_gt_u32_e64 s[90:91], 18, v11")
    I("v_cndmask_b32_e64 v15, v15, v14, s[90:91]")
    I("v_cndmask_b32_e64 %s, v15, v13, vcc" % v(VA0))
    I("v_cndmask_b32_e64 %s, 0, 1, s[90:91]" % v(U2))
    I("v_sub_u32 %s, %s, %s" % (v(U2), v(U2), v(U1)))
    KA, KX, VV = 0, 36, 64
    I("v_mov_b32 v21, 0")
    for k in range(9): I("v_accvgpr_write_b32 %s, 0" % a(KX + 2 * k + 1))
    sTK, sHead, sFQ = 62, 63, 80
    SB = 81
    I("s_lshl_b32 %s, s60, 2" % s(sTK))
    I("s_add_u32 %s, %s, %s" % (s(sTK), s(sTK), s(S_WAVE)))
    I("s_and_b32 %s, %s, 1" % (s(sLy), s(sTK)))
    I("s_lshr_b32 %s, %s, 1" % (s(sTK), s(sTK)))
    start_sync(A)
    A.label("L_aa_top")
    I("s_lshr_b32 %s, %s, 5" % (s(sSeg), s(sTK)))
    I("s_and_b32 %s, %s, 31" % (s(sHead), s(sTK)))
    I("s_lshl_b32 %s, %s, 6" % (s(sT), s(sLy)))
    I("s_add_u32 %s, %s, %s" % (s(sT), s(sT), s(sSeg)))
    I("s_lshl_b32 %s, %s, 6" % (s(sFQ), s(sT)))
    I("s_add_u32 %s, %s, %d" % (s(sFS), s(sFQ), F_OA * FSTR))
    I("s_add_u32 %s, %s, %d" % (s(sFQ), s(sFQ), F_QKVA * FSTR))
    I("s_lshl_b32 %s, %s, 6" % (s(sT2), s(sLy)))
    for k in range(9):
        I("s_sub_i32 s3, %s, %d" % (s(sSeg), 8 - k))
        I("s_max_i32 s3, s3, 0")
        I("s_add_u32 s3, s3, %s" % s(sT2))
        I("s_lshl_b32 s3, s3, 17")
        I("s_add_u32 %s, s3, 0x%x" % (s(SB + k), W_QKVA))
    I("s_mul_i32 %s, %s, %d" % (s(sO), s(sT), SEGB))
    I("s_add_u32 %s, %s, 0x%x" % (s(sO), s(sO), W_OA))
    I("s_lshl_b32 s91, %s, 10" % s(sHead))
    I("v_add_u32 v22, s91, %s" % v(L16))
    I("v_add_u32 v23, 32768, v22")
    I("s_lshr_b32 s92, %s, 3" % s(sHead)); I("s_lshl_b32 s93, s92, 10")
    I("s_bfe_u32 s94, %s, 0x10002" % s(sHead)); I("s_lshl_b32 s94, s94, 9"); I("s_add_u32 s93, s93, s94")
    I("s_and_b32 s94, %s, 3" % s(sHead)); I("s_lshl_b32 s94, s94, 2"); I("s_add_u32 s93, s93, s94")
    I("s_add_u32 s94, s93, 98304")
    I("v_add_u32 v24, s94, %s" % v(XOF))
    I("v_add_u32 v25, 4096, v24")
    I("s_add_u32 s94, s93, 32768")
    I("v_add_u32 v27, s94, %s" % v(XOF))
    I("s_lshl_b32 s92, s92, 13"); I("s_and_b32 s94, %s, 7" % s(sHead)); I("s_lshl_b32 s94, s94, 6"); I("s_add_u32 s92, s92, s94")
    I("s_lshl_b32 s94, %s, 4" % s(sHead))
    I("v_mad_u32_u24 v26, %s, s92, %s" % (v(U1), v(VA0)))
    I("v_mad_u32_u24 v26, %s, s94, v26" % v(U2))
    I("s_cmp_eq_u32 %s, 0" % s(sSeg))
    I("s_cselect_b32 s3, 0, %d" % FSTR)
    I("s_sub_u32 %s, %s, s3" % (s(sFQ), s(sFQ)))
    I("v_lshrrev_b32 v14, 5, %s" % v(LANE))
    I("v_mul_u32_u24 v14, s3, v14")
    spin_flag_sig(A, sFQ, 15, sPS, voff=14)
    if TL.get("tl2"): tl_mark(A, 13)
    qt = I(("buffer_load_dwordx4 v[16:19], v22, s[4:7], %s offen" + LD) % s(SB + 8))
    qt = I(("buffer_load_dword v20, v24, s[4:7], %s offen" + LD) % s(SB + 8))
    kt = {}
    for k in range(8, -1, -1):
        I(("buffer_load_dwordx4 %s, v23, s[4:7], %s offen" + LD) % (a(KA + 4 * k, 4), s(SB + k)))
        kt[k] = I(("buffer_load_dword %s, v25, s[4:7], %s offen" + LD) % (a(KX + 2 * k), s(SB + k)))
    vt = {}
    for k in range(8, -1, -1):
        I(("buffer_load_dwordx4 %s, v26, s[4:7], %s offen" + LD) % (a(VV + 8 * k, 4), s(SB + k)))
        vt[k] = I(("buffer_load_dwordx4 %s, v26, s[4:7], %s offen offset:1024" + LD) % (a(VV + 8 * k + 4, 4), s(SB + k)))
    S0 = 64
    tqa = lambda: tl_mark(A, 13) if TL.get("tlq") else None
    tqa()
    for k in range(8, -1, -1):
        A.wait_vm(kt[k])
        mf32(A, S0 + 16 * k, a(KA + 4 * k, 4), v(16, 4), "0")
        mf8(A, S0 + 16 * k, a(KX + 2 * k, 2), v(20, 2), v(S0 + 16 * k, 16))
        if k == 6:
            for i in range(16): I("v_cndmask_b32_e64 %s, %s, %s, %s" % (v(S0 + 128 + i), v(NEG), v(S0 + 128 + i), s(MSK[i], 2)))
    for i in range(16): I("v_cndmask_b32_e64 %s, %s, %s, %s" % (v(S0 + i), v(S0 + i), v(NEG), s(MSK[i], 2)))
    Lfix = A.newlabel("L_aa_fix"); Lback = A.newlabel("L_aa_back")
    I("s_cmp_lt_u32 %s, 8" % s(sSeg))
    I("s_cbranch_scc1 %s" % Lfix)
    A.label(Lback)
    tqa()
    M_ = 28
    max_tree(A, M_, range(S0, S0 + 144))
    xhalf(A, "v_max_f32", M_, 32)
    I("v_sub_f32 v32, 0, %s" % v(M_))
    I("v_mov_b32 v33, v32")
    tqa()
    OA_ = 40
    first = True
    for k in range(8, -1, -1):
        b = S0 + 16 * k
        for i in range(0, 16, 2): I("v_pk_add_f32 %s, %s, v[32:33]" % (v(b + i, 2), v(b + i, 2)))
        for i in range(16): I("v_exp_f32 %s, %s" % (v(b + i), v(b + i)))
        for jj in range(2):
            for m in range(4): I("v_cvt_pk_bf16_f32 %s, %s, %s" % (v(b + 8 * jj + m), v(b + 8 * jj + 2 * m), v(b + 8 * jj + 2 * m + 1)))
        A.wait_vm(vt[k])
        for jj in range(2):
            mf32(A, OA_, a(VV + 8 * k + 4 * jj, 4), v(b + 8 * jj, 4), "0" if first else v(OA_, 16))
            first = False
    I("v_rcp_f32 v34, %s" % v(OA_ + 10))
    for i in range(10): I("v_mul_f32 %s, %s, v34" % (v(OA_ + i), v(OA_ + i)))
    for m in range(4): I("v_cvt_pk_bf16_f32 %s, %s, %s" % (v(36 + m), v(OA_ + 2 * m), v(OA_ + 2 * m + 1)))
    I("v_cvt_pk_bf16_f32 v35, %s, %s" % (v(OA_ + 8), v(OA_ + 9)))
    I("buffer_store_dwordx4 v[36:39], v22, s[4:7], %s offen sc1" % s(sO))
    I("buffer_store_dword v35, v27, s[4:7], %s offen sc1" % s(sO))
    I("s_mov_b32 %s, %s" % (s(sPS), s(sFS)))
    tl_mark(A)
    I("s_add_u32 %s, %s, %d" % (s(sTK), s(sTK), NW))
    I("s_cmp_lt_u32 %s, 2048" % s(sTK))
    I("s_cbranch_scc1 L_aa_top")
    final_signal(A)
    A.label(Lfix)
    for k in range(8):
        Ls = A.newlabel("L_aa_fs")
        I("s_add_u32 s3, %s, %d" % (s(sSeg), k))
        I("s_cmp_ge_u32 s3, 8")
        I("s_cbranch_scc1 %s" % Ls)
        for i in range(16): I("v_mov_b32 %s, %s" % (v(S0 + 16 * k + i), v(NEG)))
        A.label(Ls)
    I("s_branch %s" % Lback)
```

```python
from g_common import *
import struct
fb = lambda x: struct.unpack("<I", struct.pack("<f", x))[0]
OOB = 0x7FFF0000
import os
LD = ' sc1' if os.environ.get('LDSC1') else ''
LANE, L16, LB1, LB2 = 1, 2, 3, 4
sLy, sSeg = 22, 23
sFW, sFS, sX, sO = 28, 29, 30, 31
sPLO, sPHI = 32, 33
sT, sT2, sT3 = 34, 35, 36
sXS = 40
sO2 = 37
sSC = 38
sPS = 39

def wait2(A, vtok=None, ltok=None):
    parts = []
    if vtok is not None: parts.append("vmcnt(%d)" % min(A.vm_issued - vtok[1], 63))
    if ltok is not None: parts.append("lgkmcnt(%d)" % min(A.lgkm_issued - ltok[1], 15))
    A.I("s_waitcnt " + " ".join(parts))

def lds_ref(off):
    if off < 61440: return L16, off
    if off < 122880: return LB1, off - 61440
    return LB2, off - 122880

def worker_setup(A):
    I = A.I
    I("v_and_b32 %s, 63, v0" % v(LANE))
    I("v_lshlrev_b32 %s, 4, %s" % (v(L16), v(LANE)))
    I("v_add_u32 %s, 61440, %s" % (v(LB1), v(L16)))
    I("v_add_u32 %s, 122880, %s" % (v(LB2), v(L16)))
    I("s_mov_b32 %s, 0x05040100" % s(sPLO))
    I("s_mov_b32 %s, 0x07060302" % s(sPHI))

def lin(A, dst, c0, terms):
    I = A.I
    I("s_mov_b32 %s, 0x%x" % (s(dst), c0 & 0xffffffff))
    for (r, m) in terms:
        if m == 0: continue
        I("s_mul_i32 s3, %s, 0x%x" % (s(r), m))
        I("s_add_u32 %s, %s, s3" % (s(dst), s(dst)))

def load_w(A, ld, nt, groups, width, iters, per, base_fn, deltas, t_fn):
    I = A.I
    RB = 16
    nreg = 8 * width * len(groups)
    assert RB + per * nreg + 4 * nt <= 250
    TB = RB + per * nreg
    I("s_mov_b32 s90, 0")
    L = A.newlabel("L_w")
    A.label(L)
    toks = []
    for u in range(per):
        t_fn(u)
        I("s_mov_b32 %s, %s" % (s(64 + u), s(sT)))
        base_fn()
        for i in range(8):
            I("s_add_u32 %s, %s, %d" % (s(sT3), s(sT2), deltas[i] * ld))
            for g, vo in enumerate(groups):
                r = RB + u * nreg + (g * 8 + i) * width
                op = "buffer_load_dwordx2" if width == 2 else "buffer_load_dword"
                tok = I("%s %s, %s, s[8:11], %s offen" % (op, v(r, width), v(vo), s(sT3)))
        toks.append(tok)
    for u in range(per):
        A.wait_vm(toks[u])
        I("s_mul_i32 s3, %s, %d" % (s(64 + u), nt * 1024))
        I("v_add_u32 v15, s3, %s" % v(L16))
        for tile in range(nt):
            for m in range(4):
                if width == 2:
                    lo = RB + u * nreg + (2 * m) * 2 + (tile >> 1); hi = lo + 2
                else:
                    lo = RB + u * nreg + (tile >> 1) * 8 + 2 * m; hi = lo + 1
                I("v_perm_b32 %s, %s, %s, %s" % (v(TB + 4 * tile + m), v(hi), v(lo), s(sPHI if tile & 1 else sPLO)))
            I("ds_write_b128 v15, %s offset:%d" % (v(TB + 4 * tile, 4), tile * 1024))
        I("s_waitcnt lgkmcnt(0)")
    I("s_add_u32 s90, s90, 1")
    I("s_cmp_lt_u32 s90, %d" % iters)
    I("s_cbranch_scc1 %s" % L)

ACC = 64; WB = 128
def gemm_core(A, nk, nt, swapped, xreg=lambda t: a(4 * t, 4), xtoks=None, wbuf=WB, acc=ACC, ldsbase=0, fill=None):
    I = A.I
    wt = {}
    def wread(t, tile):
        r, o = lds_ref(ldsbase + (t * nt + tile) * 1024)
        return I("ds_read_b128 %s, %s offset:%d" % (v(wbuf + ((t % 3) * nt + tile) * 4, 4), v(r), o))
    for t in range(2):
        for tile in range(nt): wt[(t, tile)] = wread(t, tile)
    for t in range(nk):
        wait2(A, xtoks[t] if xtoks else None, wt[(t, nt - 1)])
        if fill and t == NUP: assert xtoks[t] is not None
        for tile in range(nt):
            w = v(wbuf + ((t % 3) * nt + tile) * 4, 4)
            c = "0" if t == 0 else v(acc + 16 * tile, 16)
            x, y = (xreg(t), w) if swapped else (w, xreg(t))
            I("v_mfma_f32_32x32x16_bf16 %s, %s, %s, %s" % (v(acc + 16 * tile, 16), x, y, c))
            if t + 2 < nk: wt[(t + 2, tile)] = wread(t + 2, tile)
            if isinstance(xtoks, XL): xtoks.step(t, tile, nt)
            if fill: fill(t, tile, nt)
    if fill: assert not getattr(fill, "pend", None)

class XL:
    def __init__(s_, A, nk, sbase, extra=(), xreg=lambda t: a(4 * t, 4), nup=None):
        s_.A, s_.nk, s_.sbase, s_.xreg, s_.toks, s_.extra, s_.etoks = A, nk, sbase, xreg, {}, list(extra), []
        s_.n = 0
        if nup == "pre":
            s_.n = NUP
            for t in range(NUP): s_.toks[t] = None
        else:
            for _ in range(min(nk, NUP if nup is None else nup)): s_.one()
    def one(s_):
        A = s_.A; t = s_.n
        if t < s_.nk:
            if (t % 4 == 0 and t) or (t == NUP and t >= 4): A.I("s_add_u32 %s, %s, %d" % (s(sXT), s(s_.sbase), (t // 4) * 4096))
            sr = s_.sbase if t < 4 else sXT
            s_.toks[t] = A.I(("buffer_load_dwordx4 %s, %s, s[4:7], %s offen offset:%d" + LD) % (s_.xreg(t), v(L16), s(sr), (t % 4) * 1024))
            s_.n += 1
        elif s_.extra:
            s_.etoks.append(s_.extra.pop(0)())
    def __getitem__(s_, t): return s_.toks[t]
    def step(s_, t, tile, nt):
        per = XPER
        if tile < per or (nt < per and tile == nt - 1):
            for _ in range(1 if tile < nt - 1 or nt >= per else per - nt + 1): s_.one()
import os
NUP = int(os.environ.get("NUP", 8)); XPER = int(os.environ.get("XPER", 2)); sXT = 27

def load_x(A, nk, sbase, xreg=lambda t: a(4 * t, 4)):
    return XL(A, nk, sbase, xreg=xreg)

sNX = 85
def first_x(A, sbase, extra_off=0):
    I = A.I
    for t in range(NUP):
        if t % 4 == 0: I("s_add_u32 %s, %s, 0x%x" % (s(sXT), s(sbase), extra_off + t * 1024))
        I(("buffer_load_dwordx4 %s, %s, s[4:7], %s offen offset:%d" + LD) % (a(4 * t, 4), v(L16), s(sXT), (t % 4) * 1024))

def task_head(A, sflag, target, voff=None, vsig=13, pre=None):
    I = A.I
    Lw = A.newlabel("L_warm")
    I("s_cmp_lg_u32 %s, 0" % s(sNX))
    I("s_cbranch_scc1 %s" % Lw)
    if pre: pre()
    spin_flag_sig(A, sflag, target, sPS, voff=voff, vsig=vsig)
    I("s_mov_b32 %s, 0x%x" % (s(sPS), OOB))
    first_x(A, sX)
    I("s_waitcnt vmcnt(0)")
    A.label(Lw)
    if TL.get("tl2w"): tl_mark(A, vsig)

sPB = 86
def look_fill(A, sflag, fstride, target, xstride, TP, TC, vsig=13, more=None, poll=None, check=None, nk=36, dfr=None, dper=(1, 1, 2, 2), dlag=6):
    I = A.I
    pend = []
    st = {"tok": None, "ts": None}
    def fill(t, tile, nt):
        if dfr is None:
            if t == NUP and tile == 0: signal(A, sPS, vsig)
        else:
            if t >= 1 and dfr:
                for _ in range(dper[tile]):
                    if dfr:
                        r = dfr.pop(0)()
                        if r is not None: st["tok"] = r
                if not dfr: st["ts"] = t + dlag
            if st["ts"] == t and tile == nt - 1:
                assert t < TP
                A.wait_vm(st["tok"]); signal(A, sPS, vsig)
        if t > TC and pend:
            rem = (nk - t) * nt - tile
            for _ in range(-(-len(pend) // rem)): pend.pop(0)()
        if tile != nt - 1: return
        if t == TP:
            if poll: poll()
            else:
                I("s_add_u32 s3, %s, 0x%x" % (s(sflag), fstride))
                I("buffer_load_dword v14, off, s[4:7], s3 sc1")
        if t == TC:
            I("s_waitcnt vmcnt(0)")
            if check: check()
            else: I("v_cmp_le_u32 vcc, %d, v14" % target)
            I("s_nop 3")
            I("s_and_b32 %s, vcc_lo, 1" % s(sNX))
            if more: more(pend)
            I("s_cmp_lt_u32 %s, 62" % s(sSeg))
            I("s_cselect_b32 %s, %s, 0" % (s(sNX), s(sNX)))
            I("s_add_u32 %s, %s, 0x%x" % (s(sPB), s(sX), xstride))
            I("s_cmp_lg_u32 %s, 0" % s(sNX))
            I("s_cselect_b32 %s, %s, 0x%x" % (s(sPB), s(sPB), OOB))
            PBS = [sPB, sPB + 1, 89, 79]
            for q in range(1, (NUP + 3) // 4): I("s_add_u32 %s, %s, %d" % (s(PBS[q]), s(sPB), 4096 * q))
            for k in range(NUP):
                pend.append(lambda k=k: I(("buffer_load_dwordx4 %s, %s, s[4:7], %s offen offset:%d" + LD) % (a(4 * k, 4), v(L16), s(PBS[k // 4]), (k % 4) * 1024)))
    fill.pend = pend
    return fill

def load_x_old(A, nk, sbase, xreg=lambda t: a(4 * t, 4)):
    I = A.I
    toks = []
    for t in range(nk):
        if t % 4 == 0:
            if t: I("s_add_u32 %s, %s, %d" % (s(sT), s(sbase), t * 1024))
        sr = sbase if t < 4 else sT
        toks.append(I(("buffer_load_dwordx4 %s, %s, s[4:7], %s offen offset:%d" + LD) % (xreg(t), v(L16), s(sr), (t % 4) * 1024)))
    return toks

def store_units(A, units, sbase, vaddr=L16, tmp=16):
    I = A.I
    cur = None
    k = 0
    for off, srcs in units:
        d = tmp + 4 * (k % 4); k += 1
        for m in range(4):
            (x0, c0), (x1, c1) = srcs[2 * m], srcs[2 * m + 1]
            if c0 is not None:
                I("v_mul_f32 %s, %s, %s" % (v(x0), s(c0), v(x0)))
                I("v_mul_f32 %s, %s, %s" % (v(x1), s(c1), v(x1)))
            I("v_cvt_pk_bf16_f32 %s, %s, %s" % (v(d + m), v(x0), v(x1)))
        blk = off // 4096
        if blk == 0: sr = sbase
        else:
            if cur != blk:
                I("s_add_u32 %s, %s, %d" % (s(sO2), s(sbase), blk * 4096)); cur = blk
            sr = sO2
        I("buffer_store_dwordx4 %s, %s, s[4:7], %s offen offset:%d sc1" % (v(d, 4), v(vaddr), s(sr), off % 4096))

def ep_unit8(nt, acc=ACC):
    return [((2 * tau + jj) * 1024, [(acc + 16 * tau + 8 * jj + i, None) for i in range(8)]) for tau in range(nt) for jj in range(2)]
def ep_pair(ngroups, scale0=None, acc=ACC):
    u = []
    for b in range(ngroups):
        sc = scale0 if b == 0 else None
        for j in range(4):
            srcs = []
            for r in range(4):
                srcs += [(acc + 16 * (2 * b) + 4 * j + r, sc), (acc + 16 * (2 * b + 1) + 4 * j + r, sc)]
            u.append(((4 * b + j) * 1024, srcs))
    return u
def ep_qm(scale=None, acc=ACC):
    u = []
    for j in range(4):
        for hh in range(2):
            srcs = []
            for r in range(4):
                srcs += [(acc + 16 * (2 * hh) + 4 * j + r, scale), (acc + 16 * (2 * hh + 1) + 4 * j + r, scale)]
            u.append((j * 2048 + hh * 512, srcs))
    return u

def task_init(A, fw, fs, xb, ob):
    I = A.I
    I("s_lshr_b32 %s, %s, 1" % (s(sLy), s(S_WAVE)))
    I("s_and_b32 %s, %s, 1" % (s(sSeg), s(S_WAVE)))
    for dst, (c0, cl, cs, ex) in ((sFW, fw), (sFS, fs), (sX, xb), (sO, ob)):
        lin(A, dst, c0, [(sLy, cl), (sSeg, cs)] + list(ex))

def task_next(A, fw, fs, xb, ob, LTOP, pre=None):
    I = A.I
    tl_mark(A)
    for dst, (c0, cl, cs, ex) in ((sFW, fw), (sFS, fs), (sX, xb), (sO, ob)):
        I("s_add_u32 %s, %s, 0x%x" % (s(dst), s(dst), 2 * cs))
    I("s_add_u32 %s, %s, 2" % (s(sSeg), s(sSeg)))
    I("s_cmp_lt_u32 %s, 64" % s(sSeg))
    I("s_cbranch_scc1 %s" % LTOP)
    if pre: pre()
    final_signal(A)

def final_signal(A):
    A.I("s_waitcnt vmcnt(0)")
    signal(A, sPS, 13)
    A.I("s_waitcnt vmcnt(0)")
    tl_end(A)
    A.I("s_branch L_END")

def start_sync(A):
    A.I("s_mov_b32 %s, 0x%x" % (s(sPS), OOB))
    A.I("s_mov_b32 %s, 0" % s(sNX))
    A.I("s_waitcnt vmcnt(0) lgkmcnt(0)")
    tl_mark(A)
    wait_all_arrived(A)
    tl_mark(A)

def g32_role(A, name, nk, nt, swapped, fw, ftarget, fs, xb, ob, units, vaddr=L16, extra_ep=None):
    I = A.I
    task_init(A, fw, fs, xb, ob)
    start_sync(A)
    LTOP = "L_%s_top" % name
    A.label(LTOP)
    g32_body(A, nk, nt, swapped, fw, ftarget, xb)
    I("s_waitcnt vmcnt(0)")
    store_units(A, units, sO, vaddr)
    if extra_ep: extra_ep()
    I("s_mov_b32 %s, %s" % (s(sPS), s(sFS)))
    task_next(A, fw, fs, xb, ob, LTOP)

def g32_body(A, nk, nt, swapped, fw, ftarget, xb, vsig=13):
    task_head(A, sFW, ftarget, vsig=vsig)
    toks = XL(A, nk, sX, nup="pre")
    TP, TC = {(36, 4): (16, 25), (36, 2): (16, 30), (64, 2): (36, 54)}[(nk, nt)]
    gemm_core(A, nk, nt, swapped, xtoks=toks, fill=look_fill(A, sFW, 2 * fw[2], ftarget, 2 * xb[2], TP, TC, vsig, nk=nk))

def nat_t(A, per):
    def f(u):
        A.I("s_mul_i32 %s, s90, %d" % (s(sT), 4 * per))
        A.I("s_add_u32 %s, %s, %s" % (s(sT), s(sT), s(S_WAVE)))
        if u: A.I("s_add_u32 %s, %s, %d" % (s(sT), s(sT), 4 * u))
    return f

def col_regs(A):
    A.I("v_and_b32 v8, 31, %s" % v(LANE))
    A.I("v_lshrrev_b32 v9, 5, %s" % v(LANE))

def vmul_const(A, dst, src, c):
    A.I("s_mov_b32 s3, %d" % c)
    A.I("v_mul_lo_u32 %s, %s, s3" % (v(dst), v(src)))

def w_natural(A, ld, nt, groups, width):
    load_w(A, ld, nt, groups, width, 1, 9, lambda: A.I("s_mul_i32 %s, %s, %d" % (s(sT2), s(sT), 16 * ld)), list(range(8)), nat_t(A, 9))

def bw_load(A, karg):
    I = A.I
    load_srd(A, S_W1, karg, 576 * 8192)
    col_regs(A)
    I("v_lshlrev_b32 v10, 16, v9")
    I("v_lshl_add_u32 v10, v8, 3, v10")
    I("s_lshl_b32 s3, %s, 8" % s(S_IDX))
    I("v_add_u32 v10, s3, v10")
    w_natural(A, 8192, 4, [10], 2)

def role_bkv(A, isv):
    name = "bv" if isv else "bk"
    worker_setup(A)
    bw_load(A, 56 if isv else 48)
    fw = ((F_XN + 64) * FSTR, 128 * FSTR, FSTR, [])
    fs = (F_KV * FSTR, 64 * 32 * FSTR, 32 * FSTR, [(S_IDX, FSTR)])
    xb = (W_XN + XN_K, 2 * XN_K, SEGB, [])
    ob = (W_KV + (8192 if isv else 0), 64 * 32 * KV_H, 32 * KV_H, [(S_IDX, KV_H)])
    g32_role(A, name, 36, 4, isv, fw, 4, fs, xb, ob, ep_unit8(4))

QSC = 18 ** -0.5 * 1.4426950408889634
def role_aq(A):
    I = A.I
    worker_setup(A)
    load_srd(A, S_W1, 8, 576 * 3456)
    col_regs(A)
    fw = (F_XN * FSTR, 128 * FSTR, FSTR, [])
    fs = (F_QKVA * FSTR, 64 * FSTR, FSTR, [])
    xb = (W_XN, 2 * XN_K, SEGB, [])
    I("s_mov_b32 %s, 0x%x" % (s(sSC), fb(QSC)))
    vmul_const(A, 11, 9, 8 * 3456)
    I("s_cmp_ge_u32 %s, 12" % s(S_IDX))
    I("s_cbranch_scc1 L_aq_x")
    I("s_lshr_b32 s91, %s, 2" % s(S_IDX))
    I("s_and_b32 s92, %s, 3" % s(S_IDX))
    I("v_lshrrev_b32 v10, 2, v8")
    I("v_mul_u32_u24 v10, 36, v10")
    I("v_and_b32 v12, 3, v8")
    I("v_lshl_add_u32 v10, v12, 3, v10")
    I("v_add_u32 v10, v10, v11")
    I("s_mul_i32 s3, s91, 1152"); I("s_mul_i32 s93, s92, 288"); I("s_add_u32 s3, s3, s93")
    I("v_add_u32 v10, s3, v10")
    I("s_mov_b32 s60, s91"); I("s_mov_b32 s61, s92")
    w_natural(A, 3456, 4, [10], 2)
    I("s_cmp_eq_u32 s60, 2")
    I("s_cbranch_scc1 L_aq_v")
    I("s_cmp_eq_u32 s60, 0")
    I("s_cselect_b32 %s, %s, 1.0" % (s(sSC), s(sSC)))
    I("v_lshlrev_b32 v12, 10, v9")
    I("v_lshl_add_u32 v12, v8, 4, v12")
    ob = (W_QKVA, 64 * QKVA_S, QKVA_S, [(60, 32768), (61, 8192)])
    g32_role(A, "aqm", 36, 4, False, fw, 4, fs, xb, ob, ep_qm(sSC), vaddr=12)
    A.label("L_aq_v")
    ob = (W_QKVA + 65536, 64 * QKVA_S, QKVA_S, [(61, 8192)])
    g32_role(A, "aqv", 36, 4, True, fw, 4, fs, xb, ob, ep_unit8(4))
    A.label("L_aq_x")
    I("v_mul_u32_u24 v10, 36, v8")
    I("v_add_u32 v10, v10, v11")
    I("v_add_u32 v10, 32, v10")
    I("s_cmp_eq_u32 %s, 14" % s(S_IDX))
    I("s_cbranch_scc1 L_aq_xv")
    I("s_sub_u32 s60, %s, 12" % s(S_IDX))
    I("s_mul_i32 s3, s60, 1152")
    I("v_add_u32 v10, s3, v10")
    w_natural(A, 3456, 2, [10], 1)
    I("s_cmp_eq_u32 s60, 0")
    I("s_cselect_b32 %s, %s, 1.0" % (s(sSC), s(sSC)))
    ob = (W_QKVA + 98304, 64 * QKVA_S, QKVA_S, [(60, 4096)])
    g32_role(A, "aqx", 36, 2, False, fw, 4, fs, xb, ob, ep_pair(1, sSC))
    A.label("L_aq_xv")
    I("v_add_u32 v10, 2304, v10")
    w_natural(A, 3456, 2, [10], 1)
    ob = (W_QKVA + 98304 + 8192, 64 * QKVA_S, QKVA_S, [])
    def ones():
        for r in range(4): I("v_mov_b32 %s, 0x3f803f80" % v(40 + r))
        I("s_add_u32 %s, %s, 4096" % (s(sO2), s(sO)))
        I("buffer_store_dwordx4 v[40:43], %s, s[4:7], %s offen sc1" % (v(L16), s(sO2)))
        I("buffer_store_dwordx4 v[40:43], %s, s[4:7], %s offen offset:1024 sc1" % (v(L16), s(sO2)))
    g32_role(A, "aqxv", 36, 2, True, fw, 4, fs, xb, ob, ep_unit8(2), extra_ep=ones)

def role_aw(A):
    I = A.I
    worker_setup(A)
    load_srd(A, S_W1, 16, 576 * 1152)
    col_regs(A)
    I("s_lshl_b32 s3, %s, 8" % s(S_IDX))
    I("v_lshlrev_b32 v12, 2, v8")
    I("v_add_u32 v12, s3, v12")
    I("s_cmp_eq_u32 %s, 4" % s(S_IDX))
    I("s_mov_b32 s61, 128")
    I("s_cselect_b32 s61, 0x%x, s61" % OOB)
    vmul_const(A, 13, 9, 4 * 1152)
    I("v_add_u32 v10, v12, v13")
    I("v_add_u32 v11, s61, v10")
    d0 = [(i & 3) + 8 * (i >> 2) for i in range(8)]
    load_w(A, 1152, 4, [10, 11], 1, 1, 8, lambda: I("s_mul_i32 %s, %s, %d" % (s(sT2), s(sT), 18 * 1152)), d0, nat_t(A, 8))
    vmul_const(A, 13, 9, 72 * 1152)
    I("v_add_u32 v10, v12, v13")
    I("v_add_u32 v11, s61, v10")
    d1 = [18 * (i >> 1) + 16 + (i & 1) for i in range(8)]
    def base1():
        I("s_mul_i32 %s, %s, %d" % (s(sT2), s(S_WAVE), 144 * 1152))
    load_w(A, 1152, 4, [10, 11], 1, 1, 1, base1, d1, lambda u: I("s_add_u32 %s, %s, 32" % (s(sT), s(S_WAVE))))
    fw = (F_OA * FSTR, 64 * FSTR, FSTR, [])
    fs = (F_PA * FSTR, 64 * FSTR, FSTR, [])
    xb = (W_OA, OA_L, SEGB, [])
    ob = (W_PA, PA_L, SEGB, [(S_IDX, 8192)])
    units = ep_pair(2)
    I("s_cmp_eq_u32 %s, 4" % s(S_IDX))
    I("s_cselect_b32 s61, 0x%x, 0" % OOB)
    I("v_add_u32 v12, s61, %s" % v(L16))
    task_init(A, fw, fs, xb, ob)
    start_sync(A)
    A.label("L_aw_top")
    g32_body(A, 36, 4, False, fw, 32, xb)
    I("s_waitcnt vmcnt(0)")
    store_units(A, units[:4], sO, L16)
    store_units(A, units[4:], sO, 12)
    I("s_mov_b32 %s, %s" % (s(sPS), s(sFS)))
    task_next(A, fw, fs, xb, ob, "L_aw_top")

def role_op(A):
    I = A.I
    worker_setup(A)
    load_srd(A, S_W1, 64, 4096 * 1152)
    col_regs(A)
    I("v_lshlrev_b32 v10, 2, v8")
    vmul_const(A, 13, 9, 16 * 1152)
    I("v_add_u32 v10, v10, v13")
    I("s_lshl_b32 s3, s61, 7")
    I("v_add_u32 v10, s3, v10")
    d = [32 * (i >> 2) + 4 * (i & 3) for i in range(8)]
    def base():
        I("s_lshr_b32 s91, %s, 3" % s(sT))
        I("s_lshl_b32 s92, s60, 3"); I("s_add_u32 s91, s91, s92"); I("s_lshl_b32 s91, s91, 7")
        I("s_and_b32 s92, %s, 1" % s(sT)); I("s_lshl_b32 s92, s92, 6"); I("s_add_u32 s91, s91, s92")
        I("s_bfe_u32 s92, %s, 0x20001" % s(sT)); I("s_add_u32 s91, s91, s92")
        I("s_mul_i32 %s, s91, 1152" % s(sT2))
    load_w(A, 1152, 2, [10], 1, 1, 16, base, d, nat_t(A, 16))
    fw = (F_OB * FSTR, 64 * 4 * FSTR, 4 * FSTR, [(60, FSTR)])
    fs = (F_PB * FSTR, 64 * FSTR, FSTR, [])
    xb = (W_OB, 64 * OB_S, OB_S, [(60, 8 * 8192)])
    ob = (W_PB, 64 * 4 * SEGB, 4 * SEGB, [(60, SEGB), (61, 4096)])
    g32_role(A, "op", 64, 2, False, fw, 8, fs, xb, ob, ep_pair(1))
```

```python
from g_work import *

def g_work_AWS():
    import g_work
    return g_work.AWS
def role_fin(A):
    I = A.I
    worker_setup(A)
    VU, VR = 5, 6
    def fin_map(lo, NS):
        I("s_sub_u32 s3, s60, %d" % lo)
        I("s_mul_i32 %s, %s, %d" % (s(sSeg), s(S_WAVE), NS))
        I("s_add_u32 s3, s3, %s" % s(sSeg))
        if os.environ.get("FINOLD"):
            I("s_sub_u32 %s, s60, %d" % (s(sSeg), lo)); I("s_mov_b32 s3, %s" % s(S_WAVE))
        else:
            I("s_lshr_b32 %s, s3, 2" % s(sSeg))
            I("s_and_b32 s3, s3, 3")
        I("s_lshl_b32 s3, s3, 3")
        I("v_and_b32 v8, 7, %s" % v(LANE))
        I("v_add_u32 v8, s3, v8")
        I("v_lshrrev_b32 v9, 3, %s" % v(LANE))
        I("v_lshrrev_b32 v10, 1, v9"); I("v_lshlrev_b32 v10, 10, v10")
        I("v_and_b32 v11, 1, v9"); I("v_lshl_add_u32 v10, v11, 9, v10")
        I("v_lshl_add_u32 %s, v8, 4, v10" % v(VU))
        I("v_mul_u32_u24 v10, 1152, v8")
        I("v_lshl_add_u32 %s, v9, 4, v10" % v(VR))
    I("s_mov_b32 s64, 0x00003f80"); I("s_mov_b32 s65, 0x3f800000"); I("s_mov_b32 s66, 0x3f803f80")
    I("s_mov_b32 s67, 0xffff0000")
    I("s_mov_b32 s68, 0x%x" % fb(1.0 / 576)); I("s_mov_b32 s69, 0x%x" % fb(1e-5))
    load_srd(A, S_W1, 0, 2048 * 1152)
    load_srd(A, S_W2, 80, 2048 * 1152)
    I("s_mov_b32 %s, 0x%x" % (s(sPS), OOB))
    I("s_cmp_lt_u32 s60, 2")
    I("s_cbranch_scc1 L_fin_sync")
    fin_map(2, 8)
    fin_stage(A, 0, VU, VR, 8)
    I("s_branch L_fin_go")
    A.label("L_fin_sync")
    start_sync(A)
    A.label("L_fin_go")
    for st, lo, n in ((1, 0, 2), (2, 2, 3), (3, 5, 2), (4, 7, 3)):
        Ln = "L_fin_n%d" % st
        if st < 4:
            I("s_cmp_ge_u32 s60, %d" % (lo + n))
            I("s_cbranch_scc1 %s" % Ln)
        fin_map(lo, n)
        fin_stage(A, st, VU, VR, n)
        final_signal(A)
        A.label(Ln)

def fin_stage(A, st, VU, VR, NS):
    I = A.I
    npart = [0, 1, 4, 1, 4][st]
    lay = [0, 0, 0, 1, 1][st]
    sRes, sPar, sXo, sNo = 70, 71, 72, 73
    if st <= 1: lin(A, sRes, 0, [(sSeg, SEGB)])
    else: lin(A, sRes, W_X + (st - 2) * X_K, [(sSeg, SEGB)])
    if npart == 1:
        lin(A, sPar, W_PA + lay * PA_L, [(sSeg, SEGB)]); pst = SEGB
        lin(A, sFW, (F_PA + lay * 64) * FSTR, [(sSeg, FSTR)]); tgt = 10 if g_work_AWS() else 5
    elif npart == 4:
        lin(A, sPar, W_PB + lay * 64 * 4 * SEGB, [(sSeg, 4 * SEGB)]); pst = 4 * SEGB
        lin(A, sFW, (F_PB + lay * 64) * FSTR, [(sSeg, FSTR)]); tgt = 36
    if st in (1, 2, 3): lin(A, sXo, W_X + (st - 1) * X_K, [(sSeg, SEGB)])
    if st == 4: lin(A, sXo, 0, [(sSeg, SEGB)])
    if st < 4:
        lin(A, sNo, W_XN + st * XN_K, [(sSeg, SEGB)])
        lin(A, sFS, (F_XN + st * 64) * FSTR, [(sSeg, FSTR)])
    LT = "L_fin_top%d" % st
    if st == 0: I("s_mov_b32 s62, 0")
    A.label(LT)
    if npart:
        spin_flag_sig(A, sFW, tgt, sPS)
        if TL.get("tl2"): tl_mark(A, 13)
    else:
        Lns = A.newlabel("L_fin_ns")
        I("s_cmp_lg_u32 s62, 1")
        I("s_cbranch_scc1 %s" % Lns)
        I("s_mov_b32 s63, %s" % s(sPS))
        start_sync(A)
        I("s_mov_b32 %s, s63" % s(sPS))
        A.label(Lns)
        I("s_add_u32 s62, s62, 1")
        I("s_waitcnt vmcnt(0)")
        signal(A, sPS, 13)
    X = 16
    P = 64
    F = 64
    xt = []
    for m in range(9):
        if st <= 1: xt.append(I("buffer_load_dwordx4 %s, %s, s[8:11], %s offen offset:%d" % (v(X + 4 * m, 4), v(VR), s(sRes), m * 128)))
        else:
            I("s_add_u32 %s, %s, %d" % (s(sT), s(sRes), m * 4096))
            xt.append(I(("buffer_load_dwordx4 %s, %s, s[4:7], %s offen" + LD) % (v(X + 4 * m, 4), v(VU), s(sT))))
    pt = {}
    for p in range(npart):
        for m in range(9):
            I("s_add_u32 %s, %s, %d" % (s(sT), s(sPar), p * SEGB + m * 4096))
            pt[(p, m)] = I(("buffer_load_dwordx4 %s, %s, s[4:7], %s offen" + LD) % (v(P + 36 * p + 4 * m, 4), v(VU), s(sT)))
    tq = lambda: tl_mark(A, 13) if TL.get("tlq") and st == 2 else None
    tq()
    if npart == 4:
        T = 208
        for m in range(9):
            A.wait_vm(pt[(3, m)])
            for d in range(4):
                r0 = P + 4 * m + d
                I("v_lshlrev_b32 %s, 16, %s" % (v(T + 2 * d), v(r0)))
                I("v_and_b32 %s, s67, %s" % (v(T + 2 * d + 1), v(r0)))
            for p in range(1, 4):
                for d in range(4):
                    r = P + 36 * p + 4 * m + d
                    I("v_dot2_f32_bf16 %s, %s, s64, %s" % (v(T + 2 * d), v(r), v(T + 2 * d)))
                    I("v_dot2_f32_bf16 %s, %s, s65, %s" % (v(T + 2 * d + 1), v(r), v(T + 2 * d + 1)))
            for d in range(4): I("v_cvt_pk_bf16_f32 %s, %s, %s" % (v(P + 4 * m + d), v(T + 2 * d), v(T + 2 * d + 1)))
    tq()
    F = 128
    for m in range(9):
        A.wait_vm(xt[m] if npart != 1 else pt[(0, m)])
        for d in range(4):
            r = X + 4 * m + d
            I("v_lshlrev_b32 %s, 16, %s" % (v(F + 8 * m + 2 * d), v(r)))
            I("v_and_b32 %s, s67, %s" % (v(F + 8 * m + 2 * d + 1), v(r)))
        if npart:
            for d in range(4):
                r = P + 4 * m + d
                I("v_dot2_f32_bf16 %s, %s, s64, %s" % (v(F + 8 * m + 2 * d), v(r), v(F + 8 * m + 2 * d)))
                I("v_dot2_f32_bf16 %s, %s, s65, %s" % (v(F + 8 * m + 2 * d + 1), v(r), v(F + 8 * m + 2 * d + 1)))
            for d in range(4):
                I("v_cvt_pk_bf16_f32 %s, %s, %s" % (v(X + 4 * m + d), v(F + 8 * m + 2 * d), v(F + 8 * m + 2 * d + 1)))
            if st == 4:
                I("buffer_store_dwordx4 %s, %s, s[12:15], %s offen offset:%d" % (v(X + 4 * m, 4), v(VR), s(sXo), m * 128))
            else:
                I("s_add_u32 %s, %s, %d" % (s(sT), s(sXo), m * 4096))
                I("buffer_store_dwordx4 %s, %s, s[4:7], %s offen sc1" % (v(X + 4 * m, 4), v(VU), s(sT)))
                for d in range(4):
                    r = X + 4 * m + d
                    I("v_lshlrev_b32 %s, 16, %s" % (v(F + 8 * m + 2 * d), v(r)))
                    I("v_and_b32 %s, s67, %s" % (v(F + 8 * m + 2 * d + 1), v(r)))
    tq()
    if st < 4:
        def red(r, tmp):
            I("v_add_f32_dpp %s, %s, %s row_ror:8 row_mask:0xf bank_mask:0xf" % (v(r), v(r), v(r)))
            I("v_mov_b32 %s, %s" % (v(tmp), v(r)))
            I("v_permlane16_swap_b32 %s, %s" % (v(r), v(tmp)))
            I("v_add_f32 %s, %s, %s" % (v(r), v(r), v(tmp)))
            I("v_mov_b32 %s, %s" % (v(tmp), v(r)))
            I("v_permlane32_swap_b32 %s, %s" % (v(r), v(tmp)))
            I("v_add_f32 %s, %s, %s" % (v(r), v(r), v(tmp)))
        S_ = 208
        for c in range(4): I("v_pk_add_f32 %s, %s, %s" % (v(S_ + 2 * c, 2), v(F + 2 * c, 2), v(F + 8 + 2 * c, 2)))
        for m in range(2, 9):
            for c in range(4): I("v_pk_add_f32 %s, %s, %s" % (v(S_ + 2 * c, 2), v(S_ + 2 * c, 2), v(F + 8 * m + 2 * c, 2)))
        I("v_pk_add_f32 v[208:209], v[208:209], v[210:211]"); I("v_pk_add_f32 v[212:213], v[212:213], v[214:215]")
        I("v_pk_add_f32 v[208:209], v[208:209], v[212:213]")
        I("v_add_f32 v208, v208, v209")
        red(208, 209)
        I("v_mul_f32 v208, s68, v208")
        I("v_sub_f32 v216, 0, v208"); I("v_mov_b32 v217, v216")
        for i in range(36): I("v_pk_add_f32 %s, %s, v[216:217]" % (v(F + 2 * i, 2), v(F + 2 * i, 2)))
        for c in range(4): I("v_pk_mul_f32 %s, %s, %s" % (v(S_ + 2 * c, 2), v(F + 2 * c, 2), v(F + 2 * c, 2)))
        for m in range(1, 9):
            for c in range(4):
                I("v_pk_fma_f32 %s, %s, %s, %s" % (v(S_ + 2 * c, 2), v(F + 8 * m + 2 * c, 2), v(F + 8 * m + 2 * c, 2), v(S_ + 2 * c, 2)))
        I("v_pk_add_f32 v[208:209], v[208:209], v[210:211]"); I("v_pk_add_f32 v[212:213], v[212:213], v[214:215]")
        I("v_pk_add_f32 v[208:209], v[208:209], v[212:213]")
        I("v_add_f32 v208, v208, v209")
        red(208, 209)
        I("v_mov_b32 v209, s69")
        I("v_fma_f32 v208, v208, s68, v209")
        I("v_rsq_f32 v216, v208")
        I("v_mov_b32 v217, v216")
        for m in range(9):
            for c in range(4): I("v_pk_mul_f32 %s, %s, v[216:217]" % (v(F + 8 * m + 2 * c, 2), v(F + 8 * m + 2 * c, 2)))
            for d in range(4): I("v_cvt_pk_bf16_f32 %s, %s, %s" % (v(64 + 4 * m + d), v(F + 8 * m + 2 * d), v(F + 8 * m + 2 * d + 1)))
            I("s_add_u32 %s, %s, %d" % (s(sT), s(sNo), m * 4096))
            I("buffer_store_dwordx4 %s, %s, s[4:7], %s offen sc1" % (v(64 + 4 * m, 4), v(VU), s(sT)))
        I("s_mov_b32 %s, %s" % (s(sPS), s(sFS)))
    tl_mark(A, 12)
    I("s_add_u32 %s, %s, %d" % (s(sRes), s(sRes), NS * SEGB))
    if npart:
        I("s_add_u32 %s, %s, %d" % (s(sPar), s(sPar), NS * pst))
        I("s_add_u32 %s, %s, %d" % (s(sFW), s(sFW), NS * FSTR))
    if st >= 1: I("s_add_u32 %s, %s, %d" % (s(sXo), s(sXo), NS * SEGB))
    if st < 4:
        I("s_add_u32 %s, %s, %d" % (s(sNo), s(sNo), NS * SEGB))
        I("s_add_u32 %s, %s, %d" % (s(sFS), s(sFS), NS * FSTR))
    I("s_add_u32 %s, %s, %d" % (s(sSeg), s(sSeg), NS))
    I("s_cmp_lt_u32 %s, 64" % s(sSeg))
    I("s_cbranch_scc1 %s" % LT)
    if st == 0:
        I("s_waitcnt vmcnt(0)")
        signal(A, sPS, 13)
        I("s_mov_b32 %s, 0x%x" % (s(sPS), OOB))
```

```python
from g_common import *
import struct
fb = lambda x: struct.unpack("<I", struct.pack("<f", x))[0]
OOB = 0x7FFF0000
import os
LD = ' sc1' if os.environ.get('LDSC1') else ''
LANE, L16, LB1, LB2 = 1, 2, 3, 4
sLy, sSeg = 22, 23
sFW, sFS, sX, sO = 28, 29, 30, 31
sPLO, sPHI = 32, 33
sT, sT2, sT3 = 34, 35, 36
sXS = 40
sO2 = 37
sSC = 38
sPS = 39

def wait2(A, vtok=None, ltok=None):
    parts = []
    if vtok is not None: parts.append("vmcnt(%d)" % min(A.vm_issued - vtok[1], 63))
    if ltok is not None: parts.append("lgkmcnt(%d)" % min(A.lgkm_issued - ltok[1], 15))
    A.I("s_waitcnt " + " ".join(parts))

def lds_ref(off):
    if off < 61440: return L16, off
    if off < 122880: return LB1, off - 61440
    return LB2, off - 122880

def worker_setup(A):
    I = A.I
    I("v_and_b32 %s, 63, v0" % v(LANE))
    I("v_lshlrev_b32 %s, 4, %s" % (v(L16), v(LANE)))
    I("v_add_u32 %s, 61440, %s" % (v(LB1), v(L16)))
    I("v_add_u32 %s, 122880, %s" % (v(LB2), v(L16)))
    I("s_mov_b32 %s, 0x05040100" % s(sPLO))
    I("s_mov_b32 %s, 0x07060302" % s(sPHI))

def lin(A, dst, c0, terms):
    I = A.I
    I("s_mov_b32 %s, 0x%x" % (s(dst), c0 & 0xffffffff))
    for (r, m) in terms:
        if m == 0: continue
        I("s_mul_i32 s3, %s, 0x%x" % (s(r), m))
        I("s_add_u32 %s, %s, s3" % (s(dst), s(dst)))

def load_w(A, ld, nt, groups, width, iters, per, base_fn, deltas, t_fn):
    I = A.I
    RB = 16
    nreg = 8 * width * len(groups)
    assert RB + per * nreg + 4 * nt <= 250
    TB = RB + per * nreg
    I("s_mov_b32 s90, 0")
    L = A.newlabel("L_w")
    A.label(L)
    toks = []
    for u in range(per):
        t_fn(u)
        I("s_mov_b32 %s, %s" % (s(64 + u), s(sT)))
        base_fn()
        for i in range(8):
            I("s_add_u32 %s, %s, %d" % (s(sT3), s(sT2), deltas[i] * ld))
            for g, vo in enumerate(groups):
                r = RB + u * nreg + (g * 8 + i) * width
                op = "buffer_load_dwordx2" if width == 2 else "buffer_load_dword"
                tok = I("%s %s, %s, s[8:11], %s offen" % (op, v(r, width), v(vo), s(sT3)))
        toks.append(tok)
    for u in range(per):
        A.wait_vm(toks[u])
        I("s_mul_i32 s3, %s, %d" % (s(64 + u), nt * 1024))
        I("v_add_u32 v15, s3, %s" % v(L16))
        for tile in range(nt):
            for m in range(4):
                if width == 2:
                    lo = RB + u * nreg + (2 * m) * 2 + (tile >> 1); hi = lo + 2
                else:
                    lo = RB + u * nreg + (tile >> 1) * 8 + 2 * m; hi = lo + 1
                I("v_perm_b32 %s, %s, %s, %s" % (v(TB + 4 * tile + m), v(hi), v(lo), s(sPHI if tile & 1 else sPLO)))
            I("ds_write_b128 v15, %s offset:%d" % (v(TB + 4 * tile, 4), tile * 1024))
        I("s_waitcnt lgkmcnt(0)")
    I("s_add_u32 s90, s90, 1")
    I("s_cmp_lt_u32 s90, %d" % iters)
    I("s_cbranch_scc1 %s" % L)

ACC = 64; WB = 128
def gemm_core(A, nk, nt, swapped, xreg=lambda t: a(4 * t, 4), xtoks=None, wbuf=WB, acc=ACC, ldsbase=0, fill=None, wnt=None, ldsmap=None):
    I = A.I
    wt = {}
    def wread(t, tile):
        r, o = lds_ref(ldsbase + (t * (wnt or nt) + tile) * 1024)
        if ldsmap: r = ldsmap[r]
        return I("ds_read_b128 %s, %s offset:%d" % (v(wbuf + ((t % 3) * nt + tile) * 4, 4), v(r), o))
    for t in range(2):
        for tile in range(nt): wt[(t, tile)] = wread(t, tile)
    for t in range(nk):
        wait2(A, xtoks[t] if xtoks else None, wt[(t, nt - 1)])
        if fill and t == NUP: assert xtoks[t] is not None
        for tile in range(nt):
            w = v(wbuf + ((t % 3) * nt + tile) * 4, 4)
            c = "0" if t == 0 else v(acc + 16 * tile, 16)
            x, y = (xreg(t), w) if swapped else (w, xreg(t))
            I("v_mfma_f32_32x32x16_bf16 %s, %s, %s, %s" % (v(acc + 16 * tile, 16), x, y, c))
            if t + 2 < nk: wt[(t + 2, tile)] = wread(t + 2, tile)
            if isinstance(xtoks, XL): xtoks.step(t, tile, nt)
            if fill: fill(t, tile, nt)
    if fill: assert not getattr(fill, "pend", None)

class XL:
    def __init__(s_, A, nk, sbase, extra=(), xreg=lambda t: a(4 * t, 4), nup=None):
        s_.A, s_.nk, s_.sbase, s_.xreg, s_.toks, s_.extra, s_.etoks = A, nk, sbase, xreg, {}, list(extra), []
        s_.n = 0
        if nup == "pre":
            s_.n = NUP
            for t in range(NUP): s_.toks[t] = None
        else:
            for _ in range(min(nk, NUP if nup is None else nup)): s_.one()
    def one(s_):
        A = s_.A; t = s_.n
        if t < s_.nk:
            if (t % 4 == 0 and t) or (t == NUP and t >= 4): A.I("s_add_u32 %s, %s, %d" % (s(sXT), s(s_.sbase), (t // 4) * 4096))
            sr = s_.sbase if t < 4 else sXT
            s_.toks[t] = A.I(("buffer_load_dwordx4 %s, %s, s[4:7], %s offen offset:%d" + LD) % (s_.xreg(t), v(L16), s(sr), (t % 4) * 1024))
            s_.n += 1
        elif s_.extra:
            s_.etoks.append(s_.extra.pop(0)())
    def __getitem__(s_, t): return s_.toks[t]
    def step(s_, t, tile, nt):
        per = XPER
        if tile < per or (nt < per and tile == nt - 1):
            for _ in range(1 if tile < nt - 1 or nt >= per else per - nt + 1): s_.one()
import os
NUP = int(os.environ.get("NUP", 8)); XPER = int(os.environ.get("XPER", 2)); sXT = 27

def load_x(A, nk, sbase, xreg=lambda t: a(4 * t, 4)):
    return XL(A, nk, sbase, xreg=xreg)

sNX = 85
def first_x(A, sbase, extra_off=0):
    I = A.I
    for t in range(NUP):
        if t % 4 == 0: I("s_add_u32 %s, %s, 0x%x" % (s(sXT), s(sbase), extra_off + t * 1024))
        I(("buffer_load_dwordx4 %s, %s, s[4:7], %s offen offset:%d" + LD) % (a(4 * t, 4), v(L16), s(sXT), (t % 4) * 1024))

def task_head(A, sflag, target, voff=None, vsig=13, pre=None):
    I = A.I
    Lw = A.newlabel("L_warm")
    I("s_cmp_lg_u32 %s, 0" % s(sNX))
    I("s_cbranch_scc1 %s" % Lw)
    if pre: pre()
    spin_flag_sig(A, sflag, target, sPS, voff=voff, vsig=vsig)
    I("s_mov_b32 %s, 0x%x" % (s(sPS), OOB))
    first_x(A, sX)
    I("s_waitcnt vmcnt(0)")
    A.label(Lw)
    if TL.get("tl2w"): tl_mark(A, vsig)

sPB = 86
def look_fill(A, sflag, fstride, target, xstride, TP, TC, vsig=13, more=None, poll=None, check=None, nk=36, dfr=None, dper=(1, 1, 2, 2), dlag=6, last=62):
    I = A.I
    pend = []
    st = {"tok": None, "ts": None}
    def fill(t, tile, nt):
        if dfr is None:
            if t == NUP and tile == 0: signal(A, sPS, vsig)
        else:
            if t >= 1 and dfr:
                for _ in range(dper[tile]):
                    if dfr:
                        r = dfr.pop(0)()
                        if r is not None: st["tok"] = r
                if not dfr: st["ts"] = t + dlag
            if st["ts"] == t and tile == nt - 1:
                assert t < TP
                A.wait_vm(st["tok"]); signal(A, sPS, vsig)
        if t > TC and pend:
            rem = (nk - t) * nt - tile
            for _ in range(-(-len(pend) // rem)): pend.pop(0)()
        if tile != nt - 1: return
        if t == TP:
            if poll: poll()
            else:
                I("s_add_u32 s3, %s, 0x%x" % (s(sflag), fstride))
                I("buffer_load_dword v14, off, s[4:7], s3 sc1")
        if t == TC:
            I("s_waitcnt vmcnt(0)")
            if check: check()
            else: I("v_cmp_le_u32 vcc, %d, v14" % target)
            I("s_nop 3")
            I("s_and_b32 %s, vcc_lo, 1" % s(sNX))
            if more: more(pend)
            I("s_cmp_lt_u32 %s, %d" % (s(sSeg), last))
            I("s_cselect_b32 %s, %s, 0" % (s(sNX), s(sNX)))
            I("s_add_u32 %s, %s, 0x%x" % (s(sPB), s(sX), xstride))
            I("s_cmp_lg_u32 %s, 0" % s(sNX))
            I("s_cselect_b32 %s, %s, 0x%x" % (s(sPB), s(sPB), OOB))
            PBS = [sPB, sPB + 1, 89, 79]
            for q in range(1, (NUP + 3) // 4): I("s_add_u32 %s, %s, %d" % (s(PBS[q]), s(sPB), 4096 * q))
            for k in range(NUP):
                pend.append(lambda k=k: I(("buffer_load_dwordx4 %s, %s, s[4:7], %s offen offset:%d" + LD) % (a(4 * k, 4), v(L16), s(PBS[k // 4]), (k % 4) * 1024)))
    fill.pend = pend
    return fill

def load_x_old(A, nk, sbase, xreg=lambda t: a(4 * t, 4)):
    I = A.I
    toks = []
    for t in range(nk):
        if t % 4 == 0:
            if t: I("s_add_u32 %s, %s, %d" % (s(sT), s(sbase), t * 1024))
        sr = sbase if t < 4 else sT
        toks.append(I(("buffer_load_dwordx4 %s, %s, s[4:7], %s offen offset:%d" + LD) % (xreg(t), v(L16), s(sr), (t % 4) * 1024)))
    return toks

def store_units(A, units, sbase, vaddr=L16, tmp=16):
    I = A.I
    cur = None
    k = 0
    for off, srcs in units:
        d = tmp + 4 * (k % 4); k += 1
        for m in range(4):
            (x0, c0), (x1, c1) = srcs[2 * m], srcs[2 * m + 1]
            if c0 is not None:
                I("v_mul_f32 %s, %s, %s" % (v(x0), s(c0), v(x0)))
                I("v_mul_f32 %s, %s, %s" % (v(x1), s(c1), v(x1)))
            I("v_cvt_pk_bf16_f32 %s, %s, %s" % (v(d + m), v(x0), v(x1)))
        blk = off // 4096
        if blk == 0: sr = sbase
        else:
            if cur != blk:
                I("s_add_u32 %s, %s, %d" % (s(sO2), s(sbase), blk * 4096)); cur = blk
            sr = sO2
        I("buffer_store_dwordx4 %s, %s, s[4:7], %s offen offset:%d sc1" % (v(d, 4), v(vaddr), s(sr), off % 4096))

def ep_unit8(nt, acc=ACC):
    return [((2 * tau + jj) * 1024, [(acc + 16 * tau + 8 * jj + i, None) for i in range(8)]) for tau in range(nt) for jj in range(2)]
def ep_pair(ngroups, scale0=None, acc=ACC):
    u = []
    for b in range(ngroups):
        sc = scale0 if b == 0 else None
        for j in range(4):
            srcs = []
            for r in range(4):
                srcs += [(acc + 16 * (2 * b) + 4 * j + r, sc), (acc + 16 * (2 * b + 1) + 4 * j + r, sc)]
            u.append(((4 * b + j) * 1024, srcs))
    return u
def ep_qm(scale=None, acc=ACC):
    u = []
    for j in range(4):
        for hh in range(2):
            srcs = []
            for r in range(4):
                srcs += [(acc + 16 * (2 * hh) + 4 * j + r, scale), (acc + 16 * (2 * hh + 1) + 4 * j + r, scale)]
            u.append((j * 2048 + hh * 512, srcs))
    return u

def task_init(A, fw, fs, xb, ob, step=2):
    I = A.I
    I("s_lshr_b32 %s, %s, 1" % (s(sLy), s(S_WAVE)))
    I("s_and_b32 %s, %s, %d" % (s(sSeg), s(S_WAVE), step - 1))
    for dst, (c0, cl, cs, ex) in ((sFW, fw), (sFS, fs), (sX, xb), (sO, ob)):
        lin(A, dst, c0, [(sLy, cl), (sSeg, cs)] + list(ex))

def task_next(A, fw, fs, xb, ob, LTOP, pre=None, step=2):
    I = A.I
    tl_mark(A)
    for dst, (c0, cl, cs, ex) in ((sFW, fw), (sFS, fs), (sX, xb), (sO, ob)):
        I("s_add_u32 %s, %s, 0x%x" % (s(dst), s(dst), step * cs))
    I("s_add_u32 %s, %s, %d" % (s(sSeg), s(sSeg), step))
    I("s_cmp_lt_u32 %s, 64" % s(sSeg))
    I("s_cbranch_scc1 %s" % LTOP)
    if pre: pre()
    final_signal(A)

def final_signal(A):
    A.I("s_waitcnt vmcnt(0)")
    signal(A, sPS, 13)
    A.I("s_waitcnt vmcnt(0)")
    tl_end(A)
    A.I("s_branch L_END")

def start_sync(A):
    A.I("s_mov_b32 %s, 0x%x" % (s(sPS), OOB))
    A.I("s_mov_b32 %s, 0" % s(sNX))
    A.I("s_waitcnt vmcnt(0) lgkmcnt(0)")
    tl_mark(A)
    wait_all_arrived(A)
    tl_mark(A)

LW = int(os.environ.get('LW', '1'))
def g32_role(A, name, nk, nt, swapped, fw, ftarget, fs, xb, ob, units, vaddr=L16, extra_ep=None):
    I = A.I
    task_init(A, fw, fs, xb, ob)
    start_sync(A)
    LTOP = "L_%s_top" % name
    A.label(LTOP)
    g32_body(A, nk, nt, swapped, fw, ftarget, xb)
    if not LW: I("s_waitcnt vmcnt(0)")
    m = A.vm_issued
    store_units(A, units, sO, vaddr)
    if extra_ep: extra_ep()
    if LW: I("s_waitcnt vmcnt(%d)" % (A.vm_issued - m))
    I("s_mov_b32 %s, %s" % (s(sPS), s(sFS)))
    task_next(A, fw, fs, xb, ob, LTOP)

def g32_body(A, nk, nt, swapped, fw, ftarget, xb, vsig=13):
    task_head(A, sFW, ftarget, vsig=vsig)
    toks = XL(A, nk, sX, nup="pre")
    TP, TC = {(36, 4): (16, 25), (36, 2): (16, 30), (64, 2): (36, 54)}[(nk, nt)]
    gemm_core(A, nk, nt, swapped, xtoks=toks, fill=look_fill(A, sFW, 2 * fw[2], ftarget, 2 * xb[2], TP, TC, vsig, nk=nk))

def nat_t(A, per):
    def f(u):
        A.I("s_mul_i32 %s, s90, %d" % (s(sT), 4 * per))
        A.I("s_add_u32 %s, %s, %s" % (s(sT), s(sT), s(S_WAVE)))
        if u: A.I("s_add_u32 %s, %s, %d" % (s(sT), s(sT), 4 * u))
    return f

def col_regs(A):
    A.I("v_and_b32 v8, 31, %s" % v(LANE))
    A.I("v_lshrrev_b32 v9, 5, %s" % v(LANE))

def vmul_const(A, dst, src, c):
    A.I("s_mov_b32 s3, %d" % c)
    A.I("v_mul_lo_u32 %s, %s, s3" % (v(dst), v(src)))

def w_natural(A, ld, nt, groups, width):
    load_w(A, ld, nt, groups, width, 1, 9, lambda: A.I("s_mul_i32 %s, %s, %d" % (s(sT2), s(sT), 16 * ld)), list(range(8)), nat_t(A, 9))

def bw_load(A, karg):
    I = A.I
    load_srd(A, S_W1, karg, 576 * 8192)
    col_regs(A)
    I("v_lshlrev_b32 v10, 16, v9")
    I("v_lshl_add_u32 v10, v8, 3, v10")
    I("s_lshl_b32 s3, %s, 8" % s(S_IDX))
    I("v_add_u32 v10, s3, v10")
    w_natural(A, 8192, 4, [10], 2)

def role_bkv(A, isv):
    name = "bv" if isv else "bk"
    worker_setup(A)
    bw_load(A, 56 if isv else 48)
    fw = ((F_XN + 64) * FSTR, 128 * FSTR, FSTR, [])
    fs = (F_KV * FSTR, 64 * 32 * FSTR, 32 * FSTR, [(S_IDX, FSTR)])
    xb = (W_XN + XN_K, 2 * XN_K, SEGB, [])
    ob = (W_KV + (8192 if isv else 0), 64 * 32 * KV_H, 32 * KV_H, [(S_IDX, KV_H)])
    g32_role(A, name, 36, 4, isv, fw, 4, fs, xb, ob, ep_unit8(4))

QSC = 18 ** -0.5 * 1.4426950408889634
def role_aq(A):
    I = A.I
    worker_setup(A)
    load_srd(A, S_W1, 8, 576 * 3456)
    col_regs(A)
    fw = (F_XN * FSTR, 128 * FSTR, FSTR, [])
    fs = (F_QKVA * FSTR, 64 * FSTR, FSTR, [])
    xb = (W_XN, 2 * XN_K, SEGB, [])
    I("s_mov_b32 %s, 0x%x" % (s(sSC), fb(QSC)))
    vmul_const(A, 11, 9, 8 * 3456)
    I("s_cmp_ge_u32 %s, 12" % s(S_IDX))
    I("s_cbranch_scc1 L_aq_x")
    I("s_lshr_b32 s91, %s, 2" % s(S_IDX))
    I("s_and_b32 s92, %s, 3" % s(S_IDX))
    I("v_lshrrev_b32 v10, 2, v8")
    I("v_mul_u32_u24 v10, 36, v10")
    I("v_and_b32 v12, 3, v8")
    I("v_lshl_add_u32 v10, v12, 3, v10")
    I("v_add_u32 v10, v10, v11")
    I("s_mul_i32 s3, s91, 1152"); I("s_mul_i32 s93, s92, 288"); I("s_add_u32 s3, s3, s93")
    I("v_add_u32 v10, s3, v10")
    I("s_mov_b32 s60, s91"); I("s_mov_b32 s61, s92")
    w_natural(A, 3456, 4, [10], 2)
    I("s_cmp_eq_u32 s60, 2")
    I("s_cbranch_scc1 L_aq_v")
    I("s_cmp_eq_u32 s60, 0")
    I("s_cselect_b32 %s, %s, 1.0" % (s(sSC), s(sSC)))
    I("v_lshlrev_b32 v12, 10, v9")
    I("v_lshl_add_u32 v12, v8, 4, v12")
    ob = (W_QKVA, 64 * QKVA_S, QKVA_S, [(60, 32768), (61, 8192)])
    g32_role(A, "aqm", 36, 4, False, fw, 4, fs, xb, ob, ep_qm(sSC), vaddr=12)
    A.label("L_aq_v")
    ob = (W_QKVA + 65536, 64 * QKVA_S, QKVA_S, [(61, 8192)])
    g32_role(A, "aqv", 36, 4, True, fw, 4, fs, xb, ob, ep_unit8(4))
    A.label("L_aq_x")
    I("v_mul_u32_u24 v10, 36, v8")
    I("v_add_u32 v10, v10, v11")
    I("v_add_u32 v10, 32, v10")
    I("s_cmp_eq_u32 %s, 14" % s(S_IDX))
    I("s_cbranch_scc1 L_aq_xv")
    I("s_sub_u32 s60, %s, 12" % s(S_IDX))
    I("s_mul_i32 s3, s60, 1152")
    I("v_add_u32 v10, s3, v10")
    w_natural(A, 3456, 2, [10], 1)
    I("s_cmp_eq_u32 s60, 0")
    I("s_cselect_b32 %s, %s, 1.0" % (s(sSC), s(sSC)))
    ob = (W_QKVA + 98304, 64 * QKVA_S, QKVA_S, [(60, 4096)])
    g32_role(A, "aqx", 36, 2, False, fw, 4, fs, xb, ob, ep_pair(1, sSC))
    A.label("L_aq_xv")
    I("v_add_u32 v10, 2304, v10")
    w_natural(A, 3456, 2, [10], 1)
    ob = (W_QKVA + 98304 + 8192, 64 * QKVA_S, QKVA_S, [])
    def ones():
        for r in range(4): I("v_mov_b32 %s, 0x3f803f80" % v(40 + r))
        I("s_add_u32 %s, %s, 4096" % (s(sO2), s(sO)))
        I("buffer_store_dwordx4 v[40:43], %s, s[4:7], %s offen sc1" % (v(L16), s(sO2)))
        I("buffer_store_dwordx4 v[40:43], %s, s[4:7], %s offen offset:1024 sc1" % (v(L16), s(sO2)))
    g32_role(A, "aqxv", 36, 2, True, fw, 4, fs, xb, ob, ep_unit8(2), extra_ep=ones)

AWS = int(os.environ.get('AWS', '0'))
def role_aw(A):
    I = A.I
    worker_setup(A)
    load_srd(A, S_W1, 16, 576 * 1152)
    col_regs(A)
    I("s_lshl_b32 s3, %s, 8" % s(S_IDX))
    I("v_lshlrev_b32 v12, 2, v8")
    I("v_add_u32 v12, s3, v12")
    I("s_cmp_eq_u32 %s, 4" % s(S_IDX))
    I("s_mov_b32 s61, 128")
    I("s_cselect_b32 s61, 0x%x, s61" % OOB)
    vmul_const(A, 13, 9, 4 * 1152)
    I("v_add_u32 v10, v12, v13")
    I("v_add_u32 v11, s61, v10")
    d0 = [(i & 3) + 8 * (i >> 2) for i in range(8)]
    load_w(A, 1152, 4, [10, 11], 1, 1, 8, lambda: I("s_mul_i32 %s, %s, %d" % (s(sT2), s(sT), 18 * 1152)), d0, nat_t(A, 8))
    vmul_const(A, 13, 9, 72 * 1152)
    I("v_add_u32 v10, v12, v13")
    I("v_add_u32 v11, s61, v10")
    d1 = [18 * (i >> 1) + 16 + (i & 1) for i in range(8)]
    def base1():
        I("s_mul_i32 %s, %s, %d" % (s(sT2), s(S_WAVE), 144 * 1152))
    load_w(A, 1152, 4, [10, 11], 1, 1, 1, base1, d1, lambda u: I("s_add_u32 %s, %s, 32" % (s(sT), s(S_WAVE))))
    fw = (F_OA * FSTR, 64 * FSTR, FSTR, [])
    fs = (F_PA * FSTR, 64 * FSTR, FSTR, [])
    xb = (W_OA, OA_L, SEGB, [])
    ob = (W_PA, PA_L, SEGB, [(S_IDX, 8192)])
    if AWS:
        LM = {L16: 40, LB1: 41, LB2: 42}
        I("s_and_b32 s60, %s, 1" % s(S_WAVE))
        I("s_lshl_b32 s3, s60, 11")
        for r, d in LM.items(): I("v_add_u32 %s, s3, %s" % (v(d), v(r)))
        units = ep_pair(1)
        I("s_lshl_b32 s3, s60, 12")
        I("s_lshl_b32 s61, %s, 1" % s(S_IDX)); I("s_add_u32 s61, s61, s60")
        I("s_cmp_eq_u32 s61, 9")
        I("s_cselect_b32 s3, 0x%x, s3" % OOB)
        I("v_add_u32 v12, s3, %s" % v(L16))
        task_init(A, fw, fs, xb, ob, step=1)
        start_sync(A)
        A.label("L_aw_top")
        task_head(A, sFW, 32)
        toks = XL(A, 36, sX, nup="pre")
        gemm_core(A, 36, 2, False, xtoks=toks, wnt=4, ldsmap=LM, fill=look_fill(A, sFW, fw[2], 32, xb[2], 16, 30, 13, nk=36, last=63))
        I("s_waitcnt vmcnt(0)")
        store_units(A, units, sO, 12)
        I("s_mov_b32 %s, %s" % (s(sPS), s(sFS)))
        task_next(A, fw, fs, xb, ob, "L_aw_top", step=1)
        return
    units = ep_pair(2)
    I("s_cmp_eq_u32 %s, 4" % s(S_IDX))
    I("s_cselect_b32 s61, 0x%x, 0" % OOB)
    I("v_add_u32 v12, s61, %s" % v(L16))
    task_init(A, fw, fs, xb, ob)
    start_sync(A)
    A.label("L_aw_top")
    g32_body(A, 36, 4, False, fw, 32, xb)
    if not LW: I("s_waitcnt vmcnt(0)")
    m = A.vm_issued
    store_units(A, units[:4], sO, L16)
    store_units(A, units[4:], sO, 12)
    if LW: I("s_waitcnt vmcnt(%d)" % (A.vm_issued - m))
    I("s_mov_b32 %s, %s" % (s(sPS), s(sFS)))
    task_next(A, fw, fs, xb, ob, "L_aw_top")

def role_op(A):
    I = A.I
    worker_setup(A)
    load_srd(A, S_W1, 64, 4096 * 1152)
    col_regs(A)
    I("v_lshlrev_b32 v10, 2, v8")
    vmul_const(A, 13, 9, 16 * 1152)
    I("v_add_u32 v10, v10, v13")
    I("s_lshl_b32 s3, s61, 7")
    I("v_add_u32 v10, s3, v10")
    d = [32 * (i >> 2) + 4 * (i & 3) for i in range(8)]
    def base():
        I("s_lshr_b32 s91, %s, 3" % s(sT))
        I("s_lshl_b32 s92, s60, 3"); I("s_add_u32 s91, s91, s92"); I("s_lshl_b32 s91, s91, 7")
        I("s_and_b32 s92, %s, 1" % s(sT)); I("s_lshl_b32 s92, s92, 6"); I("s_add_u32 s91, s91, s92")
        I("s_bfe_u32 s92, %s, 0x20001" % s(sT)); I("s_add_u32 s91, s91, s92")
        I("s_mul_i32 %s, s91, 1152" % s(sT2))
    load_w(A, 1152, 2, [10], 1, 1, 16, base, d, nat_t(A, 16))
    fw = (F_OB * FSTR, 64 * 4 * FSTR, 4 * FSTR, [(60, FSTR)])
    fs = (F_PB * FSTR, 64 * FSTR, FSTR, [])
    xb = (W_OB, 64 * OB_S, OB_S, [(60, 8 * 8192)])
    ob = (W_PB, 64 * 4 * SEGB, 4 * SEGB, [(60, SEGB), (61, 4096)])
    g32_role(A, "op", 64, 2, False, fw, 8, fs, xb, ob, ep_pair(1))
```

```python
import os
from g_work import *

NEGINF = 0xff800000
def mf32(A, d, x, y, c): A.I("v_mfma_f32_32x32x16_bf16 %s, %s, %s, %s" % (v(d, 16), x, y, c))
def mf8(A, d, x, y, c): A.I("v_mfma_f32_32x32x8bf16_1k %s, %s, %s, %s" % (v(d, 16), x, y, c))

def xhalf(A, op, r, tmp):
    A.I("v_mov_b32 %s, %s" % (v(tmp), v(r)))
    A.I("v_permlane32_swap_b32 %s, %s" % (v(r), v(tmp)))
    A.I("%s %s, %s, %s" % (op, v(r), v(r), v(tmp)))

def max_tree(A, dst, regs):
    I = A.I
    regs = list(regs)
    if len(regs) >= 12:
        nch = 4
        parts = [regs[i::nch] for i in range(nch)]
        st = [None] * nch
        done = False
        idx = [0] * nch
        while not done:
            done = True
            for c in range(nch):
                p = parts[c]; i = idx[c]
                if i >= len(p): continue
                done = False
                if st[c] is None:
                    if len(p) - i >= 3:
                        I("v_max3_f32 %s, %s, %s, %s" % (v(dst + c), v(p[i]), v(p[i + 1]), v(p[i + 2]))); idx[c] += 3
                    else:
                        I("v_max_f32 %s, %s, %s" % (v(dst + c), v(p[i]), v(p[i + 1]))); idx[c] += 2
                    st[c] = 1
                elif len(p) - i >= 2:
                    I("v_max3_f32 %s, %s, %s, %s" % (v(dst + c), v(dst + c), v(p[i]), v(p[i + 1]))); idx[c] += 2
                else:
                    I("v_max_f32 %s, %s, %s" % (v(dst + c), v(dst + c), v(p[i]))); idx[c] += 1
        I("v_max3_f32 %s, %s, %s, %s" % (v(dst), v(dst), v(dst + 1), v(dst + 2)))
        I("v_max_f32 %s, %s, %s" % (v(dst), v(dst), v(dst + 3)))
    else:
        raise NotImplementedError

MSK = [40 + 2 * i for i in range(8)] + [64 + 2 * i for i in range(8)]
def causal_masks(A):
    I = A.I
    I("v_and_b32 v8, 31, %s" % v(LANE))
    I("v_lshrrev_b32 v9, 5, %s" % v(LANE))
    I("v_lshlrev_b32 v9, 2, v9")
    I("v_sub_u32 v8, v8, v9")
    for j in range(4):
        for r in range(4):
            I("v_cmp_le_i32_e64 %s, %d, v8" % (s(MSK[4 * j + r], 2), 8 * j + r))

BSC = 128 ** -0.5 * 1.4426950408889634
def role_qa(A):
    I = A.I
    worker_setup(A)
    bw_load(A, 40)
    causal_masks(A)
    NEG = 5; MKO = 6; MVO = 7
    I("v_mov_b32 %s, 0x%x" % (v(NEG), NEGINF))
    I("v_lshrrev_b32 v9, 5, %s" % v(LANE))
    I("v_and_b32 v8, 7, %s" % v(LANE))
    I("v_lshlrev_b32 v8, 4, v8")
    I("v_lshl_add_u32 %s, v9, 7, v8" % v(MKO))
    I("v_and_b32 v8, 31, %s" % v(LANE))
    I("v_lshlrev_b32 v8, 4, v8")
    I("v_lshl_add_u32 v8, v9, 3, v8")
    I("v_add_u32 %s, 2048, v8" % v(MVO))
    I("s_mov_b32 %s, 0x%x" % (s(sSC), fb(BSC)))
    fw = ((F_XN + 64) * FSTR, 128 * FSTR, FSTR, [])
    fs = (F_OB * FSTR, 64 * 4 * FSTR, 4 * FSTR, [(62, FSTR)])
    xb = (W_XN + XN_K, 2 * XN_K, SEGB, [])
    ob = (W_OB, 64 * OB_S, OB_S, [(S_IDX, 8192)])
    I("s_lshr_b32 s62, %s, 3" % s(S_IDX))
    task_init(A, fw, fs, xb, ob)
    sFK, sFM, sKV, sMK = 80, 81, 82, 83
    ex = ((sFK, (F_KV * FSTR, 64 * 32 * FSTR, 32 * FSTR, [(S_IDX, FSTR)])),
          (sFM, (F_MKV * FSTR, 64 * 32 * FSTR, 32 * FSTR, [(S_IDX, FSTR)])),
          (sKV, (W_KV, 64 * 32 * KV_H, 32 * KV_H, [(S_IDX, KV_H)])),
          (sMK, (W_MKV, 64 * 32 * MKV_H, 32 * MKV_H, [(S_IDX, MKV_H)])))
    for dst, (c0, cl, cs, e) in ex: lin(A, dst, c0, [(sLy, cl), (sSeg, cs)] + e)
    I("v_cmp_eq_u32 vcc, 1, %s" % v(LANE))
    I("v_mov_b32 v11, 2"); I("v_mov_b32 v12, %d" % (2 * 32 * FSTR))
    I("v_mov_b32 v8, 4"); I("v_mov_b32 v9, 0x%x" % ((F_MKV - F_KV) * FSTR))
    I("v_cndmask_b32 v11, v11, v8, vcc"); I("v_cndmask_b32 v12, v12, v9, vcc")
    QDEF = int(os.environ.get("QDEF", "2"))
    OA = [96, 112, 128, 144][:4 - QDEF] + [176, 192, 208, 224][:QDEF]
    sOP = 92
    def dfr_ops():
        ops = []
        for tau in range(4 - QDEF, 4):
            for jj in range(2):
                o = OA[tau] + 8 * jj; d = 32 + 8 * (tau & 1) + 4 * jj
                for i in range(0, 8, 2): ops.append(lambda o=o, i=i: (I("v_pk_mul_f32 %s, %s, v[28:29]" % (v(o + i, 2), v(o + i, 2))), None)[1])
                for m in range(4): ops.append(lambda o=o, d=d, m=m: (I("v_cvt_pk_bf16_f32 %s, %s, %s" % (v(d + m), v(o + 2 * m), v(o + 2 * m + 1))), None)[1])
                off = (2 * (tau - (4 - QDEF)) + jj) * 1024
                ops.append(lambda d=d, off=off: I("buffer_store_dwordx4 %s, %s, s[4:7], %s offen offset:%d sc1" % (v(d, 4), v(L16), s(sOP + off // 4096), off % 4096)))
        return ops
    def dfr_now():
        A.flush_hazards(); I("s_nop 7"); I("s_nop 7")
        for f in dfr_ops(): f()
        I("s_mov_b32 %s, 0x%x" % (s(sOP), OOB)); I("s_mov_b32 %s, 0x%x" % (s(sOP + 1), OOB))
    if QDEF: I("s_mov_b32 %s, 0x%x" % (s(sOP), OOB)); I("s_mov_b32 %s, 0x%x" % (s(sOP + 1), OOB))
    start_sync(A)
    A.label("L_qa_top")
    task_head(A, sFK, 2, pre=dfr_now if QDEF else None)
    KA, VA, MKA, MVA = 144, 176, 208, 240
    def kvl(t):
        def f():
            if t % 4 == 0 and t: I("s_add_u32 %s, %s, %d" % (s(sT), s(sKV), t * 1024))
            return I(("buffer_load_dwordx4 %s, %s, s[4:7], %s offen offset:%d" + LD) % (a(KA + 4 * t, 4), v(L16), s(sKV if t < 4 else sT), (t % 4) * 1024))
        return f
    toks = XL(A, 36, sX, extra=[kvl(t) for t in range(16)], nup="pre")
    def mloads():
        mt = []
        for t in range(8):
            mt.append(I(("buffer_load_dwordx4 %s, %s, s[4:7], %s offen offset:%d" + LD) % (a(MKA + 4 * t, 4), v(MKO), s(sMK), t * 256)))
        for tau in range(4):
            mvt = I(("buffer_load_dwordx2 %s, %s, s[4:7], %s offen offset:%d" + LD) % (a(MVA + 2 * tau, 2), v(MVO), s(sMK), tau * 512))
        return mt, mvt
    sHV = 84
    TP, TC = 22, 29
    def poll(): I("buffer_load_dword v14, v12, s[4:7], %s offen sc1" % s(sFK))
    def check(): I("v_cmp_le_u32 vcc, v11, v14")
    def more(pend):
        I("s_bfe_u32 %s, vcc_lo, 0x10001" % s(sHV))
        I("s_cmp_lg_u32 %s, 0" % s(sHV))
        I("s_cselect_b32 s88, %s, 0x%x" % (s(sMK), OOB))
        for t in range(8):
            pend.append(lambda t=t: I(("buffer_load_dwordx4 %s, %s, s[4:7], s88 offen offset:%d" + LD) % (a(MKA + 4 * t, 4), v(MKO), t * 256)))
        for tau in range(4):
            pend.append(lambda tau=tau: I(("buffer_load_dwordx2 %s, %s, s[4:7], s88 offen offset:%d" + LD) % (a(MVA + 2 * tau, 2), v(MVO), tau * 512)))
    gemm_core(A, 36, 4, False, xtoks=toks, fill=look_fill(A, None, None, None, 2 * SEGB, TP, TC, more=more, poll=poll, check=check, dfr=dfr_ops() if QDEF else None,
                                                          dper=eval(os.environ.get("DPER", "(3,3,4,4)")), dlag=int(os.environ.get("DLAG", "5"))))
    if TL.get("tlq"): tl_mark(A, 13)
    QF = 16
    def qcv(f):
        for m in range(4):
            x0 = ACC + 8 * f + 2 * m
            I("v_cvt_pk_bf16_f32 %s, %s, %s" % (v(QF + 4 * f + m), v(x0), v(x0 + 1)))
    SX, SM = 64, 80
    qcv(0); qcv(1)
    for t in range(8):
        mf32(A, SX, a(KA + 4 * t, 4), v(QF + 4 * t, 4), "0" if t == 0 else v(SX, 16))
        if t + 2 < 8: qcv(t + 2)
    if TL.get("tlq"): tl_mark(A, 13)
    Lh = A.newlabel("L_qa_hv")
    I("s_cmp_eq_u32 %s, 1" % s(sHV))
    I("s_cbranch_scc1 %s" % Lh, noflush=True)
    A.flush_hazards()
    spin_flag(A, sFM, 4)
    mloads()
    QLW = int(os.environ.get("QLW", "0"))
    if QLW: I("s_waitcnt vmcnt(0)")
    A.label(Lh)
    I("s_waitcnt vmcnt(%d)" % (NUP if QLW else 0))
    mq = A.vm_issued
    k = 0
    for t in range(8):
        mf32(A, SM, a(MKA + 4 * t, 4), v(QF + 4 * t, 4), "0" if t == 0 else v(SM, 16))
        if t >= 2:
            for _ in range(3):
                if k < 16: I("v_cndmask_b32_e64 %s, %s, %s, %s" % (v(SX + k), v(NEG), v(SX + k), s(MSK[k], 2))); k += 1
    assert k == 16
    if TL.get("tlq"): tl_mark(A, 13)
    M_ = 48
    max_tree(A, M_, list(range(SX, SX + 16)) + list(range(SM, SM + 4)))
    xhalf(A, "v_max_f32", M_, 52)
    I("v_mul_f32 %s, %s, %s" % (v(M_), s(sSC), v(M_)))
    for r in list(range(SX, SX + 16)) + list(range(SM, SM + 4)):
        I("v_fma_f32 %s, %s, %s, -%s" % (v(r), v(r), s(sSC), v(M_)))
        I("v_exp_f32 %s, %s" % (v(r), v(r)))
    P0, PM = 16, 24
    for jj in range(2):
        for m in range(4): I("v_cvt_pk_bf16_f32 %s, %s, %s" % (v(P0 + 4 * jj + m), v(SX + 8 * jj + 2 * m), v(SX + 8 * jj + 2 * m + 1)))
    for m in range(2): I("v_cvt_pk_bf16_f32 %s, %s, %s" % (v(PM + m), v(SM + 2 * m), v(SM + 2 * m + 1)))
    OAc = 96
    regs = list(range(SX, SX + 16)) + list(range(SM, SM + 4))
    fl = []
    for c in range(4): fl.append((0, lambda c=c: I("v_add_f32 %s, %s, %s" % (v(28 + c), v(regs[c::4][0]), v(regs[c::4][1])))))
    for k in range(2, 5):
        for c in range(4): fl.append((0, lambda c=c, k=k: I("v_add_f32 %s, %s, %s" % (v(28 + c), v(28 + c), v(regs[c::4][k])))))
    fl.append((0, lambda: I("v_add_f32 v28, v28, v29"))); fl.append((0, lambda: I("v_add_f32 v30, v30, v31"))); fl.append((0, lambda: I("v_add_f32 v28, v28, v30")))
    fl.append((0, lambda: xhalf(A, "v_add_f32", 28, 29)))
    fl.append((0, lambda: (I("v_rcp_f32 v28, v28"), I("v_mov_b32 v29, v28"))))
    units = [((2 * tau + jj) * 1024, [(OA[tau] + 8 * jj + i, None) for i in range(8)]) for tau in range(4) for jj in range(2)]
    for tau in range(4 - QDEF):
        for jj in range(2):
            for i in range(8 * jj, 8 * jj + 8, 2):
                fl.append((3 * tau + 3, lambda tau=tau, i=i: I("v_pk_mul_f32 %s, %s, v[28:29]" % (v(OA[tau] + i, 2), v(OA[tau] + i, 2)))))
            fl.append((3 * tau + 3, lambda tau=tau, jj=jj: store_units(A, units[2 * tau + jj:2 * tau + jj + 1], sO, L16, tmp=32 + 8 * (tau & 1) + 4 * jj)))
    mi = 0
    for tau in range(4):
        for j3 in range(3):
            if j3 == 0: mf32(A, OA[tau], a(VA + 4 * (2 * tau), 4), v(P0, 4), "0")
            elif j3 == 1: mf32(A, OA[tau], a(VA + 4 * (2 * tau + 1), 4), v(P0 + 4, 4), v(OA[tau], 16))
            else: mf8(A, OA[tau], a(MVA + 2 * tau, 2), v(PM, 2), v(OA[tau], 16))
            n = 3 if j3 == 2 else 6
            while n > 0 and fl and fl[0][0] <= mi - 0 and not (fl[0][0] and fl[0][0] == mi):
                fl.pop(0)[1](); n -= 1
            mi += 1
    while fl: fl.pop(0)[1]()
    if QLW: I("s_waitcnt vmcnt(%d)" % (A.vm_issued - mq))
    I("s_mov_b32 %s, %s" % (s(sPS), s(sFS)))
    if QDEF:
        I("s_add_u32 %s, %s, %d" % (s(sOP), s(sO), (4 - QDEF) * 2048)); I("s_add_u32 %s, %s, 4096" % (s(sOP + 1), s(sOP)))
    for dst, (c0, cl, cs, e) in ex: I("s_add_u32 %s, %s, 0x%x" % (s(dst), s(dst), 2 * cs))
    task_next(A, fw, fs, xb, ob, "L_qa_top", pre=dfr_now if QDEF else None)

def role_aa(A, naa):
    I = A.I
    worker_setup(A)
    causal_masks(A)
    NW = 2 * naa
    NEG, VA0, U1, U2, XOF, TOK16 = 5, 6, 7, 8, 9, 10
    I("v_mov_b32 %s, 0x%x" % (v(NEG), NEGINF))
    I("v_and_b32 v11, 31, %s" % v(LANE))
    I("v_lshrrev_b32 v12, 5, %s" % v(LANE))
    I("v_lshlrev_b32 %s, 4, v11" % v(TOK16))
    I("s_mov_b32 s3, 0x%x" % OOB)
    I("v_mul_lo_u32 v13, v12, s3")
    I("v_add_u32 %s, v13, %s" % (v(XOF), v(TOK16)))
    I("v_and_b32 v13, 3, v11"); I("v_lshlrev_b32 v13, 11, v13")
    I("v_lshrrev_b32 v14, 2, v11"); I("v_lshl_add_u32 v14, v12, 5, v14")
    I("v_lshl_add_u32 v13, v14, 4, v13")
    I("v_add_u32 v13, 65536, v13")
    I("v_subrev_u32 v14, 16, v11"); I("v_lshlrev_b32 v14, 11, v14")
    I("v_lshl_add_u32 v14, v12, 9, v14")
    I("v_add_u32 v14, %d, v14" % (98304 + 8192))
    I("v_add_u32 v15, %d, %s" % (98304 + 8192 + 4096, v(L16)))
    I("v_cmp_gt_u32 vcc, 16, v11")
    I("v_cndmask_b32 %s, 0, 1, vcc" % v(U1)) if False else None
    I("v_cndmask_b32_e64 %s, 0, 1, vcc" % v(U1))
    I("v_cmp_gt_u32_e64 s[90:91], 18, v11")
    I("v_cndmask_b32_e64 v15, v15, v14, s[90:91]")
    I("v_cndmask_b32_e64 %s, v15, v13, vcc" % v(VA0))
    I("v_cndmask_b32_e64 %s, 0, 1, s[90:91]" % v(U2))
    I("v_sub_u32 %s, %s, %s" % (v(U2), v(U2), v(U1)))
    KA, KX, VV = 0, 36, 64
    I("v_mov_b32 v21, 0")
    for k in range(9): I("v_accvgpr_write_b32 %s, 0" % a(KX + 2 * k + 1))
    sTK, sHead, sFQ = 62, 63, 80
    SB = 81
    I("s_lshl_b32 %s, s60, 2" % s(sTK))
    I("s_add_u32 %s, %s, %s" % (s(sTK), s(sTK), s(S_WAVE)))
    I("s_and_b32 %s, %s, 1" % (s(sLy), s(sTK)))
    I("s_lshr_b32 %s, %s, 1" % (s(sTK), s(sTK)))
    start_sync(A)
    A.label("L_aa_top")
    I("s_lshr_b32 %s, %s, 5" % (s(sSeg), s(sTK)))
    I("s_and_b32 %s, %s, 31" % (s(sHead), s(sTK)))
    I("s_lshl_b32 %s, %s, 6" % (s(sT), s(sLy)))
    I("s_add_u32 %s, %s, %s" % (s(sT), s(sT), s(sSeg)))
    I("s_lshl_b32 %s, %s, 6" % (s(sFQ), s(sT)))
    I("s_add_u32 %s, %s, %d" % (s(sFS), s(sFQ), F_OA * FSTR))
    I("s_add_u32 %s, %s, %d" % (s(sFQ), s(sFQ), F_QKVA * FSTR))
    I("s_lshl_b32 %s, %s, 6" % (s(sT2), s(sLy)))
    for k in range(9):
        I("s_sub_i32 s3, %s, %d" % (s(sSeg), 8 - k))
        I("s_max_i32 s3, s3, 0")
        I("s_add_u32 s3, s3, %s" % s(sT2))
        I("s_lshl_b32 s3, s3, 17")
        I("s_add_u32 %s, s3, 0x%x" % (s(SB + k), W_QKVA))
    I("s_mul_i32 %s, %s, %d" % (s(sO), s(sT), SEGB))
    I("s_add_u32 %s, %s, 0x%x" % (s(sO), s(sO), W_OA))
    I("s_lshl_b32 s91, %s, 10" % s(sHead))
    I("v_add_u32 v22, s91, %s" % v(L16))
    I("v_add_u32 v23, 32768, v22")
    I("s_lshr_b32 s92, %s, 3" % s(sHead)); I("s_lshl_b32 s93, s92, 10")
    I("s_bfe_u32 s94, %s, 0x10002" % s(sHead)); I("s_lshl_b32 s94, s94, 9"); I("s_add_u32 s93, s93, s94")
    I("s_and_b32 s94, %s, 3" % s(sHead)); I("s_lshl_b32 s94, s94, 2"); I("s_add_u32 s93, s93, s94")
    I("s_add_u32 s94, s93, 98304")
    I("v_add_u32 v24, s94, %s" % v(XOF))
    I("v_add_u32 v25, 4096, v24")
    I("s_add_u32 s94, s93, 32768")
    I("v_add_u32 v27, s94, %s" % v(XOF))
    I("s_lshl_b32 s92, s92, 13"); I("s_and_b32 s94, %s, 7" % s(sHead)); I("s_lshl_b32 s94, s94, 6"); I("s_add_u32 s92, s92, s94")
    I("s_lshl_b32 s94, %s, 4" % s(sHead))
    I("v_mad_u32_u24 v26, %s, s92, %s" % (v(U1), v(VA0)))
    I("v_mad_u32_u24 v26, %s, s94, v26" % v(U2))
    I("s_cmp_eq_u32 %s, 0" % s(sSeg))
    I("s_cselect_b32 s3, 0, %d" % FSTR)
    I("s_sub_u32 %s, %s, s3" % (s(sFQ), s(sFQ)))
    I("v_lshrrev_b32 v14, 5, %s" % v(LANE))
    I("v_mul_u32_u24 v14, s3, v14")
    AAE = int(os.environ.get("AAE", "1"))
    kt = {}; vt = {}
    def ldk(k):
        I(("buffer_load_dwordx4 %s, v23, s[4:7], %s offen" + LD) % (a(KA + 4 * k, 4), s(SB + k)))
        kt[k] = I(("buffer_load_dword %s, v25, s[4:7], %s offen" + LD) % (a(KX + 2 * k), s(SB + k)))
    def ldv(k):
        I(("buffer_load_dwordx4 %s, v26, s[4:7], %s offen" + LD) % (a(VV + 8 * k, 4), s(SB + k)))
        vt[k] = I(("buffer_load_dwordx4 %s, v26, s[4:7], %s offen offset:1024" + LD) % (a(VV + 8 * k + 4, 4), s(SB + k)))
    if AAE:
        Lnf = A.newlabel("L_aa_nf"); Lsp = A.newlabel("L_aa_sp"); Lsd = A.newlabel("L_aa_sd")
        I("s_cmp_ge_u32 %s, %d" % (s(sTK), NW))
        I("s_cbranch_scc1 %s" % Lnf)
        spin_flag(A, sFQ, 15, voff=14)
        A.label(Lnf)
        I("buffer_load_dword v15, v14, s[4:7], %s offen sc1" % s(sFQ))
        m = A.vm_issued
        for k in range(6, -1, -1): ldk(k)
        for k in range(6, -1, -1): ldv(k)
        I("s_waitcnt vmcnt(%d)" % (A.vm_issued - m))
        signal(A, sPS, 13)
        I("v_cmp_gt_u32 vcc, 15, v15")
        I("s_cbranch_vccz %s" % Lsd)
        spin_flag(A, sFQ, 15, voff=14)
        A.label(Lsd)
    else:
        spin_flag_sig(A, sFQ, 15, sPS, voff=14)
    if TL.get("tl2"): tl_mark(A, 13)
    qt = I(("buffer_load_dwordx4 v[16:19], v22, s[4:7], %s offen" + LD) % s(SB + 8))
    qt = I(("buffer_load_dword v20, v24, s[4:7], %s offen" + LD) % s(SB + 8))
    late = (8, 7) if AAE else tuple(range(8, -1, -1))
    for k in late: ldk(k)
    for k in late: ldv(k)
    if AAE:
        for k in range(7): kt[k] = None; vt[k] = None
    S0 = 64
    tqa = lambda: tl_mark(A, 13) if TL.get("tlq") else None
    tqa()
    for k in range(8, -1, -1):
        if kt[k] is not None: A.wait_vm(kt[k])
        mf32(A, S0 + 16 * k, a(KA + 4 * k, 4), v(16, 4), "0")
        mf8(A, S0 + 16 * k, a(KX + 2 * k, 2), v(20, 2), v(S0 + 16 * k, 16))
        if k == 6:
            for i in range(16): I("v_cndmask_b32_e64 %s, %s, %s, %s" % (v(S0 + 128 + i), v(NEG), v(S0 + 128 + i), s(MSK[i], 2)))
    for i in range(16): I("v_cndmask_b32_e64 %s, %s, %s, %s" % (v(S0 + i), v(S0 + i), v(NEG), s(MSK[i], 2)))
    Lfix = A.newlabel("L_aa_fix"); Lback = A.newlabel("L_aa_back")
    I("s_cmp_lt_u32 %s, 8" % s(sSeg))
    I("s_cbranch_scc1 %s" % Lfix)
    A.label(Lback)
    tqa()
    M_ = 28
    max_tree(A, M_, range(S0, S0 + 144))
    xhalf(A, "v_max_f32", M_, 32)
    I("v_sub_f32 v32, 0, %s" % v(M_))
    I("v_mov_b32 v33, v32")
    tqa()
    OA_ = 40
    first = True
    for k in range(8, -1, -1):
        b = S0 + 16 * k
        for i in range(0, 16, 2): I("v_pk_add_f32 %s, %s, v[32:33]" % (v(b + i, 2), v(b + i, 2)))
        for i in range(16): I("v_exp_f32 %s, %s" % (v(b + i), v(b + i)))
        for jj in range(2):
            for m in range(4): I("v_cvt_pk_bf16_f32 %s, %s, %s" % (v(b + 8 * jj + m), v(b + 8 * jj + 2 * m), v(b + 8 * jj + 2 * m + 1)))
        if vt[k] is not None: A.wait_vm(vt[k])
        for jj in range(2):
            mf32(A, OA_, a(VV + 8 * k + 4 * jj, 4), v(b + 8 * jj, 4), "0" if first else v(OA_, 16))
            first = False
    I("v_rcp_f32 v34, %s" % v(OA_ + 10))
    for i in range(10): I("v_mul_f32 %s, %s, v34" % (v(OA_ + i), v(OA_ + i)))
    for m in range(4): I("v_cvt_pk_bf16_f32 %s, %s, %s" % (v(36 + m), v(OA_ + 2 * m), v(OA_ + 2 * m + 1)))
    I("v_cvt_pk_bf16_f32 v35, %s, %s" % (v(OA_ + 8), v(OA_ + 9)))
    I("buffer_store_dwordx4 v[36:39], v22, s[4:7], %s offen sc1" % s(sO))
    I("buffer_store_dword v35, v27, s[4:7], %s offen sc1" % s(sO))
    I("s_mov_b32 %s, %s" % (s(sPS), s(sFS)))
    tl_mark(A)
    I("s_add_u32 %s, %s, %d" % (s(sTK), s(sTK), NW))
    I("s_cmp_lt_u32 %s, 2048" % s(sTK))
    I("s_cbranch_scc1 L_aa_top")
    final_signal(A)
    A.label(Lfix)
    for k in range(8):
        Ls = A.newlabel("L_aa_fs")
        I("s_add_u32 s3, %s, %d" % (s(sSeg), k))
        I("s_cmp_ge_u32 s3, 8")
        I("s_cbranch_scc1 %s" % Ls)
        for i in range(16): I("v_mov_b32 %s, %s" % (v(S0 + 16 * k + i), v(NEG)))
        A.label(Ls)
    I("s_branch %s" % Lback)
```

```python
import os
from g_work import *

NEGINF = 0xff800000
def mf32(A, d, x, y, c): A.I("v_mfma_f32_32x32x16_bf16 %s, %s, %s, %s" % (v(d, 16), x, y, c))
def mf8(A, d, x, y, c): A.I("v_mfma_f32_32x32x8bf16_1k %s, %s, %s, %s" % (v(d, 16), x, y, c))

def xhalf(A, op, r, tmp):
    A.I("v_mov_b32 %s, %s" % (v(tmp), v(r)))
    A.I("v_permlane32_swap_b32 %s, %s" % (v(r), v(tmp)))
    A.I("%s %s, %s, %s" % (op, v(r), v(r), v(tmp)))

def max_tree(A, dst, regs):
    I = A.I
    regs = list(regs)
    if len(regs) >= 12:
        nch = 4
        parts = [regs[i::nch] for i in range(nch)]
        st = [None] * nch
        done = False
        idx = [0] * nch
        while not done:
            done = True
            for c in range(nch):
                p = parts[c]; i = idx[c]
                if i >= len(p): continue
                done = False
                if st[c] is None:
                    if len(p) - i >= 3:
                        I("v_max3_f32 %s, %s, %s, %s" % (v(dst + c), v(p[i]), v(p[i + 1]), v(p[i + 2]))); idx[c] += 3
                    else:
                        I("v_max_f32 %s, %s, %s" % (v(dst + c), v(p[i]), v(p[i + 1]))); idx[c] += 2
                    st[c] = 1
                elif len(p) - i >= 2:
                    I("v_max3_f32 %s, %s, %s, %s" % (v(dst + c), v(dst + c), v(p[i]), v(p[i + 1]))); idx[c] += 2
                else:
                    I("v_max_f32 %s, %s, %s" % (v(dst + c), v(dst + c), v(p[i]))); idx[c] += 1
        I("v_max3_f32 %s, %s, %s, %s" % (v(dst), v(dst), v(dst + 1), v(dst + 2)))
        I("v_max_f32 %s, %s, %s" % (v(dst), v(dst), v(dst + 3)))
    else:
        raise NotImplementedError

MSK = [40 + 2 * i for i in range(8)] + [64 + 2 * i for i in range(8)]
def causal_masks(A):
    I = A.I
    I("v_and_b32 v8, 31, %s" % v(LANE))
    I("v_lshrrev_b32 v9, 5, %s" % v(LANE))
    I("v_lshlrev_b32 v9, 2, v9")
    I("v_sub_u32 v8, v8, v9")
    for j in range(4):
        for r in range(4):
            I("v_cmp_le_i32_e64 %s, %d, v8" % (s(MSK[4 * j + r], 2), 8 * j + r))

BSC = 128 ** -0.5 * 1.4426950408889634
def role_qa(A):
    I = A.I
    worker_setup(A)
    bw_load(A, 40)
    causal_masks(A)
    NEG = 5; MKO = 6; MVO = 7
    I("v_mov_b32 %s, 0x%x" % (v(NEG), NEGINF))
    I("v_lshrrev_b32 v9, 5, %s" % v(LANE))
    I("v_and_b32 v8, 7, %s" % v(LANE))
    I("v_lshlrev_b32 v8, 4, v8")
    I("v_lshl_add_u32 %s, v9, 7, v8" % v(MKO))
    I("v_and_b32 v8, 31, %s" % v(LANE))
    I("v_lshlrev_b32 v8, 4, v8")
    I("v_lshl_add_u32 v8, v9, 3, v8")
    I("v_add_u32 %s, 2048, v8" % v(MVO))
    I("s_mov_b32 %s, 0x%x" % (s(sSC), fb(BSC)))
    fw = ((F_XN + 64) * FSTR, 128 * FSTR, FSTR, [])
    fs = (F_OB * FSTR, 64 * 4 * FSTR, 4 * FSTR, [(62, FSTR)])
    xb = (W_XN + XN_K, 2 * XN_K, SEGB, [])
    ob = (W_OB, 64 * OB_S, OB_S, [(S_IDX, 8192)])
    I("s_lshr_b32 s62, %s, 3" % s(S_IDX))
    task_init(A, fw, fs, xb, ob)
    sFK, sFM, sKV, sMK = 80, 81, 82, 83
    ex = ((sFK, (F_KV * FSTR, 64 * 32 * FSTR, 32 * FSTR, [(S_IDX, FSTR)])),
          (sFM, (F_MKV * FSTR, 64 * 32 * FSTR, 32 * FSTR, [(S_IDX, FSTR)])),
          (sKV, (W_KV, 64 * 32 * KV_H, 32 * KV_H, [(S_IDX, KV_H)])),
          (sMK, (W_MKV, 64 * 32 * MKV_H, 32 * MKV_H, [(S_IDX, MKV_H)])))
    for dst, (c0, cl, cs, e) in ex: lin(A, dst, c0, [(sLy, cl), (sSeg, cs)] + e)
    I("v_cmp_eq_u32 vcc, 1, %s" % v(LANE))
    I("v_mov_b32 v11, 2"); I("v_mov_b32 v12, %d" % (2 * 32 * FSTR))
    I("v_mov_b32 v8, 4"); I("v_mov_b32 v9, 0x%x" % ((F_MKV - F_KV) * FSTR))
    I("v_cndmask_b32 v11, v11, v8, vcc"); I("v_cndmask_b32 v12, v12, v9, vcc")
    QDEF = int(os.environ.get("QDEF", "2"))
    OA = [96, 112, 128, 144][:4 - QDEF] + [176, 192, 208, 224][:QDEF]
    sOP = 92
    def dfr_ops():
        ops = []
        for tau in range(4 - QDEF, 4):
            for jj in range(2):
                o = OA[tau] + 8 * jj; d = 32 + 8 * (tau & 1) + 4 * jj
                for i in range(0, 8, 2): ops.append(lambda o=o, i=i: (I("v_pk_mul_f32 %s, %s, v[28:29]" % (v(o + i, 2), v(o + i, 2))), None)[1])
                for m in range(4): ops.append(lambda o=o, d=d, m=m: (I("v_cvt_pk_bf16_f32 %s, %s, %s" % (v(d + m), v(o + 2 * m), v(o + 2 * m + 1))), None)[1])
                off = (2 * (tau - (4 - QDEF)) + jj) * 1024
                ops.append(lambda d=d, off=off: I("buffer_store_dwordx4 %s, %s, s[4:7], %s offen offset:%d sc1" % (v(d, 4), v(L16), s(sOP + off // 4096), off % 4096)))
        return ops
    def dfr_now():
        A.flush_hazards(); I("s_nop 7"); I("s_nop 7")
        for f in dfr_ops(): f()
        I("s_mov_b32 %s, 0x%x" % (s(sOP), OOB)); I("s_mov_b32 %s, 0x%x" % (s(sOP + 1), OOB))
    if QDEF: I("s_mov_b32 %s, 0x%x" % (s(sOP), OOB)); I("s_mov_b32 %s, 0x%x" % (s(sOP + 1), OOB))
    start_sync(A)
    A.label("L_qa_top")
    task_head(A, sFK, 2, pre=dfr_now if QDEF else None)
    KA, VA, MKA, MVA = 144, 176, 208, 240
    def kvl(t):
        def f():
            if t % 4 == 0 and t: I("s_add_u32 %s, %s, %d" % (s(sT), s(sKV), t * 1024))
            return I(("buffer_load_dwordx4 %s, %s, s[4:7], %s offen offset:%d" + LD) % (a(KA + 4 * t, 4), v(L16), s(sKV if t < 4 else sT), (t % 4) * 1024))
        return f
    toks = XL(A, 36, sX, extra=[kvl(t) for t in range(16)], nup="pre")
    def mloads():
        mt = []
        for t in range(8):
            mt.append(I(("buffer_load_dwordx4 %s, %s, s[4:7], %s offen offset:%d" + LD) % (a(MKA + 4 * t, 4), v(MKO), s(sMK), t * 256)))
        for tau in range(4):
            mvt = I(("buffer_load_dwordx2 %s, %s, s[4:7], %s offen offset:%d" + LD) % (a(MVA + 2 * tau, 2), v(MVO), s(sMK), tau * 512))
        return mt, mvt
    sHV = 84
    TP, TC = 22, 29
    def poll(): I("buffer_load_dword v14, v12, s[4:7], %s offen sc1" % s(sFK))
    def check(): I("v_cmp_le_u32 vcc, v11, v14")
    def more(pend):
        I("s_bfe_u32 %s, vcc_lo, 0x10001" % s(sHV))
        I("s_cmp_lg_u32 %s, 0" % s(sHV))
        I("s_cselect_b32 s88, %s, 0x%x" % (s(sMK), OOB))
        for t in range(8):
            pend.append(lambda t=t: I(("buffer_load_dwordx4 %s, %s, s[4:7], s88 offen offset:%d" + LD) % (a(MKA + 4 * t, 4), v(MKO), t * 256)))
        for tau in range(4):
            pend.append(lambda tau=tau: I(("buffer_load_dwordx2 %s, %s, s[4:7], s88 offen offset:%d" + LD) % (a(MVA + 2 * tau, 2), v(MVO), tau * 512)))
    gemm_core(A, 36, 4, False, xtoks=toks, fill=look_fill(A, None, None, None, 2 * SEGB, TP, TC, more=more, poll=poll, check=check, dfr=dfr_ops() if QDEF else None,
                                                          dper=eval(os.environ.get("DPER", "(3,3,4,4)")), dlag=int(os.environ.get("DLAG", "5"))))
    if TL.get("tlq"): tl_mark(A, 13)
    QF = 16
    def qcv(f):
        for m in range(4):
            x0 = ACC + 8 * f + 2 * m
            I("v_cvt_pk_bf16_f32 %s, %s, %s" % (v(QF + 4 * f + m), v(x0), v(x0 + 1)))
    SX, SM = 64, 80
    qcv(0); qcv(1)
    for t in range(8):
        mf32(A, SX, a(KA + 4 * t, 4), v(QF + 4 * t, 4), "0" if t == 0 else v(SX, 16))
        if t + 2 < 8: qcv(t + 2)
    if TL.get("tlq"): tl_mark(A, 13)
    Lh = A.newlabel("L_qa_hv")
    I("s_cmp_eq_u32 %s, 1" % s(sHV))
    I("s_cbranch_scc1 %s" % Lh, noflush=True)
    A.flush_hazards()
    spin_flag(A, sFM, 4)
    mloads()
    A.label(Lh)
    I("s_waitcnt vmcnt(0)")
    k = 0
    for t in range(8):
        mf32(A, SM, a(MKA + 4 * t, 4), v(QF + 4 * t, 4), "0" if t == 0 else v(SM, 16))
        if t >= 2:
            for _ in range(3):
                if k < 16: I("v_cndmask_b32_e64 %s, %s, %s, %s" % (v(SX + k), v(NEG), v(SX + k), s(MSK[k], 2))); k += 1
    assert k == 16
    if TL.get("tlq"): tl_mark(A, 13)
    M_ = 48
    max_tree(A, M_, list(range(SX, SX + 16)) + list(range(SM, SM + 4)))
    xhalf(A, "v_max_f32", M_, 52)
    I("v_mul_f32 %s, %s, %s" % (v(M_), s(sSC), v(M_)))
    for r in list(range(SX, SX + 16)) + list(range(SM, SM + 4)):
        I("v_fma_f32 %s, %s, %s, -%s" % (v(r), v(r), s(sSC), v(M_)))
        I("v_exp_f32 %s, %s" % (v(r), v(r)))
    P0, PM = 16, 24
    for jj in range(2):
        for m in range(4): I("v_cvt_pk_bf16_f32 %s, %s, %s" % (v(P0 + 4 * jj + m), v(SX + 8 * jj + 2 * m), v(SX + 8 * jj + 2 * m + 1)))
    for m in range(2): I("v_cvt_pk_bf16_f32 %s, %s, %s" % (v(PM + m), v(SM + 2 * m), v(SM + 2 * m + 1)))
    OAc = 96
    regs = list(range(SX, SX + 16)) + list(range(SM, SM + 4))
    fl = []
    for c in range(4): fl.append((0, lambda c=c: I("v_add_f32 %s, %s, %s" % (v(28 + c), v(regs[c::4][0]), v(regs[c::4][1])))))
    for k in range(2, 5):
        for c in range(4): fl.append((0, lambda c=c, k=k: I("v_add_f32 %s, %s, %s" % (v(28 + c), v(28 + c), v(regs[c::4][k])))))
    fl.append((0, lambda: I("v_add_f32 v28, v28, v29"))); fl.append((0, lambda: I("v_add_f32 v30, v30, v31"))); fl.append((0, lambda: I("v_add_f32 v28, v28, v30")))
    fl.append((0, lambda: xhalf(A, "v_add_f32", 28, 29)))
    fl.append((0, lambda: (I("v_rcp_f32 v28, v28"), I("v_mov_b32 v29, v28"))))
    units = [((2 * tau + jj) * 1024, [(OA[tau] + 8 * jj + i, None) for i in range(8)]) for tau in range(4) for jj in range(2)]
    for tau in range(4 - QDEF):
        for jj in range(2):
            for i in range(8 * jj, 8 * jj + 8, 2):
                fl.append((3 * tau + 3, lambda tau=tau, i=i: I("v_pk_mul_f32 %s, %s, v[28:29]" % (v(OA[tau] + i, 2), v(OA[tau] + i, 2)))))
            fl.append((3 * tau + 3, lambda tau=tau, jj=jj: store_units(A, units[2 * tau + jj:2 * tau + jj + 1], sO, L16, tmp=32 + 8 * (tau & 1) + 4 * jj)))
    mi = 0
    for tau in range(4):
        for j3 in range(3):
            if j3 == 0: mf32(A, OA[tau], a(VA + 4 * (2 * tau), 4), v(P0, 4), "0")
            elif j3 == 1: mf32(A, OA[tau], a(VA + 4 * (2 * tau + 1), 4), v(P0 + 4, 4), v(OA[tau], 16))
            else: mf8(A, OA[tau], a(MVA + 2 * tau, 2), v(PM, 2), v(OA[tau], 16))
            n = 3 if j3 == 2 else 6
            while n > 0 and fl and fl[0][0] <= mi - 0 and not (fl[0][0] and fl[0][0] == mi):
                fl.pop(0)[1](); n -= 1
            mi += 1
    while fl: fl.pop(0)[1]()
    I("s_mov_b32 %s, %s" % (s(sPS), s(sFS)))
    if QDEF:
        I("s_add_u32 %s, %s, %d" % (s(sOP), s(sO), (4 - QDEF) * 2048)); I("s_add_u32 %s, %s, 4096" % (s(sOP + 1), s(sOP)))
    for dst, (c0, cl, cs, e) in ex: I("s_add_u32 %s, %s, 0x%x" % (s(dst), s(dst), 2 * cs))
    task_next(A, fw, fs, xb, ob, "L_qa_top", pre=dfr_now if QDEF else None)

def role_aa(A, naa):
    I = A.I
    worker_setup(A)
    causal_masks(A)
    NW = 2 * naa
    NEG, VA0, U1, U2, XOF, TOK16 = 5, 6, 7, 8, 9, 10
    I("v_mov_b32 %s, 0x%x" % (v(NEG), NEGINF))
    I("v_and_b32 v11, 31, %s" % v(LANE))
    I("v_lshrrev_b32 v12, 5, %s" % v(LANE))
    I("v_lshlrev_b32 %s, 4, v11" % v(TOK16))
    I("s_mov_b32 s3, 0x%x" % OOB)
    I("v_mul_lo_u32 v13, v12, s3")
    I("v_add_u32 %s, v13, %s" % (v(XOF), v(TOK16)))
    I("v_and_b32 v13, 3, v11"); I("v_lshlrev_b32 v13, 11, v13")
    I("v_lshrrev_b32 v14, 2, v11"); I("v_lshl_add_u32 v14, v12, 5, v14")
    I("v_lshl_add_u32 v13, v14, 4, v13")
    I("v_add_u32 v13, 65536, v13")
    I("v_subrev_u32 v14, 16, v11"); I("v_lshlrev_b32 v14, 11, v14")
    I("v_lshl_add_u32 v14, v12, 9, v14")
    I("v_add_u32 v14, %d, v14" % (98304 + 8192))
    I("v_add_u32 v15, %d, %s" % (98304 + 8192 + 4096, v(L16)))
    I("v_cmp_gt_u32 vcc, 16, v11")
    I("v_cndmask_b32 %s, 0, 1, vcc" % v(U1)) if False else None
    I("v_cndmask_b32_e64 %s, 0, 1, vcc" % v(U1))
    I("v_cmp_gt_u32_e64 s[90:91], 18, v11")
    I("v_cndmask_b32_e64 v15, v15, v14, s[90:91]")
    I("v_cndmask_b32_e64 %s, v15, v13, vcc" % v(VA0))
    I("v_cndmask_b32_e64 %s, 0, 1, s[90:91]" % v(U2))
    I("v_sub_u32 %s, %s, %s" % (v(U2), v(U2), v(U1)))
    KA, KX, VV = 0, 36, 64
    I("v_mov_b32 v21, 0")
    for k in range(9): I("v_accvgpr_write_b32 %s, 0" % a(KX + 2 * k + 1))
    sTK, sHead, sFQ = 62, 63, 80
    SB = 81
    I("s_lshl_b32 %s, s60, 2" % s(sTK))
    I("s_add_u32 %s, %s, %s" % (s(sTK), s(sTK), s(S_WAVE)))
    I("s_and_b32 %s, %s, 1" % (s(sLy), s(sTK)))
    I("s_lshr_b32 %s, %s, 1" % (s(sTK), s(sTK)))
    start_sync(A)
    A.label("L_aa_top")
    I("s_lshr_b32 %s, %s, 5" % (s(sSeg), s(sTK)))
    I("s_and_b32 %s, %s, 31" % (s(sHead), s(sTK)))
    I("s_lshl_b32 %s, %s, 6" % (s(sT), s(sLy)))
    I("s_add_u32 %s, %s, %s" % (s(sT), s(sT), s(sSeg)))
    I("s_lshl_b32 %s, %s, 6" % (s(sFQ), s(sT)))
    I("s_add_u32 %s, %s, %d" % (s(sFS), s(sFQ), F_OA * FSTR))
    I("s_add_u32 %s, %s, %d" % (s(sFQ), s(sFQ), F_QKVA * FSTR))
    I("s_lshl_b32 %s, %s, 6" % (s(sT2), s(sLy)))
    for k in range(9):
        I("s_sub_i32 s3, %s, %d" % (s(sSeg), 8 - k))
        I("s_max_i32 s3, s3, 0")
        I("s_add_u32 s3, s3, %s" % s(sT2))
        I("s_lshl_b32 s3, s3, 17")
        I("s_add_u32 %s, s3, 0x%x" % (s(SB + k), W_QKVA))
    I("s_mul_i32 %s, %s, %d" % (s(sO), s(sT), SEGB))
    I("s_add_u32 %s, %s, 0x%x" % (s(sO), s(sO), W_OA))
    I("s_lshl_b32 s91, %s, 10" % s(sHead))
    I("v_add_u32 v22, s91, %s" % v(L16))
    I("v_add_u32 v23, 32768, v22")
    I("s_lshr_b32 s92, %s, 3" % s(sHead)); I("s_lshl_b32 s93, s92, 10")
    I("s_bfe_u32 s94, %s, 0x10002" % s(sHead)); I("s_lshl_b32 s94, s94, 9"); I("s_add_u32 s93, s93, s94")
    I("s_and_b32 s94, %s, 3" % s(sHead)); I("s_lshl_b32 s94, s94, 2"); I("s_add_u32 s93, s93, s94")
    I("s_add_u32 s94, s93, 98304")
    I("v_add_u32 v24, s94, %s" % v(XOF))
    I("v_add_u32 v25, 4096, v24")
    I("s_add_u32 s94, s93, 32768")
    I("v_add_u32 v27, s94, %s" % v(XOF))
    I("s_lshl_b32 s92, s92, 13"); I("s_and_b32 s94, %s, 7" % s(sHead)); I("s_lshl_b32 s94, s94, 6"); I("s_add_u32 s92, s92, s94")
    I("s_lshl_b32 s94, %s, 4" % s(sHead))
    I("v_mad_u32_u24 v26, %s, s92, %s" % (v(U1), v(VA0)))
    I("v_mad_u32_u24 v26, %s, s94, v26" % v(U2))
    I("s_cmp_eq_u32 %s, 0" % s(sSeg))
    I("s_cselect_b32 s3, 0, %d" % FSTR)
    I("s_sub_u32 %s, %s, s3" % (s(sFQ), s(sFQ)))
    I("v_lshrrev_b32 v14, 5, %s" % v(LANE))
    I("v_mul_u32_u24 v14, s3, v14")
    AAE = int(os.environ.get("AAE", "1"))
    kt = {}; vt = {}
    def ldk(k):
        I(("buffer_load_dwordx4 %s, v23, s[4:7], %s offen" + LD) % (a(KA + 4 * k, 4), s(SB + k)))
        kt[k] = I(("buffer_load_dword %s, v25, s[4:7], %s offen" + LD) % (a(KX + 2 * k), s(SB + k)))
    def ldv(k):
        I(("buffer_load_dwordx4 %s, v26, s[4:7], %s offen" + LD) % (a(VV + 8 * k, 4), s(SB + k)))
        vt[k] = I(("buffer_load_dwordx4 %s, v26, s[4:7], %s offen offset:1024" + LD) % (a(VV + 8 * k + 4, 4), s(SB + k)))
    if AAE:
        Lnf = A.newlabel("L_aa_nf"); Lsp = A.newlabel("L_aa_sp"); Lsd = A.newlabel("L_aa_sd")
        I("s_cmp_ge_u32 %s, %d" % (s(sTK), NW))
        I("s_cbranch_scc1 %s" % Lnf)
        spin_flag(A, sFQ, 15, voff=14)
        A.label(Lnf)
        I("buffer_load_dword v15, v14, s[4:7], %s offen sc1" % s(sFQ))
        m = A.vm_issued
        for k in range(6, -1, -1): ldk(k)
        for k in range(6, -1, -1): ldv(k)
        I("s_waitcnt vmcnt(%d)" % (A.vm_issued - m))
        signal(A, sPS, 13)
        I("v_cmp_gt_u32 vcc, 15, v15")
        I("s_cbranch_vccz %s" % Lsd)
        spin_flag(A, sFQ, 15, voff=14)
        A.label(Lsd)
    else:
        spin_flag_sig(A, sFQ, 15, sPS, voff=14)
    if TL.get("tl2"): tl_mark(A, 13)
    qt = I(("buffer_load_dwordx4 v[16:19], v22, s[4:7], %s offen" + LD) % s(SB + 8))
    qt = I(("buffer_load_dword v20, v24, s[4:7], %s offen" + LD) % s(SB + 8))
    late = (8, 7) if AAE else tuple(range(8, -1, -1))
    for k in late: ldk(k)
    for k in late: ldv(k)
    if AAE:
        for k in range(7): kt[k] = None; vt[k] = None
    S0 = 64
    tqa = lambda: tl_mark(A, 13) if TL.get("tlq") else None
    tqa()
    for k in range(8, -1, -1):
        if kt[k] is not None: A.wait_vm(kt[k])
        mf32(A, S0 + 16 * k, a(KA + 4 * k, 4), v(16, 4), "0")
        mf8(A, S0 + 16 * k, a(KX + 2 * k, 2), v(20, 2), v(S0 + 16 * k, 16))
        if k == 6:
            for i in range(16): I("v_cndmask_b32_e64 %s, %s, %s, %s" % (v(S0 + 128 + i), v(NEG), v(S0 + 128 + i), s(MSK[i], 2)))
    for i in range(16): I("v_cndmask_b32_e64 %s, %s, %s, %s" % (v(S0 + i), v(S0 + i), v(NEG), s(MSK[i], 2)))
    Lfix = A.newlabel("L_aa_fix"); Lback = A.newlabel("L_aa_back")
    I("s_cmp_lt_u32 %s, 8" % s(sSeg))
    I("s_cbranch_scc1 %s" % Lfix)
    A.label(Lback)
    tqa()
    M_ = 28
    max_tree(A, M_, range(S0, S0 + 144))
    xhalf(A, "v_max_f32", M_, 32)
    I("v_sub_f32 v32, 0, %s" % v(M_))
    I("v_mov_b32 v33, v32")
    tqa()
    OA_ = 40
    first = True
    for k in range(8, -1, -1):
        b = S0 + 16 * k
        for i in range(0, 16, 2): I("v_pk_add_f32 %s, %s, v[32:33]" % (v(b + i, 2), v(b + i, 2)))
        for i in range(16): I("v_exp_f32 %s, %s" % (v(b + i), v(b + i)))
        for jj in range(2):
            for m in range(4): I("v_cvt_pk_bf16_f32 %s, %s, %s" % (v(b + 8 * jj + m), v(b + 8 * jj + 2 * m), v(b + 8 * jj + 2 * m + 1)))
        if vt[k] is not None: A.wait_vm(vt[k])
        for jj in range(2):
            mf32(A, OA_, a(VV + 8 * k + 4 * jj, 4), v(b + 8 * jj, 4), "0" if first else v(OA_, 16))
            first = False
    I("v_rcp_f32 v34, %s" % v(OA_ + 10))
    for i in range(10): I("v_mul_f32 %s, %s, v34" % (v(OA_ + i), v(OA_ + i)))
    for m in range(4): I("v_cvt_pk_bf16_f32 %s, %s, %s" % (v(36 + m), v(OA_ + 2 * m), v(OA_ + 2 * m + 1)))
    I("v_cvt_pk_bf16_f32 v35, %s, %s" % (v(OA_ + 8), v(OA_ + 9)))
    I("buffer_store_dwordx4 v[36:39], v22, s[4:7], %s offen sc1" % s(sO))
    I("buffer_store_dword v35, v27, s[4:7], %s offen sc1" % s(sO))
    I("s_mov_b32 %s, %s" % (s(sPS), s(sFS)))
    tl_mark(A)
    I("s_add_u32 %s, %s, %d" % (s(sTK), s(sTK), NW))
    I("s_cmp_lt_u32 %s, 2048" % s(sTK))
    I("s_cbranch_scc1 L_aa_top")
    final_signal(A)
    A.label(Lfix)
    for k in range(8):
        Ls = A.newlabel("L_aa_fs")
        I("s_add_u32 s3, %s, %d" % (s(sSeg), k))
        I("s_cmp_ge_u32 s3, 8")
        I("s_cbranch_scc1 %s" % Ls)
        for i in range(16): I("v_mov_b32 %s, %s" % (v(S0 + 16 * k + i), v(NEG)))
        A.label(Ls)
    I("s_branch %s" % Lback)
```
